```python
import torch

def _softmax(x, axis=-1):
    return torch.softmax(x, dim=axis)
def _gelu(x):
    return torch.nn.functional.gelu(x, approximate="tanh")
def _silu(x):
    return torch.nn.functional.silu(x)
def _sigmoid(x):
    return torch.sigmoid(x)
def _layernorm(x, axis=-1, eps=1e-5):
    m = x.mean(dim=axis, keepdim=True)
    v = x.var(dim=axis, keepdim=True, unbiased=False)
    return (x - m) / torch.sqrt(v + eps)
def _scatter_add(tgt, idx, src, axis=0):
    return tgt.clone().index_add_(axis, idx, src)
def _segment_sum(src, seg, n):
    out = torch.zeros((n,) + src.shape[1:], dtype=src.dtype)
    return out.index_add_(0, seg, src)
def _pad(x, pw):
    flat = tuple(v for pair in reversed(pw) for v in pair)
    return torch.nn.functional.pad(x, flat)

kernel_name = 'standalone__cheap_equivariant_egnn__graph'

def setup_inputs():

    _w = (lambda a: (lambda t: t.to(torch.bfloat16) if t.is_floating_point() else t)(torch.as_tensor(a)))
    N, deg, D, De = 25000, 16, 128, max(4, 1)
    E = N * deg
    return {
        "h": _w((lambda *s: torch.randn(*s, dtype=torch.bfloat16) * 0.2)(N, D)),
        "pos": _w((lambda *s: torch.randn(*s, dtype=torch.bfloat16) * 0.8)(N, 3)),
        "e_attr": _w((lambda *s: torch.randn(*s, dtype=torch.bfloat16) * 0.8)(E, De)),
        "src": _w((lambda lo, hi, *s: torch.randint(lo, hi, s))(0, N, E).to(torch.int64)),
        "dst": _w((lambda lo, hi, *s: torch.randint(lo, hi, s))(0, N, E).to(torch.int64)),
        "w_e": _w(0.1 * (lambda *s: torch.randn(*s, dtype=torch.bfloat16) * 0.8)(2 * D + 1 + De, D)),
        "w_x": _w(0.1 * (lambda *s: torch.randn(*s, dtype=torch.bfloat16) * 0.2)(D, 1)),
        "w_h": _w(0.1 * (lambda *s: torch.randn(*s, dtype=torch.bfloat16) * 0.2)(2 * D, D)),
    }

def reference(h, pos, e_attr, src, dst, w_e, w_x, w_h):
    N, D = h.shape[0], h.shape[1]
    diff = pos[dst] - pos[src]
    dist2 = torch.sum(diff * diff, axis=-1, keepdims=True)
    e_in = torch.concatenate([h[dst], h[src], dist2, e_attr], axis=-1)
    m_ij = _silu(e_in @ w_e)
    coord_scale = m_ij @ w_x
    pos_new = pos + _segment_sum(diff * coord_scale, dst, N)
    m_i = _segment_sum(m_ij, dst, N)
    h_new = h + _silu(torch.concatenate([h, m_i], axis=-1) @ w_h)
    return h_new, pos_new
```

```python
import re


class Asm:
    def __init__(self):
        self.lines = []

    def __call__(self, text):
        for ln in text.strip("\n").split("\n"):
            ln = ln.strip()
            if ln:
                self.lines.append(ln)

    def ext(self, lst):
        for x in lst:
            self(x)

    def text(self):
        out = []
        for ln in self.lines:
            if ln.endswith(":") or ln.startswith(".") or ln.startswith(";"):
                out.append(ln)
            else:
                out.append("    " + ln)
        return "\n".join(out) + "\n"


def v(i, n=1):
    return f"v{i}" if n == 1 else f"v[{i}:{i + n - 1}]"


def s(i, n=1):
    return f"s{i}" if n == 1 else f"s[{i}:{i + n - 1}]"


_REG = re.compile(r"\b([vs])(?:(\d+)|\[(\d+):(\d+)\])")
TRANS = ("v_exp_", "v_log_", "v_rcp_", "v_rsq_", "v_sqrt_", "v_sin_", "v_cos_")


def _regs(op):
    out = set()
    for m in _REG.finditer(op):
        k = m.group(1)
        if m.group(2) is not None:
            out.add((k, int(m.group(2))))
        else:
            for i in range(int(m.group(3)), int(m.group(4)) + 1):
                out.add((k, i))
    if re.search(r"\bvcc\b", op):
        out.add(("s", "vcc"))
    if re.search(r"\bexec\b", op):
        out.add(("s", "exec"))
    if re.search(r"\bm0\b", op):
        out.add(("s", "m0"))
    return out


class Ins:
    def __init__(self, text):
        self.text = text
        body = text.split(";")[0].strip()
        parts = body.split(None, 1)
        self.op = parts[0]
        rest = parts[1] if len(parts) > 1 else ""
        ops = [x.strip() for x in re.split(r",(?![^\[]*\])", rest)] if rest else []
        self.ops = ops
        op = self.op
        self.mfma = op.startswith("v_mfma")
        self.valu = op.startswith("v_") and not self.mfma
        self.trans = op.startswith(TRANS)
        self.dot = op.startswith("v_dot")
        self.dpp = "dpp" in op or "row_" in body or "quad_perm" in body
        self.sdwa = "sdwa" in op
        self.ds = op.startswith("ds_")
        self.vmem = op.startswith(("buffer_", "global_"))
        self.salu = op.startswith("s_")
        self.lds_dma = self.vmem and (body.endswith(" lds") or " lds " in body or "_lds_" in op)
        w, r = set(), set()
        if self.mfma:
            w = _regs(ops[0])
            self.a, self.b, self.c = _regs(ops[1]), _regs(ops[2]), _regs(ops[3])
            r = self.a | self.b | self.c
            self.passes = 8 if "32x32" in op else 4
        elif self.valu:
            nd = 1
            if op.startswith(("v_add_co", "v_sub_co", "v_addc_co", "v_mad_u64")):
                nd = 2
            for o in ops[:nd]:
                w |= _regs(o)
            for o in ops[nd:]:
                r |= _regs(o)
            if op.startswith("v_cmpx"):
                w.add(("s", "exec"))
            if op.startswith(("v_fmac", "v_pk_fmac", "v_writelane")) or self.dpp or "PRESERVE" in body:
                r |= _regs(ops[0])
            if op.startswith("v_permlane"):
                w |= _regs(ops[1])
                r |= _regs(ops[0])
        elif self.ds:
            if op.startswith("ds_read") or "_rtn" in op or "permute" in op or "swizzle" in op:
                w = _regs(ops[0])
                for o in ops[1:]:
                    r |= _regs(o)
            else:
                for o in ops:
                    r |= _regs(o)
        elif self.vmem:
            if "load" in op and not self.lds_dma:
                w = _regs(ops[0])
                for o in ops[1:]:
                    r |= _regs(o)
            else:
                for o in ops:
                    r |= _regs(o)
            self.wide_store = "store" in op and ("x3" in op or "x4" in op)
            if self.wide_store:
                self.data = _regs(ops[0]) if op.startswith("buffer") else _regs(ops[1])
        elif self.salu:
            if op.startswith(("s_cmp", "s_cbranch", "s_branch", "s_waitcnt", "s_nop", "s_barrier", "s_endpgm",
                              "s_setprio", "s_setpc", "s_bitcmp", "s_sleep")):
                for o in ops:
                    r |= _regs(o)
            else:
                w = _regs(ops[0]) if ops else set()
                for o in ops[1:]:
                    r |= _regs(o)
                if "saveexec" in op:
                    w.add(("s", "exec"))
        self.w, self.r = w, r
        self.states = 1
        if op == "s_nop":
            self.states = int(ops[0], 0) + 1


def _vg(x):
    return {q for q in x if q[0] == "v"}


def _sg(x):
    return {q for q in x if q[0] == "s"}


def need(p, c):
    n = 0
    if p.mfma:
        k = {4: (6, 8, 3), 8: (10, 12, 7)}[p.passes]
        if c.mfma:
            if p.w & (c.a | c.b):
                n = max(n, k[1])
            if p.w & c.c and not (p.w == c.c and p.passes == c.passes):
                n = max(n, k[0])
            if p.w & c.w and not (p.w == c.w):
                n = max(n, k[0])
        else:
            if p.w & (c.r | c.w):
                n = max(n, k[1])
            if c.valu and p.c & c.w:
                n = max(n, k[2])
    if p.valu:
        pv, ps = _vg(p.w), _sg(p.w)
        if c.mfma and pv & c.r:
            n = max(n, 3 if p.dot else 2)
        if c.mfma and ("s", "exec") in ps:
            n = max(n, 4)
        if c.valu:
            if c.dpp and pv & c.r:
                n = max(n, 2)
            if c.dpp and ("s", "exec") in ps:
                n = max(n, 5)
            if c.op.startswith(("v_readlane", "v_readfirstlane")) and pv & c.r:
                n = max(n, 1)
            if c.op.startswith(("v_readlane", "v_writelane")) and ps & c.r:
                n = max(n, 4)
            if c.op.startswith(("v_readlane", "v_readfirstlane", "v_writelane")) and ("s", "exec") in ps:
                n = max(n, 4)
            if ps & c.r:
                n = max(n, 2)
            if p.trans and not c.trans and pv & c.r:
                n = max(n, 1)
            if p.sdwa and pv & (c.r | c.w):
                n = max(n, 1)
            if c.op.startswith("v_permlane") and pv & c.r:
                n = max(n, 2)
            if p.dot and pv & (c.r | c.w):
                same_c = c.op == p.op and not (pv & (_regs(c.ops[1]) | _regs(c.ops[2])))
                if not same_c:
                    n = max(n, 3)
        if (c.vmem or c.ds) and p.dot and pv & c.r:
            n = max(n, 3)
        if (c.vmem or c.ds) and p.trans and pv & c.r:
            n = max(n, 1)
        if c.vmem and ps & c.r:
            n = max(n, 5)
    if p.vmem and getattr(p, "wide_store", False) and p.data & c.w:
        n = max(n, 2)
    if p.salu and ("s", "m0") in p.w and c.lds_dma:
        n = max(n, 1)
    return n


def check(lines):
    ins, labels = [], {}
    for ln in lines:
        t = ln.split(";")[0].strip()
        if not t or t.startswith("."):
            continue
        if t.endswith(":"):
            labels[t[:-1]] = len(ins)
            continue
        ins.append(Ins(t))
    calls = [i for i, x in enumerate(ins) if x.op == "s_call_b64"]

    def succ(i):
        x = ins[i]
        if x.op == "s_endpgm":
            return []
        if x.op == "s_branch":
            return [labels[x.ops[0]]]
        if x.op == "s_call_b64":
            return [labels[x.ops[1]]]
        if x.op == "s_setpc_b64":
            return [c + 1 for c in calls if ins[c].ops[0] == x.ops[0]]
        out = [i + 1] if i + 1 < len(ins) else []
        if x.op.startswith("s_cbranch"):
            out.append(labels[x.ops[0]])
        return out

    problems = set()
    for i, p in enumerate(ins):
        if not (p.mfma or p.valu or p.vmem or (p.salu and ("s", "m0") in p.w)):
            continue
        stack = [(j, 0) for j in succ(i)]
        seen = {}
        while stack:
            j, d = stack.pop()
            if d > 14 or seen.get(j, 99) <= d:
                continue
            seen[j] = d
            c = ins[j]
            n = need(p, c)
            if n > d:
                problems.add((i, j, n, d))
            for k in succ(j):
                stack.append((k, d + c.states))
    return [f"need {n} have {d}: [{i}] {ins[i].text}  ->  [{j}] {ins[j].text}" for i, j, n, d in sorted(problems)]
```

```python
import os
import struct
import sys

sys.path.insert(0, os.path.dirname(os.path.abspath(__file__)))
from asmlib import Asm, check, s, v

NAME = "standalone__cheap_equivariant_egnn__graph"
N, E = 25000, 400000
CH, BS = 1568, 98
NG = 196
WS_TAB, WS_KEY, WS_OFF, WS_W, WS_PAY = 4096, 0x640000, 0x7D0000, 0x820000, 0x840000
WS_DBG = 0x1000000
PAY_OH = 256 * CH * 16


def f2u(x):
    return struct.unpack("<I", struct.pack("<f", x))[0]


C_FWD = f2u(-1.4426950408889634)
C_INV = f2u(-0.6931471805599453)
OOB = 0x30000

OPT = dict(st1="sc1", sttab="", ldnt="nt", stamps=0, prio=0, safe=0)


def scan64(a, r):
    for d in ("row_shr:1 row_mask:0xf", "row_shr:2 row_mask:0xf", "row_shr:4 row_mask:0xf",
              "row_shr:8 row_mask:0xf", "row_bcast:15 row_mask:0xa", "row_bcast:31 row_mask:0xc"):
        a("s_nop 1")
        a(f"v_add_u32_dpp {r}, {r}, {r} {d} bank_mask:0xf")


def stamp(a, k, base=80):
    if OPT["stamps"]:
        a(f"s_memrealtime s[{base + 2 * k}:{base + 2 * k + 1}]")


def stamps_out(a, n, region, wave, base=80):
    if not OPT["stamps"]:
        return
    a("s_waitcnt lgkmcnt(0)")
    a("s_mov_b64 exec, -1")
    a(f"s_lshl_b32 s3, s2, 3\ns_add_u32 s3, s3, {wave}\ns_lshl_b32 s3, s3, 6\ns_add_u32 s3, s3, {WS_DBG + region}")
    a("v_mov_b32 v1, s3")
    for k in range(n):
        a(f"v_mov_b32 v2, s{base + 2 * k}")
        a(f"global_store_dword v1, v2, s[24:25] offset:{4 * k}")


def k1(a):
    HIST, BASE, KEYS, PAY = 0, 1024, 2048, 8320
    nt, st1 = OPT["ldnt"], OPT["st1"]
    a(".p2align 8\nk1_kernel:")
    stamp(a, 0)
    a(f"""
s_load_dwordx16 s[4:19], s[0:1], 0
s_load_dwordx2 s[24:25], s[0:1], 80
v_lshrrev_b32 v2, 6, v0
s_cmp_ge_u32 s2, 256
v_readfirstlane_b32 s44, v2
s_cbranch_scc1 K1_GEMM
s_mul_i32 s26, s2, {CH * 4}
v_lshl_add_u32 v1, v0, 4, s26
v_lshlrev_b32 v3, 2, v0
v_mov_b32 v2, 0
ds_write_b32 v3, v2 offset:{HIST}
v_cmp_gt_u32 vcc, {CH // 4}, v0
s_mov_b64 s[30:31], vcc
v_cmp_gt_u32 vcc, {E * 4}, v1
s_and_b64 s[30:31], s[30:31], vcc
v_lshlrev_b32 v2, 1, v1
s_waitcnt lgkmcnt(0)
s_mov_b64 exec, s[30:31]
s_cbranch_execz K1_S1
global_load_dwordx4 v[4:7], v1, s[12:13] {nt}
global_load_dwordx4 v[8:11], v1, s[10:11] {nt}
global_load_dwordx4 v[12:15], v2, s[8:9] {nt}
global_load_dwordx4 v[16:19], v2, s[8:9] offset:16 {nt}
K1_S1:
s_barrier
s_cbranch_execz K1_S2
s_movk_i32 s27, {-BS}
v_mov_b32 v60, 4
s_waitcnt vmcnt(3)
""")
    stamp(a, 1)
    for i in range(4):
        a(f"v_mul_u32_u24 v{36 + i}, 6, v{4 + i}")
        a(f"v_and_b32 v{36 + i}, -4, v{36 + i}")
        a(f"global_load_dwordx2 v[{20 + 2 * i}:{21 + 2 * i}], v{36 + i}, s[6:7]")
    a("s_waitcnt vmcnt(6)")
    for i in range(4):
        a(f"v_mul_u32_u24 v{40 + i}, 6, v{8 + i}")
        a(f"v_and_b32 v{40 + i}, -4, v{40 + i}")
        a(f"global_load_dwordx2 v[{28 + 2 * i}:{29 + 2 * i}], v{40 + i}, s[6:7]")
    for i in range(4):
        a(f"v_mul_u32_u24 v{44 + i}, 2675, v{4 + i}")
        a(f"v_lshrrev_b32 v{44 + i}, 18, v{44 + i}")
        a(f"v_mad_i32_i24 v{52 + i}, v{44 + i}, s27, v{4 + i}")
        a(f"v_lshlrev_b32 v{44 + i}, 2, v{44 + i}")
        a(f"ds_add_rtn_u32 v{48 + i}, v{44 + i}, v60 offset:{HIST}")
    for i in range(4):
        a(f"v_lshl_or_b32 v{36 + i}, v{8 + i}, 1, 1")
        a(f"v_lshlrev_b32 v{52 + i}, 25, v{52 + i}")
        a(f"v_lshl_or_b32 v{52 + i}, v{36 + i}, 7, v{52 + i}")
    a(f"""
K1_S2:
s_mov_b64 exec, -1
v_and_b32 v61, 63, v0
v_lshlrev_b32 v61, 4, v61
s_waitcnt lgkmcnt(0)
s_barrier
ds_read_b128 v[64:67], v61 offset:{HIST}
s_waitcnt lgkmcnt(0)
v_add_u32 v69, v64, v65
v_add_u32 v70, v69, v66
v_add_u32 v71, v70, v67
v_mov_b32 v72, v71
""")
    scan64(a, "v72")
    a(f"""
v_sub_u32 v68, v72, v71
v_add_u32 v71, v68, v70
v_add_u32 v70, v68, v69
v_add_u32 v69, v68, v64
ds_write_b128 v61, v[68:71] offset:{BASE}
s_cmp_lg_u32 s44, 7
s_cbranch_scc1 K1_S3
s_lshl_b32 s28, s2, 10
s_add_u32 s28, s28, {WS_OFF}
v_lshl_or_b32 v64, v64, 16, v68
v_lshl_or_b32 v65, v65, 16, v69
v_lshl_or_b32 v66, v66, 16, v70
v_lshl_or_b32 v67, v67, 16, v71
v_add_u32 v61, s28, v61
global_store_dwordx4 v61, v[64:67], s[24:25] {st1}
K1_S3:
s_mov_b64 exec, s[30:31]
s_cbranch_execz K1_S4
""")
    for i in range(4):
        a(f"ds_read_b32 v{44 + i}, v{44 + i} offset:{BASE}")
    a(f"""
s_mov_b32 s32, 0x05040100
s_mov_b32 s33, 0x07060302
s_mov_b32 s34, 0x3f80bf80
s_mov_b32 s35, {C_FWD:#x}
""")
    for i in range(4):
        a(f"v_lshlrev_b32 v{4 + i}, 4, v{4 + i}")
        a(f"v_lshlrev_b32 v{8 + i}, 4, v{8 + i}")
    a("s_waitcnt vmcnt(0)")
    stamp(a, 2)
    for i in range(4):
        d0, d1, s0, s1 = 20 + 2 * i, 21 + 2 * i, 28 + 2 * i, 29 + 2 * i
        a(f"v_alignbit_b32 v{d0}, v{d1}, v{d0}, v{4 + i}")
        a(f"v_lshrrev_b32 v{d1}, v{4 + i}, v{d1}")
        a(f"v_alignbit_b32 v{s0}, v{s1}, v{s0}, v{8 + i}")
        a(f"v_lshrrev_b32 v{s1}, v{8 + i}, v{s1}")
        a(f"v_perm_b32 v{d1}, v{d1}, v{s1}, s32")
        a(f"v_perm_b32 v{s1}, v{d0}, v{s0}, s32")
        a(f"v_perm_b32 v{d0}, v{d0}, v{s0}, s33")
    for i in range(4):
        d0, d1, s0, s1 = 20 + 2 * i, 21 + 2 * i, 28 + 2 * i, 29 + 2 * i
        a(f"v_dot2_f32_bf16 v{4 + i}, v{s1}, s34, 0")
        a(f"v_dot2_f32_bf16 v{8 + i}, v{d0}, s34, 0")
        a(f"v_dot2_f32_bf16 v{36 + i}, v{d1}, s34, 0")
    for i in range(4):
        a(f"v_cvt_pk_bf16_f32 v{57 + 2 * i + 8}, v{8 + i}, v{36 + i}")
        a(f"v_cvt_pk_bf16_f32 v{40 + i}, 0, v{4 + i}")
    for i in range(4):
        a(f"v_dot2_f32_bf16 v{20 + i}, v{65 + 2 * i}, v{65 + 2 * i}, 0")
    for i in range(4):
        a(f"v_dot2_f32_bf16 v{20 + i}, v{40 + i}, v{40 + i}, v{20 + i}")
    a("s_waitcnt lgkmcnt(0)")
    for i in range(4):
        a(f"v_add_u32 v{44 + i}, v{44 + i}, v{48 + i}")
    for i in range(4):
        a(f"v_mul_f32 v{20 + i}, s35, v{20 + i}")
        a(f"ds_write_b32 v{44 + i}, v{52 + i} offset:{KEYS}")
        a(f"v_lshlrev_b32 v{48 + i}, 2, v{44 + i}")
        a(f"v_add_u32 v{48 + i}, {PAY}, v{48 + i}")
        a(f"v_cvt_pk_bf16_f32 v{64 + 2 * i}, v{20 + i}, v{4 + i}")
        a(f"ds_write2_b64 v{48 + i}, v[{12 + 2 * i}:{13 + 2 * i}], v[{64 + 2 * i}:{65 + 2 * i}] offset0:0 offset1:1")
    a(f"""
K1_S4:
s_mov_b64 exec, -1
v_lshlrev_b32 v2, 4, v0
s_mul_i32 s28, s2, {CH * 16}
s_add_u32 s28, s28, {WS_PAY}
s_add_u32 s36, s24, s28
s_addc_u32 s37, s25, 0
s_add_u32 s38, s24, {WS_KEY}
s_addc_u32 s39, s25, 0
v_add_u32 v3, 8192, v2
v_add_u32 v24, 16384, v2
v_add_u32 v25, 24576, v2
s_waitcnt lgkmcnt(0)
s_barrier
ds_read_b128 v[4:7], v2 offset:{KEYS}
ds_read_b128 v[8:11], v2 offset:{PAY}
ds_read_b128 v[12:15], v2 offset:{PAY + 8192}
ds_read_b128 v[16:19], v2 offset:{PAY + 16384}
ds_read_b128 v[20:23], v2 offset:{PAY + 24576}
v_cmp_gt_u32 vcc, {CH // 4}, v0
s_waitcnt lgkmcnt(3)
global_store_dwordx4 v2, v[8:11], s[36:37] {st1}
s_waitcnt lgkmcnt(2)
global_store_dwordx4 v3, v[12:15], s[36:37] {st1}
s_waitcnt lgkmcnt(1)
global_store_dwordx4 v24, v[16:19], s[36:37] {st1}
s_mov_b64 exec, vcc
s_cbranch_execz K1_S5
global_store_dwordx4 v1, v[4:7], s[38:39] {st1}
v_cmp_gt_u32 vcc, {CH - 1536}, v0
s_mov_b64 exec, vcc
s_cbranch_execz K1_S5
s_waitcnt lgkmcnt(0)
global_store_dwordx4 v25, v[20:23], s[36:37] {st1}
K1_S5:
""")
    stamp(a, 3)
    stamps_out(a, 4, 0, "s44")
    a("s_endpgm")

    a(f"""
K1_GEMM:
s_cmp_ge_u32 s2, {256 + NG + 3}
s_cbranch_scc1 K1_END
s_sub_u32 s26, s2, 256
v_and_b32 v1, 63, v0
v_lshrrev_b32 v2, 4, v1
v_and_b32 v3, 15, v1
s_lshl_b32 s27, s44, 12
v_lshl_add_u32 v4, v2, 8, s27
v_lshlrev_b32 v5, 2, v2
v_xor_b32 v5, v5, v3
v_lshl_add_u32 v5, v5, 4, v4
s_mov_b32 m0, s27
s_waitcnt lgkmcnt(0)
s_cmp_ge_u32 s26, {NG + 1}
s_cselect_b32 s28, s18, s14
s_cselect_b32 s29, s19, s15
s_cmp_eq_u32 s26, {NG}
s_cselect_b32 s3, 0, 32768
s_cmp_eq_u32 s26, {NG + 1}
s_cselect_b32 s3, 0, s3
s_add_u32 s28, s28, s3
s_addc_u32 s29, s29, 0
s_mov_b32 s30, 32768
s_mov_b32 s31, 0x20000
""")
    for n in range(4):
        a(f"buffer_load_dwordx4 v5, s[28:31], 0 offen offset:{1024 * n} lds")
    a(f"""
v_bfe_u32 v8, v1, 2, 2
v_lshrrev_b32 v9, 5, v1
v_lshl_add_u32 v10, v9, 3, v8
v_lshlrev_b32 v10, 8, v10
v_and_b32 v11, 3, v1
v_lshl_add_u32 v10, v11, 3, v10
v_and_b32 v11, 16, v1
v_lshl_add_u32 v10, v11, 1, v10
s_cmp_ge_u32 s26, {NG}
s_cbranch_scc1 K1_PREP
s_mov_b32 s32, s4
s_mov_b32 s33, s5
s_mov_b32 s34, {N * 256}
s_mov_b32 s35, 0x20000
s_lshl_b32 s36, s26, 15
s_add_u32 s37, s27, 32768
s_mov_b32 m0, s37
v_xor_b32 v6, v2, v3
v_lshl_add_u32 v6, v6, 4, v4
v_add_u32 v6, s36, v6
""")
    for n in range(4):
        if n:
            a(f"v_xor_b32 v7, {64 * n}, v6")
        a(f"buffer_load_dwordx4 {'v7' if n else 'v6'}, s[32:35], 0 offen offset:{1024 * n} {nt} lds")
    HF, WF, AH, AL = 32, 64, 96, 112
    a(f"""
s_and_b32 s38, s44, 1
s_lshr_b32 s39, s44, 1
s_lshl_b32 s40, s38, 1
v_xor_b32 v11, s40, v8
v_lshl_add_u32 v12, v11, 6, v10
v_xor_b32 v13, 64, v12
v_and_b32 v14, 31, v1
v_xor_b32 v15, v9, v3
v_lshlrev_b32 v15, 4, v15
v_lshl_add_u32 v15, v14, 8, v15
s_lshl_b32 s41, s39, 13
s_add_u32 s42, s41, 32768
v_add_u32 v15, s42, v15
""")
    for k in range(1, 8):
        a(f"v_xor_b32 v{15 + k}, {32 * k}, v15")
    a(f"""
s_add_u32 s41, s41, s36
s_lshl_b32 s38, s38, 7
s_add_u32 s41, s41, s38
v_lshlrev_b32 v23, 10, v9
v_lshl_add_u32 v23, v14, 2, v23
v_add_u32 v23, s41, v23
s_add_u32 s46, s24, {WS_TAB + 4096}
s_addc_u32 s47, s25, 0
s_mov_b32 s48, {C_FWD:#x}
s_mov_b32 s49, s48
s_mov_b32 s50, 0x07060100
s_mov_b32 s51, 0x07060302
s_waitcnt vmcnt(0)
s_barrier
""")
    stamp(a, 1)
    for k in range(8):
        a(f"ds_read_b128 {v(HF + 4 * k, 4)}, v{15 + k}")
        a(f"ds_read_b64_tr_b16 {v(WF + 4 * k, 2)}, v12 offset:{4096 * k}")
        a(f"ds_read_b64_tr_b16 {v(WF + 4 * k + 2, 2)}, v12 offset:{4096 * k + 1024}")
        if k == 3:
            a("s_waitcnt lgkmcnt(9)")
    for k in range(8):
        if k == 0:
            a("s_waitcnt lgkmcnt(12)")
        if k == 4:
            a("s_waitcnt lgkmcnt(8)")
        a(f"v_mfma_f32_32x32x16_bf16 {v(AH, 16)}, {v(HF + 4 * k, 4)}, {v(WF + 4 * k, 4)}, {'0' if k == 0 else v(AH, 16)}")
        a(f"ds_read_b64_tr_b16 {v(WF + 4 * k, 2)}, v13 offset:{4096 * k}")
        a(f"ds_read_b64_tr_b16 {v(WF + 4 * k + 2, 2)}, v13 offset:{4096 * k + 1024}")
    for k in range(8):
        if k == 0:
            a("s_waitcnt lgkmcnt(8)")
        if k == 4:
            a("s_waitcnt lgkmcnt(0)")
        a(f"v_mfma_f32_32x32x16_bf16 {v(AL, 16)}, {v(HF + 4 * k, 4)}, {v(WF + 4 * k, 4)}, {'0' if k == 0 else v(AL, 16)}")
    a("s_nop 3")
    for r in range(0, 16, 2):
        a(f"v_pk_mul_f32 {v(AH + r, 2)}, {v(AH + r, 2)}, s[48:49]")
    for r in range(0, 16, 2):
        a(f"v_pk_mul_f32 {v(AL + r, 2)}, {v(AL + r, 2)}, s[48:49]")
        a(f"v_cvt_pk_bf16_f32 v{AL + r}, v{AL + r}, v{AL + r + 1}")
        a(f"v_perm_b32 v{AH + r}, v{AH + r}, v{AL + r}, s50")
        a(f"v_perm_b32 v{AH + r + 1}, v{AH + r + 1}, v{AL + r}, s51")
        for q in (r, r + 1):
            a(f"global_store_dword v23, v{AH + q}, s[46:47] offset:{(8 * (q >> 2) + (q & 3)) * 256 - 4096} {OPT['sttab']}")
    stamp(a, 2)
    stamp(a, 3)
    stamps_out(a, 4, 0, "s44")
    a(f"""
s_endpgm
K1_PREP:
s_and_b32 s38, s44, 3
s_lshr_b32 s39, s44, 2
v_xor_b32 v11, s38, v8
v_lshl_add_u32 v12, v11, 6, v10
s_lshl_b32 s40, s39, 14
v_add_u32 v12, s40, v12
s_sub_u32 s26, s26, {NG}
s_lshl_b32 s41, s26, 15
s_lshl_b32 s38, s38, 13
s_lshl_b32 s39, s39, 12
s_add_u32 s41, s41, s38
s_add_u32 s41, s41, s39
s_add_u32 s41, s41, {WS_W}
v_lshl_add_u32 v13, v1, 4, s41
s_waitcnt vmcnt(0)
s_barrier
""")
    for k in range(4):
        a(f"ds_read_b64_tr_b16 {v(WF + 4 * k, 2)}, v12 offset:{4096 * k}")
        a(f"ds_read_b64_tr_b16 {v(WF + 4 * k + 2, 2)}, v12 offset:{4096 * k + 1024}")
    a("s_waitcnt lgkmcnt(0)")
    for k in range(4):
        a(f"global_store_dwordx4 v13, {v(WF + 4 * k, 4)}, s[24:25] offset:{1024 * k}")
    a(f"""
v_lshrrev_b32 v2, 2, v0
v_and_b32 v3, 3, v0
v_lshrrev_b32 v4, 1, v2
v_lshlrev_b32 v5, 4, v2
v_mov_b32 v6, 0x3f80
v_lshlrev_b32 v6, v5, v6
v_cmp_eq_u32 vcc, v3, v4
v_lshlrev_b32 v7, 2, v0
v_add_u32 v7, {WS_PAY + PAY_OH}, v7
v_cndmask_b32 v6, 0, v6, vcc
v_cmp_gt_u32 vcc, 36, v0
s_mov_b64 exec, vcc
s_cbranch_execz K1_END
global_store_dword v7, v6, s[24:25]
K1_END:
s_endpgm
""")


MA, SB, POS, HIST, FLAG, BASE = 0, 28832, 47264, 48960, 49472, 49488
SRC, AUX, WX, AT, HR = 50176, 58624, 67072, 67328, 97536
K2_LDS = HR + 32768
CAP4 = 8192

Z, X, XC, S, EE, M = 28, 32, 36, 40, 48, 56
R0, R1, PH, PL, T, H1, WA, AD = 64, 80, 96, 112, 128, 192, 224, 240
vLANE, vAUXA, vSRCA, vSROW, vSRD, vWAB, vH264, vMB, vPB, vWXA, vONE = 1, 2, 3, 4, 5, 6, 7, 8, 9, 10, 11
vAUX, vXOFF, vSA0, vSA1 = 12, 13, 14, 15
t0, t1, t2, t3, t4, t5 = 16, 17, 18, 19, 20, 21
vREM, vKA, vWE, vWXD = 22, 23, 24, 25

sWAVE, sBIN, sN0, sDONE, sSPB, sTOT, sMORE, sINIT = 44, 45, 46, 47, 48, 49, 50, 51
sTILE, sEND, sDUM, sNBP, sNLP, sVAL2, sNB1, sNEW1, sVAL1, sNEW0, sNB0, sNBF = range(52, 64)
sGEMM, sREP, sNEW2, sMLO, sCNT = 72, 73, 74, 75, 76


def mf(d, aa, bb, c):
    cc = "0" if c is None else v(c, 16)
    return f"v_mfma_f32_32x32x16_bf16 {v(d, 16)}, {v(aa, 4)}, {v(bb, 4)}, {cc}"


def plan_a(tag):
    return [f"""
s_add_u32 s77, s{sNBP}, 8
s_cmp_ge_i32 s{sNLP}, s77
s_cselect_b32 s{sREP}, 1, 0
s_cselect_b32 s{sNBP}, s77, s{sNBP}
s_cselect_b32 s77, 0, 128
s_add_u32 s{sTILE}, s{sTILE}, s77
s_cmp_lt_u32 s{sTILE}, s{sEND}
s_cselect_b32 s{sVAL2}, 1, 0
s_cselect_b32 s77, s{sTILE}, s{sDUM}
v_add_u32 v{t0}, s77, v{vAUXA}
v_add_u32 v{t1}, s77, v{vSRCA}
ds_read_b32 v{vAUX}, v{t0} offset:{AUX}"""] + [
        f"ds_read_b128 {v(AD + 4 * q, 4)}, v{t1} offset:{SRC + 32 * q}" for q in range(4)]


def plan_b(tag):
    return [f"""
s_sub_u32 s77, s{sTOT}, s{sTILE}
s_lshr_b32 s77, s77, 2
s_sub_u32 s77, s77, 1
s_min_u32 s77, s77, 31
v_readlane_b32 s78, v{vAUX}, 0
v_readlane_b32 s79, v{vAUX}, s77
v_lshrrev_b32 v{t0}, 25, v{vAUX}
v_and_b32 v{t1}, 0x1ffffff, v{vAUX}
s_lshr_b32 s78, s78, 25
s_lshr_b32 s79, s79, 25
s_cmp_eq_u32 s{sVAL2}, 0
s_cselect_b32 s{sNLP}, -1, s79
s_add_u32 s77, s{sNBP}, 8
s_cmp_ge_i32 s{sNLP}, s77
s_cselect_b32 s{sNEW2}, 1, s{sREP}
s_cselect_b32 s78, s78, s{sNBP}
s_cmp_eq_u32 s{sREP}, 0
s_cselect_b32 s{sNBP}, s78, s{sNBP}
v_subrev_u32 v{t0}, s{sNBP}, v{t0}
v_min_u32 v{t0}, 8, v{t0}
s_mov_b32 s77, {PAY_OH}
v_lshl_add_u32 v{t2}, v{t0}, 4, s77
v_mov_b32 v{vSA0}, v{vSA1}
v_lshl_add_u32 v{vSA1}, v{t0}, 3, v{vSROW}
v_cndmask_b32 v{vXOFF}, v{t1}, v{t2}, s[64:65]"""] + (
        [f"v_min_u32 v{AD + r}, {N * 256 + 128}, v{AD + r}" for r in range(16)] if OPT["safe"] else [])


def rotate():
    return [f"""
s_mov_b32 s{sNEW0}, s{sNEW1}
s_mov_b32 s{sNB0}, s{sNB1}
s_mov_b32 s{sNEW1}, s{sNEW2}
s_mov_b32 s{sNB1}, s{sNBP}"""]


def ld_x():
    return [f"global_load_dwordx4 {v(X, 4)}, v{vXOFF}, s[40:41]"]


def ld_r(half):
    R = R1 if half else R0
    return [f"buffer_load_dword v{R + r}, v{AD + r}, s[28:31], 0 offen" + (" offset:128" if half else "")
            for r in range(16)]


def wa_reads(nb):
    out = [f"v_mad_u32_u24 v{t3}, v{vH264}, s{nb}, v{vWAB}"]
    for t in range(4):
        for q in range(2):
            out.append(f"ds_read_b64_tr_b16 {v(WA + 4 * t + 2 * q, 2)}, v{t3} offset:{64 * t + 1056 * q}")
    return out


def batch(P, b, in_exp=(), in_rcp=()):
    in_exp, in_rcp = dict(in_exp), dict(in_rcp)
    o = []
    for i in range(8):
        o += in_exp.get(i, [])
        o.append(f"v_exp_f32 v{EE + i}, v{P + 8 * b + i}")
    o += in_exp.get(8, [])
    for i in range(0, 8, 2):
        o.append(f"v_pk_add_f32 {v(EE + i, 2)}, {v(EE + i, 2)}, 1.0 op_sel_hi:[1,0]")
    for i in range(8):
        o += in_rcp.get(i, [])
        o.append(f"v_rcp_f32 v{EE + i}, v{EE + i}")
    o += in_rcp.get(8, [])
    for i in range(0, 8, 2):
        o.append(f"v_pk_mul_f32 {v(EE + i, 2)}, {v(P + 8 * b + i, 2)}, {v(EE + i, 2)}")
    for i in range(4):
        o.append(f"v_cvt_pk_bf16_f32 v{M + 4 * b + i}, v{EE + 2 * i}, v{EE + 2 * i + 1}")
    return o


def seg(t, k):
    return mf(T + 16 * t, M + 4 * k, S + 4 * k, T + 16 * t)


def spread(lst, first=0):
    e, r = {}, {}
    for n, x in enumerate(lst):
        n += first
        if n < 9:
            e.setdefault(n, []).append(x)
        else:
            r.setdefault(min(n - 8, 8), []).append(x)
    return e, r


def k2(a):
    nt = OPT["ldnt"]
    a(".p2align 8\nk2_kernel:")
    stamp(a, 0)
    a(f"""
s_cmp_ge_u32 s2, 256
s_cbranch_scc1 K2_END
s_load_dwordx16 s[4:19], s[0:1], 0
s_load_dwordx2 s[20:21], s[0:1], 64
s_load_dwordx2 s[24:25], s[0:1], 80
v_lshrrev_b32 v{t0}, 6, v0
v_and_b32 v{vLANE}, 63, v0
v_readfirstlane_b32 s{sWAVE}, v{t0}
s_and_b32 s{sBIN}, s2, 7
s_lshl_b32 s{sBIN}, s{sBIN}, 5
s_lshr_b32 s3, s2, 3
s_add_u32 s{sBIN}, s{sBIN}, s3
s_mul_i32 s{sN0}, s{sBIN}, {BS}
s_mov_b32 s{sDONE}, 0
s_movk_i32 s{sSPB}, 128
s_mov_b32 s{sINIT}, 0
s_mov_b32 s{sGEMM}, 0
s_waitcnt lgkmcnt(0)
K2_BATCH:
s_lshl_b32 s3, s{sBIN}, 2
s_add_u32 s3, s3, {WS_OFF}
v_lshrrev_b32 v{vKA}, 1, v0
v_lshl_add_u32 v{t0}, v{vKA}, 10, s3
global_load_dword v{vREM}, v{t0}, s[24:25]
s_cmp_lg_u32 s{sINIT}, 0
s_cbranch_scc1 K2_B1
""")
    a(f"""
s_and_b32 s77, s{sWAVE}, 3
s_lshl_b32 s77, s77, 13
s_add_u32 s77, s77, {WS_W + 4096}
v_lshl_add_u32 v{t4}, v{vLANE}, 4, s77
""")
    for k in range(8):
        a(f"global_load_dwordx4 {v(T + 4 * k, 4)}, v{t4}, s[24:25] offset:{1024 * k - 4096}")
    a(f"""
s_add_u32 s77, s{sN0}, {BS}
s_min_u32 s77, s77, {N}
s_lshl_b32 s34, s77, 8
s_mov_b32 s32, s4
s_mov_b32 s33, s5
s_mov_b32 s35, 0x20000
s_mov_b32 s36, s20
s_mov_b32 s37, s21
s_mov_b32 s38, s34
s_mov_b32 s39, 0x20000
s_lshl_b32 s77, s{sWAVE}, 12
s_add_u32 s78, s77, {HR}
s_mov_b32 m0, s78
s_lshl_b32 s78, s{sN0}, 8
s_add_u32 s77, s77, s78
v_lshrrev_b32 v{t0}, 4, v{vLANE}
v_and_b32 v{t1}, 15, v{vLANE}
v_xor_b32 v{t1}, v{t0}, v{t1}
v_lshlrev_b32 v{t1}, 4, v{t1}
v_lshl_add_u32 v{t1}, v{t0}, 8, v{t1}
v_add_u32 v{t1}, s77, v{t1}
""")
    for n in range(4):
        if n:
            a(f"v_xor_b32 v{t2}, {64 * n}, v{t1}")
        a(f"buffer_load_dwordx4 v{t2 if n else t1}, s[32:35], 0 offen offset:{1024 * n} lds")
    a(f"""
s_add_u32 s77, s{sWAVE}, 257
s_cmp_lt_u32 s{sWAVE}, 4
s_cselect_b32 s77, s77, 256
s_lshl_b32 s77, s77, 8
v_lshlrev_b32 v{t0}, 2, v{vLANE}
v_add_u32 v{t1}, s77, v{t0}
global_load_dword v{vWE}, v{t1}, s[14:15]
global_load_dword v{vWXD}, v{t0}, s[16:17]
""")
    for i in range(4):
        a(f"v_mov_b32 v{Z + i}, 0")
    a(f"v_lshlrev_b32 v{t0}, 4, v0")
    for i in range(7):
        a(f"ds_write_b128 v{t0}, {v(Z, 4)} offset:{8192 * i}")
    a(f"""
s_add_u32 s28, s24, {WS_TAB - 128}
s_addc_u32 s29, s25, 0
s_and_b32 s29, s29, 0xffff
s_or_b32 s29, s29, 0x40000
s_mov_b32 s30, 64
s_mov_b32 s31, 0x800000
s_add_u32 s40, s24, {WS_PAY}
s_addc_u32 s41, s25, 0
s_add_u32 s42, s24, {WS_KEY}
s_addc_u32 s43, s25, 0
s_mov_b32 s64, 0
s_mov_b32 s65, -1
s_mov_b32 s68, {C_FWD:#x}
s_mov_b32 s69, s68
s_mov_b32 s70, {C_INV:#x}
s_mov_b32 s71, s70
s_mov_b32 s{sMLO}, 0xffff
v_mov_b32 v{vONE}, 0x3f80
v_and_b32 v{t0}, 31, v{vLANE}
v_lshrrev_b32 v{t1}, 5, v{vLANE}
v_lshlrev_b32 v{vAUXA}, 2, v{t0}
v_lshlrev_b32 v{vSRCA}, 4, v{t1}
s_mul_i32 s77, s{sWAVE}, 2304
s_add_u32 s77, s77, {SB}
v_mul_u32_u24 v{t2}, 72, v{t0}
v_add_u32 v{t2}, s77, v{t2}
v_mov_b32 v{t5}, {OOB}
v_cndmask_b32 v{vSROW}, v{t2}, v{t5}, s[64:65]
v_add_u32 v{t2}, {POS}, v{vAUXA}
v_cndmask_b32 v{vPB}, v{t2}, v{t5}, s[64:65]
v_bfe_u32 v{t2}, v{vLANE}, 2, 2
v_and_b32 v{t3}, 3, v{vLANE}
v_cmp_eq_u32 vcc, 0, v{t3}
v_lshlrev_b32 v{t3}, 3, v{t3}
v_and_b32 v{vSRD}, 16, v{vLANE}
v_lshl_add_u32 v{t3}, v{vSRD}, 1, v{t3}
v_lshl_add_u32 v{vSRD}, v{t1}, 2, v{t2}
v_mul_u32_u24 v{vSRD}, 72, v{vSRD}
v_add3_u32 v{vSRD}, v{vSRD}, v{t3}, s77
v_lshl_add_u32 v{vWAB}, v{t1}, 3, v{t2}
v_mul_u32_u24 v{vWAB}, 264, v{vWAB}
s_mov_b32 s77, {AT}
v_add3_u32 v{vWAB}, v{vWAB}, v{t3}, s77
v_mul_u32_u24 v{vH264}, 264, v{t1}
v_lshrrev_b32 v{t2}, 2, v{t0}
v_mul_u32_u24 v{t2}, 272, v{t2}
v_lshl_add_u32 v{t2}, v{t1}, 3, v{t2}
v_cndmask_b32 v{vMB}, v{t5}, v{t2}, vcc
v_lshlrev_b32 v{vWXA}, 3, v{t1}
v_add_u32 v{vWXA}, {WX}, v{vWXA}
s_waitcnt vmcnt(14)
s_branch K2_B2
K2_B1:
s_waitcnt vmcnt(0)
K2_B2:
""")
    stamp(a, 1)
    a(f"""
v_mul_u32_u24 v{vKA}, {CH * 4}, v{vKA}
v_and_b32 v{t0}, 0xffff, v{vREM}
v_lshrrev_b32 v{vREM}, 16, v{vREM}
v_and_b32 v{t1}, 1, v0
v_lshlrev_b32 v{t1}, 4, v{t1}
v_subrev_u32 v{vREM}, s{sDONE}, v{vREM}
v_add3_u32 v{vKA}, v{vKA}, v{t0}, v{t1}
v_add_u32 v{vKA}, s{sDONE}, v{vKA}
v_cmp_lt_i32 s[26:27], s{sSPB}, v{vREM}
v_min_i32 v{vREM}, s{sSPB}, v{vREM}
v_sub_u32 v{vREM}, v{vREM}, v{t1}
""")
    for k in range(4):
        a(f"v_cmp_lt_i32 vcc, {32 * k}, v{vREM}")
        a("s_mov_b64 exec, vcc")
        a("s_cbranch_execz K2_B3")
        a(f"global_load_dwordx4 {v(R0 + 4 * k, 4)}, v{vKA}, s[42:43] offset:{32 * k}")
    a(f"""
K2_B3:
s_mov_b64 exec, -1
s_cmp_lg_u32 s{sINIT}, 0
s_cbranch_scc1 K2_B4
v_add_u32 v{t4}, 32768, v{t4}
""")
    for k in range(8):
        a(f"global_load_dwordx4 {v(T + 32 + 4 * k, 4)}, v{t4}, s[24:25] offset:{1024 * k - 4096}")
    a(f"""
s_mov_b32 s{sINIT}, 1
s_waitcnt lgkmcnt(0)
s_barrier
s_waitcnt vmcnt(8)
s_branch K2_B5
K2_B4:
s_waitcnt vmcnt(0)
K2_B5:
""")
    stamp(a, 2)
    a(f"""
v_mov_b32 v{t1}, 4
s_cmp_eq_u64 s[26:27], 0
s_cbranch_scc1 K2_B6
ds_write_b32 v{Z}, v{t1} offset:{FLAG}
K2_B6:
""")
    for k in range(4):
        for i in range(4):
            j = 4 * k + i
            a(f"v_cmp_lt_i32 vcc, {32 * k + 4 * i}, v{vREM}")
            a("s_mov_b64 exec, vcc")
            a("s_cbranch_execz K2_B7")
            if i == 0:
                for q in range(4):
                    a(f"v_lshrrev_b32 v{PH + j + q}, 23, v{R0 + j + q}")
            a(f"ds_add_rtn_u32 v{R1 + j}, v{PH + j}, v{t1} offset:{HIST}")
    a(f"""
K2_B7:
s_mov_b64 exec, -1
v_lshlrev_b32 v{t0}, 3, v{vLANE}
s_waitcnt lgkmcnt(0)
s_barrier
ds_read_b64 {v(t2, 2)}, v{t0} offset:{HIST}
ds_read_b32 v{t1}, v{Z} offset:{FLAG}
s_waitcnt lgkmcnt(0)
v_add_u32 v{t3}, v{t2}, v{t3}
v_readfirstlane_b32 s{sMORE}, v{t1}
v_mov_b32 v{t5}, v{t3}
""")
    scan64(a, f"v{t5}")
    a(f"""
s_nop 0
v_readlane_b32 s{sTOT}, v{t5}, 63
v_sub_u32 v{X}, v{t5}, v{t3}
v_add_u32 v{X + 1}, v{X}, v{t2}
ds_write_b64 v{t0}, {v(X, 2)} offset:{BASE}
s_cmp_gt_u32 s{sTOT}, {CAP4}
s_cbranch_scc0 K2_B8
s_mov_b32 s{sSPB}, 32
s_branch K2_AGAIN
K2_B8:
s_cmp_lg_u32 s{sWAVE}, 7
s_cbranch_scc1 K2_B9
v_lshl_add_u32 v{t0}, v{vLANE}, 2, s{sTOT}
v_mov_b32 v{t1}, {N * 256 + 128}
v_mov_b32 v{t2}, {(127 << 25) | (PAY_OH + 128):#x}
ds_write2st64_b32 v{t0}, v{t1}, v{t2} offset0:{SRC // 256} offset1:{AUX // 256}
K2_B9:
v_lshlrev_b32 v{vKA}, 2, v{vKA}
s_mov_b32 s77, 0x7fffff
s_mov_b32 s78, 0xfe000000
""")
    for k in range(4):
        a(f"v_cmp_lt_i32 vcc, {32 * k}, v{vREM}")
        a("s_mov_b64 exec, vcc")
        a("s_cbranch_execz K2_B10")
        for i in range(4):
            a(f"ds_read_b32 v{PH + 4 * k + i}, v{PH + 4 * k + i} offset:{BASE}")
        for i in range(4):
            j = 4 * k + i
            if i:
                a(f"v_cmp_lt_i32 vcc, {32 * k + 4 * i}, v{vREM}")
                a("s_mov_b64 exec, vcc")
                a("s_cbranch_execz K2_B10")
            a(f"v_add_u32 v{t1}, {128 * k + 16 * i}, v{vKA}")
            a(f"v_and_or_b32 v{t1}, v{R0 + j}, s78, v{t1}")
            if i == 0:
                a("s_waitcnt lgkmcnt(0)")
            a(f"v_add_u32 v{t0}, v{PH + j}, v{R1 + j}")
            a(f"v_and_b32 v{t2}, 16, v{t0}")
            a(f"v_lshlrev_b32 v{t2}, 3, v{t2}")
            a(f"v_bitop3_b32 v{t2}, v{R0 + j}, s77, v{t2} bitop3:0x6a")
            a(f"ds_write2st64_b32 v{t0}, v{t2}, v{t1} offset0:{SRC // 256} offset1:{AUX // 256}")
    a(f"""
K2_B10:
s_mov_b64 exec, -1
s_add_u32 s77, s{sTOT}, 127
s_lshr_b32 s77, s77, 7
s_lshl_b32 s{sDUM}, s77, 7
s_lshr_b32 s78, s77, 3
s_and_b32 s77, s77, 7
s_mul_i32 s{sTILE}, s78, s{sWAVE}
s_min_u32 s79, s77, s{sWAVE}
s_add_u32 s{sTILE}, s{sTILE}, s79
s_cmp_lt_u32 s{sWAVE}, s77
s_addc_u32 s{sCNT}, s78, 0
s_add_u32 s{sEND}, s{sTILE}, s{sCNT}
s_lshl_b32 s{sEND}, s{sEND}, 7
s_lshl_b32 s{sTILE}, s{sTILE}, 7
s_sub_u32 s{sTILE}, s{sTILE}, 128
s_mov_b32 s{sNBP}, -8
s_mov_b32 s{sNLP}, -1
s_waitcnt lgkmcnt(0)
s_barrier
""")
    stamp(a, 3)
    a.ext(plan_a("p0"))
    a("s_waitcnt lgkmcnt(0)")
    a.ext(plan_b("p0"))
    a.ext(ld_x() + ld_r(0) + ld_r(1))
    a.ext(rotate())
    a.ext(plan_a("p1"))
    a("s_waitcnt lgkmcnt(0)")
    a.ext(plan_b("p1"))
    a.ext(rotate())
    a(f"""
s_mov_b32 s{sVAL1}, s{sVAL2}
s_mov_b32 s{sNBF}, s{sNB0}
s_mov_b32 s{sNEW0}, 0
s_cmp_lg_u32 s{sGEMM}, 0
s_cbranch_scc1 K2_G9
s_mov_b32 s{sGEMM}, 1
s_cmp_lt_u32 s{sWAVE}, 4
s_cselect_b32 s77, s68, 1.0
s_cmp_lt_u32 s{sWAVE}, 5
s_cselect_b32 s77, s77, 0
s_mul_i32 s78, s{sWAVE}, 264
s_add_u32 s78, s78, {AT}
v_lshlrev_b32 v{t0}, 16, v{vWE}
v_and_b32 v{t1}, 0xffff0000, v{vWE}
v_mul_f32 v{t0}, s77, v{t0}
v_mul_f32 v{t1}, s77, v{t1}
v_cvt_pk_bf16_f32 v{t0}, v{t0}, v{t1}
v_lshl_add_u32 v{t1}, v{vLANE}, 2, s78
ds_write_b32 v{t1}, v{t0}
s_mov_b32 s78, {WX}
v_lshl_add_u32 v{t1}, v{vLANE}, 2, s78
ds_write_b32 v{t1}, v{vWXD}
v_and_b32 v{t0}, 31, v{vLANE}
v_lshrrev_b32 v{t1}, 5, v{vLANE}
v_and_b32 v{t2}, 15, v{vLANE}
v_xor_b32 v{t2}, v{t1}, v{t2}
v_lshlrev_b32 v{t2}, 4, v{t2}
v_lshl_add_u32 v{t2}, v{t0}, 8, v{t2}
s_lshr_b32 s77, s{sWAVE}, 2
s_lshl_b32 s78, s77, 14
s_add_u32 s78, s78, {HR}
v_add_u32 v{EE}, s78, v{t2}
""")
    for k in range(1, 8):
        a(f"v_xor_b32 v{EE + k}, {32 * k}, v{EE}")
    a(f"""
s_mul_i32 s78, s77, {64 * 264}
s_and_b32 s79, s{sWAVE}, 3
s_lshl_b32 s79, s79, 6
s_add_u32 s78, s78, s79
s_add_u32 s78, s78, {AT + 8 * 264}
v_mul_u32_u24 v{t3}, 264, v{t0}
v_lshl_add_u32 v{t3}, v{t1}, 3, v{t3}
v_add_u32 v{t3}, s78, v{t3}
s_cmp_eq_u32 s77, 0
s_cselect_b32 s77, 32, 10
v_cmp_gt_u32 vcc, s77, v{t0}
v_mov_b32 v{t5}, {OOB}
v_add_u32 v{t4}, {32 * 264}, v{t3}
v_cndmask_b32 v{t4}, v{t5}, v{t4}, vcc
s_waitcnt vmcnt(33)
""")
    for m in range(2):
        for k in range(8):
            a(f"ds_read_b128 {v(PH + 4 * k, 4)}, v{EE + k} offset:{8192 * m}")
        for k in range(8):
            a(f"s_waitcnt lgkmcnt({7 - k})")
            a(mf(WA, T + 4 * k, PH + 4 * k, None if k == 0 else WA))
        for k in range(8):
            a(mf(H1 + 16 * m, PH + 4 * k, T + 32 + 4 * k, None if k == 0 else H1 + 16 * m))
        a("s_nop 3")
        for r in range(0, 16, 2):
            a(f"v_pk_mul_f32 {v(WA + r, 2)}, {v(WA + r, 2)}, s[68:69]")
        for i in range(8):
            a(f"v_cvt_pk_bf16_f32 v{M + i}, v{WA + 2 * i}, v{WA + 2 * i + 1}")
        for q in range(4):
            a(f"ds_write_b64 v{t4 if m else t3}, {v(M + 2 * q, 2)} offset:{16 * q}")
    for r in range(0, 32, 2):
        a(f"v_pk_mul_f32 {v(H1 + r, 2)}, {v(H1 + r, 2)}, s[68:69]")
    for t in range(4):
        a(mf(T + 16 * t, Z, Z, None))
    a(f"""
s_waitcnt lgkmcnt(0)
s_barrier
K2_G9:
""")
    stamp(a, 4)
    a(f"""
s_cmp_eq_u32 s{sCNT}, 0
s_cbranch_scc1 K2_DONE
""")
    a.ext(wa_reads(sNB0))
    for i in range(0, 8, 2):
        a(f"v_mov_b64 {v(S + i, 2)}, 0")
        a(f"v_mov_b64 {v(M + i, 2)}, 0")
    a("s_waitcnt vmcnt(16) lgkmcnt(0)")
    stamp(a, 5)
    a(f"v_mov_b64 {v(XC, 2)}, {v(X, 2)}\nv_mov_b64 {v(XC + 2, 2)}, {v(X + 2, 2)}\ns_nop 1")
    a(mf(PH, XC, WA, R0))

    a("K2_LOOP:")
    a(seg(3, 0))
    for r in range(8):
        a(f"v_lshlrev_b32 v{PL + r}, 16, v{R0 + r}")
    a(seg(3, 1))
    for r in range(8, 16):
        a(f"v_lshlrev_b32 v{PL + r}, 16, v{R0 + r}")
    a(f"v_bfi_b32 v{t0}, s{sMLO}, v{vONE}, v{XC + 2}")
    a(f"ds_write2_b32 v{vSA0}, v{t0}, v{XC + 3} offset0:0 offset1:1")
    a(mf(PL, XC, WA + 4, PL))
    e, r = spread(ld_x() + ld_r(0))
    a.ext(batch(PH, 0, e, r))
    sr = [f"ds_read_b64_tr_b16 {v(S + 2 * q, 2)}, v{vSRD} offset:{576 * q}" for q in range(4)]
    sr.append(f"ds_write_b64 v{vSA0}, {v(Z, 2)}")
    e, r = spread(sr, 1)
    a.ext(batch(PH, 1, e, r))
    a(f"""
s_cmp_eq_u32 s{sNEW0}, 0
s_cbranch_scc1 K2_L1
s_call_b64 s[66:67], K2_FLUSH
s_mov_b32 s{sNBF}, s{sNB0}
K2_L1:
s_waitcnt lgkmcnt(0)
""")
    a.ext(batch(PL, 0, {0: [seg(0, 0)], 4: [seg(0, 1)]},
                {0: ["s_waitcnt vmcnt(17)", mf(PH, XC, WA + 8, R1)]}))
    a.ext(batch(PL, 1))
    a(seg(1, 0))
    for r in range(8):
        a(f"v_lshlrev_b32 v{PL + r}, 16, v{R1 + r}")
    a(seg(1, 1))
    for r in range(8, 16):
        a(f"v_lshlrev_b32 v{PL + r}, 16, v{R1 + r}")
    e, r = spread(ld_r(1), 1)
    e.setdefault(2, []).insert(0, mf(PL, XC, WA + 12, PL))
    a.ext(batch(PH, 0, e, r))
    a.ext(plan_a("l"))
    a(f"s_cmp_eq_u32 s{sNEW1}, 0\ns_cbranch_scc1 K2_L2")
    a.ext(wa_reads(sNB1))
    a("K2_L2:")
    a.ext(batch(PH, 1))
    a.ext(batch(PL, 0, {0: [seg(2, 0)], 4: [seg(2, 1)],
                        8: ["s_waitcnt vmcnt(16) lgkmcnt(0)", f"v_mov_b64 {v(XC, 2)}, {v(X, 2)}",
                            f"v_mov_b64 {v(XC + 2, 2)}, {v(X + 2, 2)}"]},
                {0: [mf(PH, XC, WA, R0)]}))
    a.ext(plan_b("l"))
    a.ext(rotate())
    a.ext(batch(PL, 1))
    a(f"""
s_cmp_lg_u32 s{sVAL1}, 0
s_mov_b32 s{sVAL1}, s{sVAL2}
s_cbranch_scc1 K2_LOOP
""")
    a(seg(3, 0))
    a(seg(3, 1))
    a("s_call_b64 s[66:67], K2_FLUSH")
    a(f"""
K2_DONE:
""")
    stamp(a, 6)
    a(f"""
s_cmp_eq_u32 s{sMORE}, 0
s_cbranch_scc1 K2_FINAL
s_add_u32 s{sDONE}, s{sDONE}, s{sSPB}
K2_AGAIN:
s_waitcnt vmcnt(0) lgkmcnt(0)
s_barrier
v_lshlrev_b32 v{t0}, 3, v{vLANE}
ds_write_b64 v{t0}, {v(Z, 2)} offset:{HIST}
ds_write_b32 v{Z}, v{Z} offset:{FLAG}
s_waitcnt lgkmcnt(0)
s_barrier
s_branch K2_BATCH
""")
    a(f"""
K2_FLUSH:
s_mul_i32 s77, s{sNBF}, 272
s_lshl_b32 s78, s{sNBF}, 4
v_add_u32 v{t4}, s77, v{vMB}
v_add_u32 v{t5}, s78, v{vPB}
""")
    for t in range(4):
        for i in range(8):
            a(f"v_cvt_pk_bf16_f32 v{T + 16 * t + i}, v{T + 16 * t + 2 * i}, v{T + 16 * t + 2 * i + 1}")
        for k in range(2):
            o = (64 * t + 32 * k) // 8
            a(f"ds_read2_b64 {v(T + 16 * t + 8 + 4 * k, 4)}, v{vWXA} offset0:{o} offset1:{o + 2}")
    a("s_waitcnt lgkmcnt(0)")
    for t in range(4):
        for k in range(2):
            a(mf(PH, T + 16 * t + 8 + 4 * k, T + 16 * t + 4 * k, None if t + k == 0 else PH))
            for i in range(4 * k, 4 * k + 4):
                a(f"ds_pk_add_bf16 v{t4}, v{T + 16 * t + i} offset:{MA + 64 * t + 16 * (i >> 1) + 4 * (i & 1)}")
    for t in range(4):
        a(mf(T + 16 * t, Z, Z, None))
    a("s_nop 3")
    a(f"ds_add_f32 v{t5}, v{PH}")
    a("s_setpc_b64 s[66:67]")

    HRS = T
    a(f"""
K2_FINAL:
s_and_b32 s77, s{sWAVE}, 3
s_lshr_b32 s79, s{sWAVE}, 2
s_lshl_b32 s78, s77, 13
s_add_u32 s78, s78, {WS_W + 65536 + 4096}
v_lshl_add_u32 v{t4}, v{vLANE}, 4, s78
""")
    for k in range(8):
        a(f"global_load_dwordx4 {v(R0 + 4 * k, 4)}, v{t4}, s[24:25] offset:{1024 * k - 4096}")
    a(f"""
s_lshl_b32 s78, s79, 6
s_add_u32 s78, s78, s{sN0}
s_lshl_b32 s78, s78, 8
s_lshl_b32 s77, s77, 6
s_add_u32 s78, s78, s77
v_and_b32 v{t0}, 31, v{vLANE}
v_lshrrev_b32 v{t1}, 5, v{vLANE}
v_lshlrev_b32 v{t2}, 10, v{t1}
v_lshl_add_u32 v{t2}, v{t0}, 1, v{t2}
v_add_u32 v{AD}, s78, v{t2}
v_add_u32 v{AD + 1}, 4096, v{AD}
v_add_u32 v{AD + 2}, 8192, v{AD}
v_add_u32 v{AD + 3}, 12288, v{AD}
v_mul_u32_u24 v{t2}, 272, v{t0}
v_lshl_add_u32 v{t2}, v{t1}, 4, v{t2}
s_mul_i32 s78, s79, {64 * 272}
v_add_u32 v{AD + 4}, s78, v{t2}
s_mul_i32 s78, s{sN0}, 6
v_lshl_add_u32 v{AD + 5}, v0, 1, s78
v_mul_u32_u24 v{t2}, 171, v0
v_lshrrev_b32 v{t2}, 9, v{t2}
v_add_lshl_u32 v{AD + 6}, v{t2}, v0, 2
v_cmp_gt_u32 vcc, {3 * BS}, v0
v_mov_b32 v{t0}, {N * 6}
s_mov_b32 s8, s6
v_cndmask_b32 v{AD + 5}, v{t0}, v{AD + 5}, vcc
s_mov_b32 s9, s7
s_mov_b32 s10, {N * 6}
s_mov_b32 s11, 0x20000
s_add_u32 s12, s20, {N * 256}
s_addc_u32 s13, s21, 0
s_mov_b32 s14, {N * 6}
s_mov_b32 s15, 0x20000
buffer_load_short_d16_hi v{AD + 7}, v{AD + 5}, s[8:11], 0 offen
""")

    def roff(r):
        return (8 * ((r >> 2) & 1) + (r & 3)) * 256

    for m in range(2):
        for r in range(16):
            a(f"buffer_load_short_d16_hi v{HRS + 16 * m + r}, v{AD + 2 * m + (r >> 3)}, s[32:35], 0 offen offset:{roff(r)}")
    a("s_waitcnt lgkmcnt(0)\ns_barrier")
    stamp(a, 7)
    a(f"ds_read_b32 v{AD + 8}, v{AD + 6} offset:{POS + 4}")
    for k in range(8):
        a(f"ds_read_b128 {v(PH + 4 * k, 4)}, v{AD + 4} offset:{MA + 32 * k}")
    for k in range(8):
        a(f"ds_read_b128 {v(T + 32 + 4 * k, 4)}, v{AD + 4} offset:{MA + 32 * 272 + 32 * k}")
        if k == 3:
            a("s_waitcnt lgkmcnt(8)")
    a("s_waitcnt vmcnt(32) lgkmcnt(8)")
    for k in range(8):
        a(mf(H1, PH + 4 * k, R0 + 4 * k, H1))
    a(f"v_fma_f32 v{AD + 7}, v{AD + 8}, s70, v{AD + 7}")
    a(f"v_cvt_pk_bf16_f32 v{AD + 7}, v{AD + 7}, v{AD + 7}")
    a("s_waitcnt lgkmcnt(0)")
    for k in range(8):
        a(mf(H1 + 16, T + 32 + 4 * k, R0 + 4 * k, H1 + 16))
    a("s_waitcnt vmcnt(0)")
    a(f"buffer_store_short v{AD + 7}, v{AD + 5}, s[12:15], 0 offen")

    def fin(m, lo, n):
        P, Hh = H1 + 16 * m + lo, HRS + 16 * m + lo
        for i in range(n):
            a(f"v_exp_f32 v{EE + i}, v{P + i}")
        if n == 2:
            a("s_nop 0")
        for i in range(0, n, 2):
            a(f"v_pk_add_f32 {v(EE + i, 2)}, {v(EE + i, 2)}, 1.0 op_sel_hi:[1,0]")
        for i in range(n):
            a(f"v_rcp_f32 v{EE + i}, v{EE + i}")
        if n == 2:
            a("s_nop 0")
        for i in range(0, n, 2):
            a(f"v_pk_mul_f32 {v(EE + i, 2)}, {v(P + i, 2)}, {v(EE + i, 2)}")
        for i in range(0, n, 2):
            a(f"v_pk_fma_f32 {v(EE + i, 2)}, {v(EE + i, 2)}, s[70:71], {v(Hh + i, 2)}")
        for i in range(0, n, 2):
            r = lo + i
            a(f"v_cvt_pk_bf16_f32 v{P + i}, v{EE + i}, v{EE + i + 1}")
            a(f"buffer_store_short v{P + i}, v{AD + 2 * m + (r >> 3)}, s[36:39], 0 offen offset:{roff(r)}")
            a(f"buffer_store_short_d16_hi v{P + i}, v{AD + 2 * m + (r >> 3)}, s[36:39], 0 offen offset:{roff(r + 1)}")

    a("s_nop 1")
    fin(0, 0, 8)
    fin(0, 8, 8)
    fin(1, 0, 2)
    a("s_cmp_lg_u32 s79, 0\ns_cbranch_scc1 K2_F9")
    fin(1, 2, 6)
    fin(1, 8, 8)
    a("K2_F9:")
    stamp(a, 8)
    stamps_out(a, 9, 0x40000, f"s{sWAVE}")
    a("K2_END:\ns_endpgm")


def kd(name, vgpr, sgpr):
    return f""".amdhsa_kernel {name}
  .amdhsa_next_free_vgpr {vgpr}
  .amdhsa_next_free_sgpr {sgpr}
  .amdhsa_accum_offset {vgpr}
  .amdhsa_group_segment_fixed_size 0
  .amdhsa_kernarg_size 88
  .amdhsa_user_sgpr_count 2
  .amdhsa_user_sgpr_kernarg_segment_ptr 1
  .amdhsa_system_sgpr_workgroup_id_x 1
.end_amdhsa_kernel
"""


def build(**opt):
    OPT.update(opt)
    here = os.path.dirname(os.path.abspath(__file__))
    ref = open(os.path.join(here, "header.txt")).read()
    a1, a2 = Asm(), Asm()
    k1(a1)
    k2(a2)
    probs = check(a1.lines) + check(a2.lines)
    for p in probs:
        print("HAZARD", p, file=sys.stderr)
    txt = ref
    txt += f"; @launch kernel=k1_kernel grid=({256 + NG + 3},1,1) block=(512,1,1) lds=65536\n"
    txt += f"; @launch kernel=k2_kernel grid=(256,1,1) block=(512,1,1) lds={K2_LDS}\n"
    txt += '.amdgcn_target "amdgcn-amd-amdhsa--gfx950"\n.text\n'
    txt += ".globl k1_kernel\n.type k1_kernel,@function\n" + a1.text()
    txt += ".globl k2_kernel\n.type k2_kernel,@function\n" + a2.text()
    txt += '.section .rodata,"a"\n.p2align 6\n' + kd("k1_kernel", 128, 102) + ".p2align 6\n" + kd("k2_kernel", 256, 102)
    return txt, probs


if __name__ == "__main__":
    out = sys.argv[1] if len(sys.argv) > 1 else f"cdna_kernels/{NAME}.s"
    opt = {}
    for kv in sys.argv[2:]:
        k, val = kv.split("=", 1)
        opt[k] = int(val) if val.lstrip("-").isdigit() else val
    txt, probs = build(**opt)
    open(out, "w").write(txt)
    print("wrote", out, len(txt), "bytes;", len(probs), "hazards")
```

```python
import os
import struct
import sys

sys.path.insert(0, os.path.dirname(os.path.abspath(__file__)))
from asmlib import Asm, check, s, v

NAME = "standalone__cheap_equivariant_egnn__graph"
N, E = 25000, 400000
CH, BS = 1568, 98
GR, NG = 100, 250
CHB = CH * 12
WS_TAB, WS_OFF, WS_W, WS_X = 4096, 0x640000, 0x680000, 0x6A0000
P4 = 0x4A0000
WS_DBG = 0x1000000


def f2u(x):
    return struct.unpack("<I", struct.pack("<f", x))[0]


C_FWD = f2u(-1.4426950408889634)
C_INV = f2u(-0.6931471805599453)
OOB = 0x30000

OPT = dict(st1="sc1", sttab="sc1", stoff="", stout="", ldnt="nt", hnt="nt", stamps=0, prio=1, safe=0,
           sortfirst=0, gemmpos=1, x_nold=0, h2nt="")


def scan64(a, r):
    for d in ("row_shr:1 row_mask:0xf", "row_shr:2 row_mask:0xf", "row_shr:4 row_mask:0xf",
              "row_shr:8 row_mask:0xf", "row_bcast:15 row_mask:0xa", "row_bcast:31 row_mask:0xc"):
        a("s_nop 1")
        a(f"v_add_u32_dpp {r}, {r}, {r} {d} bank_mask:0xf")


def stamp(a, k, base=80):
    if OPT["stamps"]:
        a(f"s_memrealtime s[{base + 2 * k}:{base + 2 * k + 1}]")


def stamps_out(a, n, region, wave, base=80):
    if not OPT["stamps"]:
        return
    a("s_waitcnt lgkmcnt(0)")
    a("s_mov_b64 exec, -1")
    a(f"s_lshl_b32 s3, s2, 3\ns_add_u32 s3, s3, {wave}\ns_lshl_b32 s3, s3, 6\ns_add_u32 s3, s3, {WS_DBG + region}")
    a("v_mov_b32 v1, s3")
    for k in range(n):
        a(f"v_mov_b32 v2, s{base + 2 * k}")
        a(f"global_store_dword v1, v2, s[24:25] offset:{4 * k}")


def k1(a):
    HIST, BASE, KEYS = 0, 1024, 2048
    EAL = KEYS + CH * 4
    nt, st1 = OPT["ldnt"], OPT["st1"]
    a(".p2align 8\nk1_kernel:")
    stamp(a, 0)
    a("""
s_load_dwordx16 s[4:19], s[0:1], 0
s_load_dwordx2 s[24:25], s[0:1], 80
v_lshrrev_b32 v2, 6, v0
""")
    if OPT["sortfirst"]:
        a(f"s_mov_b32 s45, s2\ns_sub_u32 s26, s2, 256\ns_cmp_ge_u32 s2, 256")
    else:
        a(f"s_sub_u32 s45, s2, {NG + 3}\ns_mov_b32 s26, s2\ns_cmp_ge_u32 s45, 256")
    a(f"""
v_readfirstlane_b32 s44, v2
s_cbranch_scc1 K1_GEMM
s_mul_i32 s26, s45, {CH * 4}
v_lshl_add_u32 v1, v0, 4, s26
v_lshlrev_b32 v3, 2, v0
v_mov_b32 v2, 0
ds_write_b32 v3, v2 offset:{HIST}
v_cmp_gt_u32 vcc, {CH // 4}, v0
s_mov_b64 s[30:31], vcc
v_cmp_gt_u32 vcc, {E * 4}, v1
s_and_b64 s[30:31], s[30:31], vcc
v_lshlrev_b32 v2, 1, v1
s_waitcnt lgkmcnt(0)
s_mov_b64 exec, s[30:31]
s_cbranch_execz K1_S1
global_load_dwordx4 v[4:7], v1, s[12:13] {nt}
global_load_dwordx4 v[8:11], v1, s[10:11] {nt}
global_load_dwordx4 v[12:15], v2, s[8:9] {nt}
global_load_dwordx4 v[16:19], v2, s[8:9] offset:16 {nt}
K1_S1:
s_barrier
s_movk_i32 s27, {-BS}
v_mov_b32 v32, 4
s_waitcnt vmcnt(3)
""")
    stamp(a, 1)
    for i in range(4):
        a(f"v_mul_u32_u24 v{20 + i}, 2675, v{4 + i}")
        a(f"v_lshrrev_b32 v{20 + i}, 18, v{20 + i}")
        a(f"v_mad_i32_i24 v{28 + i}, v{20 + i}, s27, v{4 + i}")
        a(f"v_lshlrev_b32 v{20 + i}, 2, v{20 + i}")
        a(f"ds_add_rtn_u32 v{24 + i}, v{20 + i}, v32 offset:{HIST}")
    a(f"""
s_mov_b64 exec, -1
v_and_b32 v33, 63, v0
v_lshlrev_b32 v33, 4, v33
s_waitcnt lgkmcnt(0)
s_barrier
ds_read_b128 v[36:39], v33 offset:{HIST}
s_waitcnt lgkmcnt(0)
v_add_u32 v41, v36, v37
v_add_u32 v42, v41, v38
v_add_u32 v43, v42, v39
v_mov_b32 v44, v43
""")
    scan64(a, "v44")
    a(f"""
v_sub_u32 v40, v44, v43
v_add_u32 v43, v40, v42
v_add_u32 v42, v40, v41
v_add_u32 v41, v40, v36
ds_write_b128 v33, v[40:43] offset:{BASE}
s_cmp_lg_u32 s44, 7
s_cbranch_scc1 K1_S3
s_and_b32 s28, s45, 7
s_lshl_b32 s28, s28, 5
s_lshr_b32 s29, s45, 3
s_add_u32 s28, s28, s29
s_lshl_b32 s28, s28, 2
s_add_u32 s28, s28, {WS_OFF}
v_lshl_add_u32 v33, v33, 8, s28
""")
    for i in range(4):
        a(f"v_lshl_or_b32 v{36 + i}, v{36 + i}, 16, v{40 + i}")
        a(f"global_store_dword v33, v{36 + i}, s[24:25] offset:{1024 * i} {OPT['stoff']}")
    a("s_branch K1_S4\nK1_S3:\ns_mov_b64 exec, s[30:31]")
    for i in range(4):
        a(f"ds_read_b32 v{20 + i}, v{20 + i} offset:{BASE}")
    a("s_waitcnt vmcnt(2)")
    for i in range(4):
        a(f"v_lshl_or_b32 v{8 + i}, v{8 + i}, 1, 1")
        a(f"v_lshlrev_b32 v{28 + i}, 25, v{28 + i}")
        a(f"v_lshl_or_b32 v{28 + i}, v{8 + i}, 7, v{28 + i}")
    a("s_waitcnt lgkmcnt(0)")
    for i in range(4):
        a(f"v_add_u32 v{20 + i}, v{20 + i}, v{24 + i}")
        a(f"ds_write_b32 v{20 + i}, v{28 + i} offset:{KEYS}")
        a(f"v_lshlrev_b32 v{24 + i}, 1, v{20 + i}")
    a("s_waitcnt vmcnt(0)")
    stamp(a, 2)
    for i in range(4):
        a(f"ds_write_b64 v{24 + i}, v[{12 + 2 * i}:{13 + 2 * i}] offset:{EAL}")
    a(f"""
K1_S4:
s_mov_b64 exec, -1
v_lshlrev_b32 v2, 4, v0
s_mul_i32 s28, s45, {CHB}
s_add_u32 s28, s28, {WS_X}
s_add_u32 s36, s24, s28
s_addc_u32 s37, s25, 0
v_add_u32 v3, 8192, v2
v_add_u32 v1, 16384, v2
v_cmp_gt_u32 vcc, {CHB // 16 - 1024}, v0
s_waitcnt lgkmcnt(0)
s_barrier
ds_read_b128 v[4:7], v2 offset:{KEYS}
ds_read_b128 v[8:11], v2 offset:{KEYS + 8192}
ds_read_b128 v[12:15], v2 offset:{KEYS + 16384}
s_waitcnt lgkmcnt(2)
global_store_dwordx4 v2, v[4:7], s[36:37] {st1}
s_waitcnt lgkmcnt(1)
global_store_dwordx4 v3, v[8:11], s[36:37] {st1}
s_mov_b64 exec, vcc
s_cbranch_execz K1_S5
s_waitcnt lgkmcnt(0)
global_store_dwordx4 v1, v[12:15], s[36:37] {st1}
K1_S5:
""")
    stamp(a, 3)
    stamps_out(a, 4, 0, "s44")
    a("s_endpgm")

    a(f"""
K1_GEMM:
s_cmp_ge_u32 s26, {NG + 3}
s_cbranch_scc1 K1_END
v_and_b32 v1, 63, v0
v_lshrrev_b32 v2, 4, v1
v_and_b32 v3, 15, v1
s_lshl_b32 s27, s44, 12
v_lshl_add_u32 v4, v2, 8, s27
v_lshlrev_b32 v5, 2, v2
v_xor_b32 v5, v5, v3
v_lshl_add_u32 v5, v5, 4, v4
s_mov_b32 m0, s27
s_waitcnt lgkmcnt(0)
s_cmp_ge_u32 s26, {NG + 1}
s_cselect_b32 s28, s18, s14
s_cselect_b32 s29, s19, s15
s_cmp_eq_u32 s26, {NG}
s_cselect_b32 s3, 0, 32768
s_cmp_eq_u32 s26, {NG + 1}
s_cselect_b32 s3, 0, s3
s_add_u32 s28, s28, s3
s_addc_u32 s29, s29, 0
s_mov_b32 s30, 32768
s_mov_b32 s31, 0x20000
""")
    for n in range(4):
        a(f"buffer_load_dwordx4 v5, s[28:31], 0 offen offset:{1024 * n} lds")
    a(f"""
v_bfe_u32 v8, v1, 2, 2
v_and_b32 v11, 3, v1
s_cmp_ge_u32 s26, {NG}
s_cbranch_scc1 K1_PREP
s_mov_b32 s8, s6
s_mov_b32 s9, s7
s_mov_b32 s10, {N * 6}
s_mov_b32 s11, 0x20000
s_mul_i32 s3, s26, {GR}
v_add_u32 v116, s3, v0
s_cmp_ge_u32 s44, 2
s_cbranch_scc1 K1_G0
v_mul_u32_u24 v5, 6, v116
buffer_load_short_d16_hi v112, v5, s[8:11], 0 offen
buffer_load_short_d16_hi v113, v5, s[8:11], 0 offen offset:2
buffer_load_short_d16_hi v114, v5, s[8:11], 0 offen offset:4
K1_G0:
s_mul_i32 s36, s26, {GR * 256}
s_mov_b32 s32, s4
s_mov_b32 s33, s5
s_add_u32 s34, s36, {GR * 256}
s_mov_b32 s35, 0x20000
s_add_u32 s37, s27, 32768
s_mov_b32 m0, s37
v_xor_b32 v6, v2, v3
v_lshl_add_u32 v6, v6, 4, v4
v_add_u32 v6, s36, v6
""")
    for n in range(4):
        if n:
            a(f"v_xor_b32 v7, {64 * n}, v6")
        a(f"buffer_load_dwordx4 {'v7' if n else 'v6'}, s[32:35], 0 offen offset:{1024 * n} {OPT['hnt']} lds")
    HF, WF, AH, AL = 16, 32, 96, 112
    a(f"""
v_mov_b32 v115, 0
v_lshlrev_b32 v116, 4, v116
v_add_u32 v116, {WS_X + P4}, v116
s_cmp_eq_u32 s26, {NG - 1}
s_cselect_b32 s3, 2, 0
s_add_u32 s38, s3, {GR}
v_cmp_gt_u32 s[42:43], s38, v0
s_lshl_b32 s3, s3, 8
s_add_u32 s50, s34, s3
s_add_u32 s48, s24, {WS_TAB}
s_addc_u32 s49, s25, 0
s_mov_b32 s51, 0x20000
v_lshrrev_b32 v9, 5, v1
v_lshl_add_u32 v10, v9, 3, v8
v_lshlrev_b32 v10, 8, v10
v_lshl_add_u32 v10, v11, 3, v10
v_and_b32 v11, 16, v1
v_lshl_add_u32 v10, v11, 1, v10
s_and_b32 s38, s44, 1
s_lshr_b32 s39, s44, 1
s_lshl_b32 s40, s38, 1
v_xor_b32 v11, s40, v8
v_lshl_add_u32 v12, v11, 6, v10
v_xor_b32 v13, 64, v12
v_and_b32 v14, 31, v1
v_xor_b32 v15, v9, v3
v_lshlrev_b32 v15, 4, v15
v_lshl_add_u32 v15, v14, 8, v15
s_lshl_b32 s41, s39, 13
s_add_u32 s3, s41, 32768
v_add_u32 v15, s3, v15
s_add_u32 s41, s41, s36
s_lshl_b32 s38, s38, 7
s_add_u32 s41, s41, s38
v_lshlrev_b32 v6, 10, v9
v_lshl_add_u32 v6, v14, 2, v6
v_add_u32 v6, s41, v6
v_add_u32 v7, 4096, v6
s_mov_b32 s46, {C_FWD:#x}
s_mov_b32 s47, s46
s_mov_b32 s52, 0x07060302
s_waitcnt vmcnt(4)
s_barrier
""")
    for k in range(8):
        for j, ad in enumerate(("v12", "v13")):
            a(f"ds_read_b64_tr_b16 {v(WF + 8 * k + 4 * j, 2)}, {ad} offset:{4096 * k}")
            a(f"ds_read_b64_tr_b16 {v(WF + 8 * k + 4 * j + 2, 2)}, {ad} offset:{4096 * k + 1024}")
    a(f"""
s_waitcnt vmcnt(0)
s_barrier
s_mov_b64 exec, s[42:43]
s_cbranch_execz K1_G1
global_store_dwordx4 v116, v[112:115], s[24:25] {st1}
K1_G1:
s_mov_b64 exec, -1
""")
    stamp(a, 1)

    def hrd(k):
        o = [f"v_xor_b32 v3, {32 * k}, v15"] if k else []
        return o + [f"ds_read_b128 {v(HF + 4 * (k & 3), 4)}, {'v3' if k else 'v15'}"]

    for k in range(4):
        a.ext(hrd(k))
    for k in range(8):
        a(f"s_waitcnt lgkmcnt({min(3, 7 - k)})")
        for j, acc in enumerate((AH, AL)):
            a(f"v_mfma_f32_32x32x16_bf16 {v(acc, 16)}, {v(HF + 4 * (k & 3), 4)}, {v(WF + 8 * k + 4 * j, 4)}, "
              f"{'0' if k == 0 else v(acc, 16)}")
        if k < 4:
            a.ext(hrd(k + 4))
    a("s_cmp_eq_u32 s39, 3\ns_nop 10")
    for r in range(0, 16, 2):
        if r == 4:
            a("s_cbranch_scc1 K1_G3")
        a(f"v_pk_mul_f32 {v(AH + r, 2)}, {v(AH + r, 2)}, s[46:47]")
        a(f"v_pk_mul_f32 {v(AL + r, 2)}, {v(AL + r, 2)}, s[46:47]")
        for q in (r, r + 1):
            a(f"v_add_u32 v{AL + q}, 0x4000, v{AL + q}")
            a(f"v_perm_b32 v{AH + q}, v{AH + q}, v{AL + q}, s52")
            a(f"buffer_store_dword v{AH + q}, v{7 if q >= 8 else 6}, s[48:51], 0 offen "
              f"offset:{(8 * ((q >> 2) & 1) + (q & 3)) * 256} {OPT['sttab']}")
    a("K1_G3:")
    stamp(a, 2)
    stamp(a, 3)
    stamps_out(a, 4, 0, "s44")
    a(f"""
s_endpgm
K1_PREP:
v_lshl_add_u32 v10, v2, 3, v8
v_lshlrev_b32 v10, 8, v10
v_lshl_add_u32 v10, v11, 3, v10
s_lshr_b32 s38, s44, 1
s_and_b32 s39, s44, 1
s_lshl_b32 s39, s39, 5
v_xor_b32 v11, s38, v8
v_lshl_add_u32 v12, v11, 6, v10
v_add_u32 v12, s39, v12
s_sub_u32 s26, s26, {NG}
s_lshl_b32 s41, s26, 15
s_add_u32 s41, s41, s27
s_add_u32 s41, s41, {WS_W}
v_lshl_add_u32 v13, v1, 4, s41
s_waitcnt vmcnt(0)
s_barrier
""")
    for k in range(4):
        a(f"ds_read_b64_tr_b16 {v(WF + 4 * k, 2)}, v12 offset:{8192 * k}")
        a(f"ds_read_b64_tr_b16 {v(WF + 4 * k + 2, 2)}, v12 offset:{8192 * k + 1024}")
    a("s_waitcnt lgkmcnt(0)")
    for k in range(4):
        a(f"global_store_dwordx4 v13, {v(WF + 4 * k, 4)}, s[24:25] offset:{1024 * k} {st1}")
    a("K1_END:\ns_endpgm")


MA, SB, POS, HIST, FLAG, BASE = 0, 28832, 47264, 50624, 51136, 51200
PDL, OH, WX, SRC, AUX, AT, HR = 51712, 53760, 54016, 54272, 62720, 71168, 102912
K2_LDS = HR + 112 * 256
CAP4 = 8192

vLANE, vAUXA, vSRCA, vSROW, vSRD, vWAB, vMRD, vMB, vPB, vH8, vNP, vPCON, vXOFF, vSA0, vSA1 = range(1, 16)
t0, t1, t2, t3, t4, t5 = range(16, 22)
vPDA, vOHA, vAUX, SEL, Z, SM = 22, 23, 24, 26, 28, 30
X, XC, S, EE, M = 32, 36, 40, 48, 56
R0, R1, PH, PL, T, H1, PD, WA, AD = 64, 80, 96, 112, 128, 192, 220, 224, 240
vREM, vKA, vWE, vWXD, vP4 = 22, 23, 40, 41, 44

sWAVE, sBIN, sN0, sDONE, sSPB, sTOT, sMORE, sINIT = range(44, 52)
sTILE, sEND, sDUM, sNBP, sNLP, sVAL2, sNB1, sNEW1, sVAL1, sNEW0, sNB0, sNBF = range(52, 64)
sGEMM, sREP, sNEW2, sIT, sCNT = 72, 73, 74, 75, 76
sNL0, sNL1, sNLF, sHEAD, sTAIL = 8, 9, 10, 11, 12


def mf(d, aa, bb, c):
    cc = "0" if c is None else v(c, 16)
    return f"v_mfma_f32_32x32x16_bf16 {v(d, 16)}, {v(aa, 4)}, {v(bb, 4)}, {cc}"


def mf8(d, aa, bb, c):
    cc = "0" if c is None else v(c, 16)
    return f"v_mfma_f32_32x32x8_bf16 {v(d, 16)}, {v(aa, 2)}, {v(bb, 2)}, {cc}"


def mf16(d, aa, bb, c):
    cc = "0" if c is None else v(c, 4)
    return f"v_mfma_f32_16x16x32_bf16 {v(d, 4)}, {v(aa, 4)}, {v(bb, 4)}, {cc}"


def plan_a():
    return [f"""
s_add_u32 s77, s{sNBP}, 8
s_cmp_ge_i32 s{sNLP}, s77
s_cselect_b32 s{sREP}, 1, 0
s_cselect_b32 s{sNBP}, s77, s{sNBP}
s_cselect_b32 s77, 0, 128
s_add_u32 s{sTILE}, s{sTILE}, s77
s_cmp_lt_u32 s{sTILE}, s{sEND}
s_cselect_b32 s{sVAL2}, 1, 0
s_cselect_b32 s77, s{sTILE}, s{sDUM}
v_add_u32 v{t0}, s77, v{vAUXA}
v_add_u32 v{t1}, s77, v{vSRCA}
ds_read2st64_b32 {v(vAUX, 2)}, v{t0} offset0:{SRC // 256} offset1:{AUX // 256}"""] + [
        f"ds_read_b128 {v(AD + 4 * q, 4)}, v{t1} offset:{SRC + 32 * q}" for q in range(4)]


def plan_b():
    return [f"""
s_sub_u32 s77, s{sTOT}, s{sTILE}
s_lshr_b32 s77, s77, 2
s_sub_u32 s77, s77, 1
s_min_u32 s77, s77, 31
v_readlane_b32 s78, v{vAUX + 1}, 0
v_readlane_b32 s79, v{vAUX + 1}, s77
v_lshrrev_b32 v{t0}, 25, v{vAUX + 1}
v_and_b32 v{t1}, 0x1ffffff, v{vAUX + 1}
s_lshr_b32 s78, s78, 25
s_lshr_b32 s79, s79, 25
s_cmp_eq_u32 s{sVAL2}, 0
s_cselect_b32 s{sNLP}, -1, s79
s_add_u32 s77, s{sNBP}, 8
s_cmp_ge_i32 s{sNLP}, s77
s_cselect_b32 s{sNEW2}, 1, s{sREP}
s_cselect_b32 s78, s78, s{sNBP}
s_cmp_eq_u32 s{sREP}, 0
s_cselect_b32 s{sNBP}, s78, s{sNBP}
v_lshrrev_b32 v{t2}, 4, v{vAUX}
v_add_u32 v{t2}, v{t2}, v{vPCON}
v_lshlrev_b32 v{vPDA}, 4, v{t0}
v_subrev_u32 v{t0}, s{sNBP}, v{t0}
v_min_u32 v{t0}, 8, v{t0}
v_cndmask_b32 v{vXOFF}, v{t1}, v{t2}, s[64:65]
v_lshl_add_u32 v{vOHA}, v{t0}, 4, v{vH8}
v_lshl_add_u32 v{vSA1}, v{t0}, 3, v{vSROW}
s_mov_b32 s{sNEW0}, s{sNEW1}
s_mov_b32 s{sNB0}, s{sNB1}
s_mov_b32 s{sNL0}, s{sNL1}
s_mov_b32 s{sNEW1}, s{sNEW2}
s_mov_b32 s{sNB1}, s{sNBP}
s_mov_b32 s{sNL1}, s{sNLP}"""] + (
        [f"v_min_u32 v{AD + r}, {N * 256 + 128}, v{AD + r}" for r in range(16)] +
        [f"v_min_u32 v{vXOFF}, {P4 + N * 16}, v{vXOFF}"] if OPT["safe"] else [])


def x_reads():
    return [f"ds_read_b96 {v(PD, 3)}, v{vPDA} offset:{PDL}",
            f"ds_read_b64 {v(XC + 2, 2)}, v{vOHA} offset:{OH}"]


def x_build():
    return [f"v_pk_add_f32 {v(t0, 2)}, {v(PD, 2)}, {v(X, 2)} neg_lo:[0,1] neg_hi:[0,1]",
            f"v_sub_f32 v{t2}, v{PD + 2}, v{X + 2}",
            f"v_mov_b32 v{XC + 1}, v{X + 1}",
            f"v_mul_f32 v{t3}, v{t0}, v{t0}",
            f"v_mov_b32 v{vSA0}, v{vSA1}",
            f"v_fmac_f32 v{t3}, v{t1}, v{t1}",
            f"v_cvt_pk_bf16_f32 v{t0}, 1.0, v{t0}",
            f"v_fmac_f32 v{t3}, v{t2}, v{t2}",
            f"v_cvt_pk_bf16_f32 v{t1}, v{t1}, v{t2}",
            f"v_cvt_pk_bf16_f32 v{t3}, v{t3}, v{t3}",
            f"ds_write_b64 v{vSA0}, {v(t0, 2)}",
            f"v_cndmask_b32 v{XC}, v{X}, v{t3}, s[64:65]"]


def ld_x():
    return [f"global_load_dwordx3 {v(X, 3)}, v{vXOFF}, s[40:41]"]


def ld_r(half):
    R = R1 if half else R0
    if OPT["x_nold"]:
        return []
    return [f"buffer_load_dword v{R + r}, v{AD + r}, s[28:31], 0 offen" + (" offset:128" if half else "")
            for r in range(16)]


def wa_reads(nb):
    out = [f"s_mul_i32 s77, s{nb}, 264", f"v_add_u32 v{t3}, s77, v{vWAB}"]
    for t in range(4):
        out.append(f"ds_read_b64_tr_b16 {v(WA + 4 * t + 2, 2)}, v{t3} offset:{64 * t + 8 * 264}")
    return out


def m_reads(nb, cmp):
    out = [f"s_mul_i32 s77, s{nb}, 272", f"s_sub_u32 s78, s{sTAIL}, s{nb}",
           f"v_add_u32 v{SM}, s77, v{vMRD}", f"v_cmp_{cmp}_i32 vcc, s78, v{vNP}"]
    for t in range(4):
        out.append(f"ds_read_b64_tr_b16 {v(EE + 2 * t, 2)}, v{SM} offset:{64 * t}")
    out += [f"v_cndmask_b32 v{SM}, 0, v{SEL}, vcc", f"v_cndmask_b32 v{SM + 1}, 0, v{SEL + 1}, vcc"]
    return out


def batch(P, b, in_exp=(), in_rcp=()):
    in_exp, in_rcp = dict(in_exp), dict(in_rcp)
    o = []
    for i in range(8):
        o += in_exp.get(i, [])
        o.append(f"v_exp_f32 v{EE + i}, v{P + 8 * b + i}")
    o += in_exp.get(8, [])
    for i in range(0, 8, 2):
        o.append(f"v_pk_add_f32 {v(EE + i, 2)}, {v(EE + i, 2)}, 1.0 op_sel_hi:[1,0]")
    for i in range(8):
        o += in_rcp.get(i, [])
        o.append(f"v_rcp_f32 v{EE + i}, v{EE + i}")
    o += in_rcp.get(8, [])
    for i in range(0, 8, 2):
        o.append(f"v_pk_mul_f32 {v(EE + i, 2)}, {v(P + 8 * b + i, 2)}, {v(EE + i, 2)}")
    for i in range(4):
        o.append(f"v_cvt_pk_bf16_f32 v{M + 4 * b + i}, v{EE + 2 * i}, v{EE + 2 * i + 1}")
    return o


def seg(t, k):
    return mf(T + 16 * t, M + 4 * k, S + 4 * k, T + 16 * t)


def spread(lst, first=0):
    e, r = {}, {}
    for n, x in enumerate(lst):
        n += first
        if n < 9:
            e.setdefault(n, []).append(x)
        else:
            r.setdefault(min(n - 8, 8), []).append(x)
    return e, r


def node_gemm(a, do_a, do_h):
    W1, WH, HF, AC = T, T + 16, T + 32, PL
    a(f"""
v_and_b32 v{t0}, 15, v{vLANE}
v_lshrrev_b32 v{t1}, 4, v{vLANE}
v_xor_b32 v{t2}, v{t0}, v{t1}
v_lshlrev_b32 v{t2}, 4, v{t2}
v_lshl_add_u32 v{t2}, v{t0}, 8, v{t2}
v_add_u32 v{EE}, {HR}, v{t2}
""")
    for k in range(1, 4):
        a(f"v_xor_b32 v{EE + k}, {64 * k}, v{EE}")

    def rd(mt):
        for k in range(4):
            a(f"ds_read_b128 {v(HF + 16 * (mt & 1) + 4 * k, 4)}, v{EE + k} offset:{4096 * mt}")

    rd(0)
    rd(1)
    if do_a:
        a(f"""
s_lshl_b32 s77, s{sWAVE}, 5
s_add_u32 s77, s77, {AT + 8 * 264}
v_mul_u32_u24 v{t2}, 264, v{t0}
v_lshl_add_u32 v{t2}, v{t1}, 3, v{t2}
v_add_u32 v{EE + 4}, s77, v{t2}
""")

    def post(mt):
        o = []
        ac = AC + 4 * (mt & 3)
        if do_a:
            o += [f"v_mul_f32 v{ac + r}, s68, v{ac + r}" for r in range(4)]
        if do_h:
            o += [f"v_mul_f32 v{H1 + 4 * mt + r}, s68, v{H1 + 4 * mt + r}" for r in range(4)]
        if do_a:
            o += [f"v_cvt_pk_bf16_f32 v{ac}, v{ac}, v{ac + 1}", f"v_cvt_pk_bf16_f32 v{ac + 1}, v{ac + 2}, v{ac + 3}",
                  f"ds_write_b64 v{EE + 4}, {v(ac, 2)} offset:{16 * 264 * mt}"]
        return o

    lag = 1 if (do_a and do_h) else 2
    out = [4, 4]
    for mt in range(7):
        pend = list(post(mt - lag)) if mt >= lag else []
        a(f"s_waitcnt lgkmcnt({out[1]})")
        ms = []
        for k in range(4):
            hf = HF + 16 * (mt & 1) + 4 * k
            if do_a:
                ms.append(mf16(AC + 4 * (mt & 3), W1 + 4 * k, hf, None if k == 0 else AC + 4 * (mt & 3)))
            if do_h:
                ms.append(mf16(H1 + 4 * mt, WH + 4 * k, hf, None if k == 0 else H1 + 4 * mt))
        a.ext(ms)
        n = 0
        if mt + 2 < 7:
            rd(mt + 2)
            n = 4
        a.ext(pend)
        if pend and do_a:
            n += 1
        out = [out[1], n]
    a("s_nop 3")
    for mt in range(7 - lag, 7):
        if mt == 6:
            a("s_nop 3")
        a.ext(post(mt))


def k2(a):
    gp = OPT["gemmpos"]
    a(".p2align 8\nk2_kernel:")
    stamp(a, 0)
    a(f"""
s_cmp_ge_u32 s2, 256
s_cbranch_scc1 K2_END
s_load_dwordx16 s[4:19], s[0:1], 0
s_load_dwordx2 s[20:21], s[0:1], 64
s_load_dwordx2 s[24:25], s[0:1], 80
v_lshrrev_b32 v{t0}, 6, v0
v_and_b32 v{vLANE}, 63, v0
v_readfirstlane_b32 s{sWAVE}, v{t0}
s_and_b32 s{sBIN}, s2, 7
s_lshl_b32 s{sBIN}, s{sBIN}, 5
s_lshr_b32 s3, s2, 3
s_add_u32 s{sBIN}, s{sBIN}, s3
s_mul_i32 s{sN0}, s{sBIN}, {BS}
s_mov_b32 s{sDONE}, 0
s_movk_i32 s{sSPB}, 128
s_mov_b32 s{sINIT}, 0
s_mov_b32 s{sGEMM}, 0
s_waitcnt lgkmcnt(0)
K2_BATCH:
s_lshl_b32 s3, s{sBIN}, 10
s_add_u32 s3, s3, {WS_OFF}
v_lshrrev_b32 v{vKA}, 1, v0
v_lshl_add_u32 v{t0}, v{vKA}, 2, s3
global_load_dword v{vREM}, v{t0}, s[24:25]
s_cmp_lg_u32 s{sINIT}, 0
s_cbranch_scc1 K2_B1
s_add_u32 s77, s{sN0}, {BS}
s_min_u32 s79, s77, {N}
s_lshl_b32 s34, s79, 8
s_mov_b32 s32, s4
s_mov_b32 s33, s5
s_mov_b32 s35, 0x20000
s_lshl_b32 s77, s{sWAVE}, 12
s_add_u32 s78, s77, {HR}
s_mov_b32 m0, s78
s_lshl_b32 s78, s{sN0}, 8
s_add_u32 s78, s77, s78
v_lshrrev_b32 v{t0}, 4, v{vLANE}
v_and_b32 v{t1}, 15, v{vLANE}
v_xor_b32 v{t1}, v{t0}, v{t1}
v_lshlrev_b32 v{t1}, 4, v{t1}
v_lshl_add_u32 v{t1}, v{t0}, 8, v{t1}
v_add_u32 v{t1}, s78, v{t1}
s_add_u32 s40, s24, {WS_X}
s_addc_u32 s41, s25, 0
s_cmp_eq_u32 s{sWAVE}, 7
s_cbranch_scc1 K2_P1
""")
    for n in range(4):
        if n:
            a(f"v_xor_b32 v{t2}, {64 * n}, v{t1}")
        a(f"buffer_load_dwordx4 v{t2 if n else t1}, s[32:35], 0 offen offset:{1024 * n} {OPT['h2nt']} lds")
    a(f"""
s_branch K2_P2
K2_P1:
s_mov_b32 s36, s40
s_mov_b32 s37, s41
s_lshl_b32 s38, s79, 4
s_add_u32 s38, s38, {P4}
s_mov_b32 s39, 0x20000
s_lshl_b32 s78, s{sN0}, 4
s_add_u32 s78, s78, {P4}
s_mov_b32 m0, {PDL}
v_lshl_add_u32 v{t1}, v{vLANE}, 4, s78
buffer_load_dwordx4 v{t1}, s[36:39], 0 offen lds
buffer_load_dwordx4 v{t1}, s[36:39], 0 offen offset:1024 lds
s_mov_b32 s36, s16
s_mov_b32 s37, s17
s_movk_i32 s38, 256
s_mov_b32 m0, {WX}
v_lshlrev_b32 v{t1}, 2, v{vLANE}
buffer_load_dword v{t1}, s[36:39], 0 offen lds
buffer_load_dword v{t1}, s[36:39], 0 offen lds
v_lshrrev_b32 v{t0}, 2, v{vLANE}
v_and_b32 v{t2}, 3, v{vLANE}
v_lshrrev_b32 v{t3}, 1, v{t0}
v_lshlrev_b32 v{t0}, 4, v{t0}
v_mov_b32 v{t4}, 0x3f80
v_cmp_eq_u32 vcc, v{t2}, v{t3}
v_lshlrev_b32 v{t4}, v{t0}, v{t4}
s_nop 0
v_cndmask_b32 v{t4}, 0, v{t4}, vcc
ds_write_b32 v{t1}, v{t4} offset:{OH}
K2_P2:
s_add_u32 s77, s77, {WS_W}
v_lshl_add_u32 v{t4}, v{vLANE}, 4, s77
v_add_u32 v{t5}, 32768, v{t4}
""")
    for k in range(4):
        a(f"global_load_dwordx4 {v(T + 4 * k, 4)}, v{t4}, s[24:25] offset:{1024 * k}")
    a(f"""
s_add_u32 s77, s{sWAVE}, 257
s_cmp_lt_u32 s{sWAVE}, 4
s_cselect_b32 s77, s77, 256
s_lshl_b32 s77, s77, 8
v_lshl_add_u32 v{t1}, v{vLANE}, 2, s77
global_load_dword v{vWE}, v{t1}, s[14:15]
""")
    for k in range(4):
        a(f"global_load_dwordx4 {v(T + 16 + 4 * k, 4)}, v{t5}, s[24:25] offset:{1024 * k}")
    a(f"v_mov_b64 {v(Z, 2)}, 0\nv_mov_b64 {v(M, 2)}, 0\nv_mov_b64 {v(M + 2, 2)}, 0")
    a(f"v_lshlrev_b32 v{t0}, 4, v0\nv_lshlrev_b32 v{t1}, 2, v0")
    a(f"ds_write_b32 v{t1}, v{Z} offset:49152")
    for i in range(6):
        a(f"ds_write_b128 v{t0}, {v(M, 4)} offset:{8192 * i}")
    a(f"""
s_mov_b32 s36, s20
s_mov_b32 s37, s21
s_mov_b32 s38, s34
s_mov_b32 s39, 0x20000
s_add_u32 s28, s24, {WS_TAB - 128}
s_addc_u32 s29, s25, 0
s_and_b32 s29, s29, 0xffff
s_or_b32 s29, s29, 0x40000
s_mov_b32 s30, 64
s_mov_b32 s31, 0x800000
s_mov_b32 s64, 0
s_mov_b32 s65, -1
s_mov_b32 s68, {C_FWD:#x}
s_mov_b32 s69, s68
s_mov_b32 s70, {C_INV:#x}
s_mov_b32 s71, s70
v_and_b32 v{t0}, 31, v{vLANE}
v_lshrrev_b32 v{t1}, 5, v{vLANE}
v_lshlrev_b32 v{vAUXA}, 2, v{t0}
v_lshlrev_b32 v{vSRCA}, 4, v{t1}
v_lshlrev_b32 v{vH8}, 3, v{t1}
v_lshrrev_b32 v{vNP}, 2, v{t0}
v_and_b32 v{vPCON}, 1, v{vNP}
v_lshlrev_b32 v{vPCON}, 3, v{vPCON}
v_add_u32 v{vPCON}, {P4 - 8}, v{vPCON}
s_mul_i32 s77, s{sWAVE}, 2304
s_add_u32 s77, s77, {SB}
v_mul_u32_u24 v{t2}, 72, v{t0}
v_add_u32 v{t2}, s77, v{t2}
v_mov_b32 v{t5}, {OOB}
v_cndmask_b32 v{vSROW}, v{t5}, v{t2}, s[64:65]
v_lshlrev_b32 v{vPB}, 3, v{t0}
v_bfe_u32 v{t2}, v{vLANE}, 2, 2
v_and_b32 v{t3}, 3, v{vLANE}
v_cmp_eq_u32 vcc, 0, v{t3}
v_lshlrev_b32 v{t3}, 3, v{t3}
v_and_b32 v{t4}, 16, v{vLANE}
v_lshl_add_u32 v{t3}, v{t4}, 1, v{t3}
v_lshl_add_u32 v{t4}, v{t1}, 2, v{t2}
v_mul_u32_u24 v{vSRD}, 72, v{t4}
v_add3_u32 v{vSRD}, v{vSRD}, v{t3}, s77
v_mul_u32_u24 v{vWAB}, 264, v{t4}
s_mov_b32 s77, {AT}
v_add3_u32 v{vWAB}, v{vWAB}, v{t3}, s77
v_mul_u32_u24 v{vMRD}, 272, v{t4}
v_add_u32 v{vMRD}, v{vMRD}, v{t3}
v_mul_u32_u24 v{t3}, 272, v{vNP}
v_add_u32 v{t3}, v{t3}, v{vH8}
v_cndmask_b32 v{vMB}, v{t5}, v{t3}, vcc
v_lshrrev_b32 v{t3}, 2, v{vNP}
v_cmp_eq_u32 s[26:27], v{t3}, v{t1}
v_mov_b32 v{t4}, 0x3f80
s_and_b64 vcc, vcc, s[26:27]
v_mov_b32 v{t5}, 0
v_cndmask_b32 v{t4}, 0, v{t4}, vcc
v_lshlrev_b32 v{t2}, 4, v{t2}
v_lshlrev_b64 {v(SEL, 2)}, v{t2}, {v(t4, 2)}
s_waitcnt vmcnt(13)
s_branch K2_B2
K2_B1:
s_waitcnt vmcnt(0)
K2_B2:
""")
    stamp(a, 1)
    a(f"""
v_and_b32 v{t0}, 31, v{vKA}
v_lshrrev_b32 v{vKA}, 5, v{vKA}
v_lshl_add_u32 v{vKA}, v{t0}, 3, v{vKA}
v_mul_u32_u24 v{vKA}, {CHB}, v{vKA}
v_and_b32 v{t0}, 0xffff, v{vREM}
v_lshrrev_b32 v{vREM}, 16, v{vREM}
v_and_b32 v{t1}, 1, v0
v_lshlrev_b32 v{t1}, 4, v{t1}
v_subrev_u32 v{vREM}, s{sDONE}, v{vREM}
v_add3_u32 v{t0}, v{t0}, v{t1}, s{sDONE}
v_add_u32 v{vKA}, v{vKA}, v{t0}
v_cmp_lt_i32 s[26:27], s{sSPB}, v{vREM}
v_min_i32 v{vREM}, s{sSPB}, v{vREM}
v_sub_u32 v{vREM}, v{vREM}, v{t1}
v_cmp_lt_i32 vcc, 64, v{vREM}
s_mov_b64 exec, vcc
s_cbranch_execz K2_B3
global_load_dwordx4 {v(R0 + 8, 4)}, v{vKA}, s[40:41] offset:64
global_load_dwordx4 {v(R0 + 12, 4)}, v{vKA}, s[40:41] offset:96
K2_B3:
s_mov_b64 exec, -1
global_load_dwordx4 {v(R0, 4)}, v{vKA}, s[40:41]
global_load_dwordx4 {v(R0 + 4, 4)}, v{vKA}, s[40:41] offset:32
s_movk_i32 s77, {CH * 4}
v_add3_u32 v{vKA}, v{vKA}, v{t0}, s77
s_cmp_lg_u32 s{sINIT}, 0
s_cbranch_scc1 K2_B4
s_mov_b32 s{sINIT}, 1
""")

    def wext():
        a(f"""
s_cmp_lt_u32 s{sWAVE}, 6
s_cselect_b32 s77, s68, 0
s_cmp_eq_u32 s{sWAVE}, 5
s_cselect_b32 s79, -1.0, 0
s_mul_i32 s78, s{sWAVE}, 264
s_add_u32 s78, s78, {AT}
v_lshlrev_b32 v{t0}, 16, v{vWE}
v_and_b32 v{t1}, 0xffff0000, v{vWE}
v_mul_f32 v{t0}, s77, v{t0}
v_mul_f32 v{t1}, s77, v{t1}
v_cvt_pk_bf16_f32 v{t2}, v{t0}, v{t1}
v_lshlrev_b32 v{t3}, 16, v{t2}
v_and_b32 v{t2}, 0xffff0000, v{t2}
v_fmac_f32 v{t0}, s79, v{t3}
v_fmac_f32 v{t1}, s79, v{t2}
v_cvt_pk_bf16_f32 v{t0}, v{t0}, v{t1}
v_lshl_add_u32 v{t1}, v{vLANE}, 2, s78
ds_write_b32 v{t1}, v{t0}
""")

    if gp in (0, 1):
        a(f"s_waitcnt vmcnt({2 if gp == 0 else 6}) lgkmcnt(0)\ns_barrier")
        stamp(a, 4)
        wext()
        node_gemm(a, True, gp == 0)
    else:
        a("s_waitcnt lgkmcnt(0)\ns_barrier")
    a("K2_B4:\ns_waitcnt vmcnt(0)")
    stamp(a, 2)
    a(f"""
v_mov_b32 v{t1}, 4
s_cmp_eq_u64 s[26:27], 0
s_cbranch_scc1 K2_B6
ds_write_b32 v{Z}, v{t1} offset:{FLAG}
K2_B6:
""")
    for k in range(4):
        for i in range(4):
            j = 4 * k + i
            if j in (0, 8, 12):
                for q in range(8 if j == 0 else 4):
                    a(f"v_lshrrev_b32 v{PH + j + q}, 23, v{R0 + j + q}")
            a(f"v_cmpx_lt_i32 vcc, {32 * k + 4 * i}, v{vREM}")
            if j in (6, 8, 12):
                a("s_cbranch_execz K2_B7")
            a(f"ds_add_rtn_u32 v{R1 + j}, v{PH + j}, v{t1} offset:{HIST}")
    a(f"""
K2_B7:
s_mov_b64 exec, -1
v_lshlrev_b32 v{t0}, 3, v{vLANE}
s_waitcnt lgkmcnt(0)
s_barrier
ds_read_b64 {v(t2, 2)}, v{t0} offset:{HIST}
ds_read_b32 v{t1}, v{Z} offset:{FLAG}
s_waitcnt lgkmcnt(0)
v_add_u32 v{t3}, v{t2}, v{t3}
v_readfirstlane_b32 s{sMORE}, v{t1}
v_mov_b32 v{t5}, v{t3}
""")
    scan64(a, f"v{t5}")
    a(f"""
s_nop 0
v_readlane_b32 s{sTOT}, v{t5}, 63
v_sub_u32 v{X}, v{t5}, v{t3}
v_add_u32 v{X + 1}, v{X}, v{t2}
ds_write_b64 v{t0}, {v(X, 2)} offset:{BASE}
""")
    for j in range(8):
        a(f"ds_read_b32 v{PH + j}, v{PH + j} offset:{BASE}")
    a(f"""
s_cmp_gt_u32 s{sTOT}, {CAP4}
s_cbranch_scc0 K2_B8
s_mov_b32 s{sSPB}, 32
s_branch K2_AGAIN
K2_B8:
s_mov_b32 s77, 0x7fffff
s_mov_b32 s78, 0xfe000000
s_cmp_lg_u32 s{sWAVE}, 7
s_cbranch_scc1 K2_B9
v_lshl_add_u32 v{t0}, v{vLANE}, 2, s{sTOT}
v_and_b32 v{t1}, 16, v{t0}
v_lshlrev_b32 v{t1}, 3, v{t1}
v_xor_b32 v{t1}, {N * 256 + 128}, v{t1}
v_mov_b32 v{t2}, {(127 << 25) | (P4 + N * 16):#x}
ds_write2st64_b32 v{t0}, v{t1}, v{t2} offset0:{SRC // 256} offset1:{AUX // 256}
K2_B9:
""")
    for k in range(4):
        for i in range(4):
            j = 4 * k + i
            a(f"v_cmpx_lt_i32 vcc, {32 * k + 4 * i}, v{vREM}")
            if j >= 5:
                a("s_cbranch_execz K2_B10")
            if j in (8, 12):
                for q in range(4):
                    a(f"ds_read_b32 v{PH + j + q}, v{PH + j + q} offset:{BASE}")
            a(f"v_add_u32 v{t1}, {64 * k + 8 * i}, v{vKA}")
            a(f"v_and_or_b32 v{t1}, v{R0 + j}, s78, v{t1}")
            if j in (0, 8, 12):
                a("s_waitcnt lgkmcnt(0)")
            a(f"v_add_u32 v{t0}, v{PH + j}, v{R1 + j}")
            a(f"v_and_b32 v{t2}, 16, v{t0}")
            a(f"v_lshlrev_b32 v{t2}, 3, v{t2}")
            a(f"v_bitop3_b32 v{t2}, v{R0 + j}, s77, v{t2} bitop3:0x6a")
            a(f"ds_write2st64_b32 v{t0}, v{t2}, v{t1} offset0:{SRC // 256} offset1:{AUX // 256}")
    a(f"""
K2_B10:
s_mov_b64 exec, -1
s_add_u32 s77, s{sTOT}, 127
s_lshr_b32 s77, s77, 7
s_lshl_b32 s{sDUM}, s77, 7
s_lshr_b32 s78, s77, 3
s_and_b32 s77, s77, 7
s_mul_i32 s{sTILE}, s78, s{sWAVE}
s_min_u32 s79, s77, s{sWAVE}
s_add_u32 s{sTILE}, s{sTILE}, s79
s_cmp_lt_u32 s{sWAVE}, s77
s_addc_u32 s{sCNT}, s78, 0
s_add_u32 s{sEND}, s{sTILE}, s{sCNT}
s_lshl_b32 s{sEND}, s{sEND}, 7
s_lshl_b32 s{sTILE}, s{sTILE}, 7
s_sub_u32 s{sTILE}, s{sTILE}, 128
s_mov_b32 s{sNBP}, -8
s_mov_b32 s{sNLP}, -1
s_min_u32 s77, s{sEND}, s{sTOT}
v_mov_b32 v{t4}, s77
s_waitcnt lgkmcnt(0)
s_barrier
""")
    stamp(a, 3)
    a(f"ds_read_b32 v{t4}, v{t4} offset:{AUX - 4}")
    a.ext(plan_a())
    a("s_waitcnt lgkmcnt(0)")
    a(f"v_readfirstlane_b32 s{sTAIL}, v{t4}")
    a.ext(plan_b())
    a.ext(ld_x() + ld_r(0) + ld_r(1))
    a(f"s_lshr_b32 s{sTAIL}, s{sTAIL}, 25")
    if gp in (1, 2):
        a(f"s_cmp_lg_u32 s{sGEMM}, 0\ns_cbranch_scc1 K2_G9\ns_mov_b32 s{sGEMM}, 1")
        if gp == 2:
            wext()
        node_gemm(a, gp == 2, True)
        if gp == 2:
            a("s_waitcnt lgkmcnt(0)\ns_barrier")
            stamp(a, 4)
        a("K2_G9:")
    a(f"""
s_cmp_eq_u32 s{sCNT}, 0
s_cbranch_scc1 K2_SETF
""")
    a.ext(x_reads())
    a.ext(plan_a())
    for t in range(4):
        a(f"ds_read_b64_tr_b16 {v(WA + 4 * t, 2)}, v{vWAB} offset:{64 * t}")
    a.ext(wa_reads(sNB1))
    a.ext(m_reads(sNB1, "gt"))
    for i in range(0, 8, 2):
        a(f"v_mov_b64 {v(S + i, 2)}, 0")
        a(f"v_mov_b64 {v(M + i, 2)}, 0")
    a("s_waitcnt lgkmcnt(0)")
    for t in range(4):
        a(mf8(T + 16 * t, EE + 2 * t, SM, None))
    a("s_waitcnt vmcnt(16)")
    stamp(a, 5)
    a.ext(x_build())
    a.ext(plan_b())
    a(mf(PH, XC, WA, R0))
    a(f"""
s_mov_b32 s{sVAL1}, s{sVAL2}
s_mov_b32 s{sNBF}, s{sNB0}
s_mov_b32 s{sHEAD}, s{sNB0}
s_mov_b32 s{sNEW0}, 0
s_mov_b32 s{sIT}, 0
""")
    if OPT["prio"]:
        a("s_setprio 3")

    def shifts(R):
        return [f"v_lshlrev_b64 {v(PL + r, 2)}, 16, {v(R + r, 2)}" for r in range(0, 16, 2)]

    a("K2_LOOP:")
    a(seg(3, 0))
    a.ext(shifts(R0))
    e, r = spread(ld_x() + ld_r(0))
    e.setdefault(0, []).insert(0, seg(3, 1))
    e.setdefault(3, []).insert(0, mf(PL, XC, WA + 4, PL))
    a.ext(batch(PH, 0, e, r))
    sr = [f"ds_read_b64_tr_b16 {v(S + 2 * q, 2)}, v{vSRD} offset:{576 * q}" for q in range(4)]
    sr.append(f"ds_write_b64 v{vSA0}, {v(Z, 2)}")
    e, r = spread(sr, 1)
    a.ext(batch(PH, 1, e, r))
    a(f"""
s_cmp_eq_u32 s{sNEW0}, 0
s_cbranch_scc1 K2_L1
s_call_b64 s[66:67], K2_FLUSH
""")
    for t in range(4):
        a(mf8(T + 16 * t, EE + 2 * t, SM, None))
    a(f"""
s_mov_b32 s{sNBF}, s{sNB0}
s_cmp_gt_u32 s{sNB0}, s{sHEAD}
s_cbranch_scc0 K2_L1
s_lshl_b32 s77, s{sWAVE}, 2
v_mov_b32 v{t0}, s77
ds_write_b32 v{t0}, v{vPCON} offset:{FLAG + 16}
K2_L1:
s_mov_b32 s{sNLF}, s{sNL0}
s_waitcnt lgkmcnt(0)
""")
    a.ext(batch(PL, 0, {0: [seg(0, 0)], 3: [seg(0, 1)]},
                {0: ["s_waitcnt vmcnt(17)", mf(PH, XC, WA + 8, R1)]}))
    a.ext(batch(PL, 1))
    a(seg(1, 0))
    a.ext(shifts(R1))
    e, r = spread(ld_r(1), 1)
    e.setdefault(0, []).insert(0, seg(1, 1))
    e.setdefault(3, []).insert(0, mf(PL, XC, WA + 12, PL))
    a.ext(batch(PH, 0, e, r))
    a.ext(x_reads())
    a.ext(plan_a())
    a(f"s_cmp_eq_u32 s{sNEW1}, 0\ns_cbranch_scc1 K2_L2")
    a.ext(wa_reads(sNB1))
    a("K2_L2:")
    a.ext(batch(PH, 1))
    a.ext(batch(PL, 0, {0: [seg(2, 0)], 3: [seg(2, 1)]}))
    a("s_waitcnt vmcnt(16) lgkmcnt(0)")
    a.ext(x_build())
    a.ext(plan_b())
    a.ext(batch(PL, 1, {0: [mf(PH, XC, WA, R0)]}))
    if OPT["prio"]:
        a(f"s_add_u32 s{sIT}, s{sIT}, 1")
        for n, (it, pr) in enumerate(((2, 2), (4, 1), (6, 0))):
            a(f"s_cmp_lg_u32 s{sIT}, {it}\ns_cbranch_scc1 K2_PR{n}\ns_setprio {pr}\nK2_PR{n}:")
    a(f"""
s_cmp_lg_u32 s{sVAL1}, 0
s_mov_b32 s{sVAL1}, s{sVAL2}
s_cbranch_scc1 K2_LOOP
""")
    a(seg(3, 0))
    a(seg(3, 1))
    a(f"""
s_lshl_b32 s77, s{sWAVE}, 12
s_add_u32 s77, s77, {WS_W + 65536}
v_lshl_add_u32 v{t4}, v{vLANE}, 4, s77
""")
    for k in range(4):
        a(f"global_load_dwordx4 {v(AD + 4 * k, 4)}, v{t4}, s[24:25] offset:{1024 * k}")
    a(f"""
ds_write_b64 v{vSA0}, {v(Z, 2)}
s_cmp_eq_u32 s{sWAVE}, 7
s_cbranch_scc1 K2_W2
s_lshl_b32 s77, s{sWAVE}, 2
v_mov_b32 v{t0}, s77
{"s_mov_b32 s79, 0" if OPT["safe"] else ""}
K2_W1:
{"s_add_u32 s79, s79, 1" if OPT["safe"] else ""}
{"s_cmp_gt_u32 s79, 100000" if OPT["safe"] else ""}
{"s_cbranch_scc1 K2_W2" if OPT["safe"] else ""}
ds_read_b32 v{t1}, v{t0} offset:{FLAG + 20}
s_waitcnt lgkmcnt(0)
v_readfirstlane_b32 s77, v{t1}
s_cmp_eq_u32 s77, 0
s_cbranch_scc1 K2_W1
K2_W2:
""")
    a.ext(m_reads(sNBF, "eq"))
    a("s_nop 0\ns_waitcnt lgkmcnt(0)")
    for t in range(4):
        a(mf8(T + 16 * t, EE + 2 * t, SM, T + 16 * t))
    a(f"""
s_call_b64 s[66:67], K2_FLUSH
s_branch K2_SETF2
K2_SETF:
s_lshl_b32 s77, s{sWAVE}, 12
s_add_u32 s77, s77, {WS_W + 65536}
v_lshl_add_u32 v{t4}, v{vLANE}, 4, s77
""")
    for k in range(4):
        a(f"global_load_dwordx4 {v(AD + 4 * k, 4)}, v{t4}, s[24:25] offset:{1024 * k}")
    a(f"""
K2_SETF2:
s_lshl_b32 s77, s{sWAVE}, 2
v_mov_b32 v{t0}, s77
ds_write_b32 v{t0}, v{vPCON} offset:{FLAG + 16}
""")
    stamp(a, 6)
    a(f"""
s_cmp_eq_u32 s{sMORE}, 0
s_cbranch_scc1 K2_FINAL
s_add_u32 s{sDONE}, s{sDONE}, s{sSPB}
K2_AGAIN:
s_waitcnt vmcnt(0) lgkmcnt(0)
s_barrier
v_lshlrev_b32 v{t0}, 3, v{vLANE}
ds_write_b64 v{t0}, {v(Z, 2)} offset:{HIST}
ds_write_b64 v{t0}, {v(Z, 2)} offset:{HIST + 64}
s_waitcnt lgkmcnt(0)
s_barrier
s_branch K2_BATCH
""")
    a(f"""
K2_FLUSH:
s_mul_i32 s77, s{sNBF}, 272
s_sub_u32 s79, s{sNLF}, s{sNBF}
s_lshl_b32 s78, s{sNBF}, 5
v_cmp_ge_i32 vcc, s79, v{vNP}
v_add_u32 v{t4}, s77, v{vMB}
v_mov_b32 v{t0}, {OOB}
v_add_u32 v{t5}, s78, v{vPB}
v_cndmask_b32 v{t4}, v{t0}, v{t4}, vcc
v_add_u32 v{t3}, {WX}, v{vH8}
""")
    for t in range(4):
        for i in range(8):
            a(f"v_cvt_pk_bf16_f32 v{T + 16 * t + i}, v{T + 16 * t + 2 * i}, v{T + 16 * t + 2 * i + 1}")
        for k in range(2):
            o = 8 * t + 4 * k
            a(f"ds_read2_b64 {v(T + 16 * t + 8 + 4 * k, 4)}, v{t3} offset0:{o} offset1:{o + 2}")
            a(f"ds_write2_b64 v{t4}, {v(T + 16 * t + 4 * k, 2)}, {v(T + 16 * t + 4 * k + 2, 2)} offset0:{o} offset1:{o + 2}")
    a.ext(m_reads(sNB0, "gt"))
    a("s_waitcnt lgkmcnt(5)")
    for i in range(8):
        for t in range(4):
            a(f"v_dot2_f32_bf16 v{t0 + t}, v{T + 16 * t + i}, v{T + 16 * t + 8 + i}, {'0' if i == 0 else v(t0 + t)}")
    a(f"""
s_nop 0
v_add_f32 v{t0}, v{t0}, v{t1}
s_nop 0
v_add_f32 v{t2}, v{t2}, v{t3}
v_add_f32 v{t0}, v{t0}, v{t2}
v_cvt_f64_f32 {v(t2, 2)}, v{t0}
s_waitcnt lgkmcnt(0)
ds_add_f64 v{t5}, {v(t2, 2)} offset:{POS}
s_setpc_b64 s[66:67]
""")

    MF, HRS = T, R0
    a(f"""
K2_FINAL:
s_setprio 0
v_and_b32 v{t0}, 15, v{vLANE}
v_lshrrev_b32 v{t1}, 4, v{vLANE}
v_mul_u32_u24 v2, 272, v{t0}
v_lshl_add_u32 v2, v{t1}, 4, v2
s_lshl_b32 s77, s{sWAVE}, 1
v_lshrrev_b32 v{t2}, 1, v{t1}
v_add_u32 v{t2}, s77, v{t2}
v_xor_b32 v{t2}, v{t2}, v{t0}
v_lshlrev_b32 v{t2}, 4, v{t2}
v_lshl_add_u32 v{t2}, v{t0}, 8, v{t2}
v_and_b32 v{t3}, 1, v{t1}
v_lshl_add_u32 v{t2}, v{t3}, 3, v{t2}
v_add_u32 v3, {HR}, v{t2}
s_waitcnt vmcnt(4)
""")
    for mt in range(7):
        a(f"ds_read_b64 {v(PH + 2 * mt, 2)}, v3 offset:{4096 * mt}")
    a(f"""
s_mul_i32 s78, s{sN0}, 6
v_lshl_add_u32 v4, v0, 1, s78
v_mul_u32_u24 v{t2}, 171, v0
v_lshrrev_b32 v{t2}, 9, v{t2}
v_add_lshl_u32 v5, v{t2}, v0, 2
v_lshlrev_b32 v6, 1, v5
v_cmp_gt_u32 vcc, {3 * BS}, v0
v_mov_b32 v{t2}, {N * 6}
s_add_u32 s12, s20, {N * 256}
v_cndmask_b32 v4, v{t2}, v4, vcc
s_addc_u32 s13, s21, 0
s_mov_b32 s14, {N * 6}
s_mov_b32 s15, 0x20000
ds_read_b32 v7, v5 offset:{PDL}
v_xor_b32 v{t2}, v{t0}, v{t1}
v_lshlrev_b32 v{t2}, 4, v{t2}
v_lshl_add_u32 v{t2}, v{t1}, 8, v{t2}
s_lshl_b32 s77, s{sWAVE}, 12
s_lshl_b32 s78, s{sN0}, 8
s_add_u32 s78, s78, s77
v_add_u32 v10, s78, v{t2}
v_xor_b32 v11, 64, v10
v_xor_b32 v12, 128, v10
v_xor_b32 v13, 192, v10
s_add_u32 s77, s77, {HR}
v_lshl_add_u32 v14, v{vLANE}, 4, s77
s_waitcnt lgkmcnt(0)
""")
    for mt in range(7):
        for q in range(2):
            a(f"v_lshlrev_b32 v{HRS + 4 * mt + 2 * q}, 16, v{PH + 2 * mt + q}")
            a(f"v_and_b32 v{HRS + 4 * mt + 2 * q + 1}, 0xffff0000, v{PH + 2 * mt + q}")
    a("s_barrier")
    stamp(a, 7)

    def mrd(mt):
        for k in range(4):
            a(f"ds_read_b128 {v(MF + 16 * (mt & 3) + 4 * k, 4)}, v2 offset:{MA + 16 * 272 * mt + 64 * k}")

    def mm(mt):
        return [mf16(H1 + 4 * mt, AD + 4 * k, MF + 16 * (mt & 3) + 4 * k, H1 + 4 * mt) for k in range(4)]

    def fin(mt, n, ins):
        P = H1 + 4 * mt
        ins = list(ins)
        for i in range(n):
            if ins:
                a(ins.pop(0))
            a(f"v_exp_f32 v{EE + i}, v{P + i}")
        for i in range(n):
            a(f"v_add_f32 v{EE + i}, 1.0, v{EE + i}")
        for i in range(n):
            a(f"v_rcp_f32 v{EE + i}, v{EE + i}")
        for i in range(0, n, 2):
            a(f"v_pk_mul_f32 {v(EE + i, 2)}, {v(P + i, 2)}, {v(EE + i, 2)}")
        for i in range(0, n, 2):
            a(f"v_pk_fma_f32 {v(EE + i, 2)}, {v(EE + i, 2)}, s[70:71], {v(HRS + 4 * mt + i, 2)}")
        for i in range(0, n, 2):
            a(f"v_cvt_pk_bf16_f32 v{M + i // 2}, v{EE + i}, v{EE + i + 1}")
        for q in range(n // 4):
            a(f"ds_write_b64 v3, {v(M + 2 * q, 2)} offset:{4096 * (mt + q)}")

    a(f"ds_read_b64 v[8:9], v6 offset:{POS + 8}")
    for mt in range(4):
        mrd(mt)
    a("s_waitcnt vmcnt(0) lgkmcnt(8)")
    x0, x1 = mm(0), mm(1)
    for k in range(4):
        a(x0[k])
        a(x1[k])
    mrd(4)
    mrd(5)
    a(f"""
v_cvt_f32_f64 v8, v[8:9]
v_fma_f32 v7, v8, s70, v7
v_cvt_pk_bf16_f32 v7, v7, v7
buffer_store_short v7, v4, s[12:15], 0 offen
s_waitcnt lgkmcnt(8)
""")
    x0, x1 = mm(2), mm(3)
    fin(0, 8, [q for k in range(4) for q in (x0[k], x1[k])])
    mrd(6)
    a("s_waitcnt lgkmcnt(6)")
    x0, x1 = mm(4), mm(5)
    fin(2, 8, [q for k in range(4) for q in (x0[k], x1[k])])
    a("s_waitcnt lgkmcnt(2)")
    fin(4, 8, mm(6))
    fin(6, 4, [])
    a(f"""
s_waitcnt lgkmcnt(0)
s_barrier
s_cmp_eq_u32 s{sWAVE}, 7
s_cbranch_scc1 K2_F9
""")
    for n in range(4):
        a(f"ds_read_b128 {v(T + 4 * n, 4)}, v14 offset:{1024 * n}")
    for n in range(4):
        a(f"s_waitcnt lgkmcnt({3 - n})")
        a(f"buffer_store_dwordx4 {v(T + 4 * n, 4)}, v{10 + n}, s[36:39], 0 offen offset:{1024 * n} {OPT['stout']}")
    a("K2_F9:")
    stamp(a, 8)
    stamps_out(a, 9, 0x40000, f"s{sWAVE}")
    a("K2_END:\ns_endpgm")


def kd(name, vgpr, sgpr):
    return f""".amdhsa_kernel {name}
  .amdhsa_next_free_vgpr {vgpr}
  .amdhsa_next_free_sgpr {sgpr}
  .amdhsa_accum_offset {vgpr}
  .amdhsa_group_segment_fixed_size 0
  .amdhsa_kernarg_size 88
  .amdhsa_user_sgpr_count 2
  .amdhsa_user_sgpr_kernarg_segment_ptr 1
  .amdhsa_system_sgpr_workgroup_id_x 1
.end_amdhsa_kernel
"""


def build(**opt):
    OPT.update(opt)
    here = os.path.dirname(os.path.abspath(__file__))
    ref = open(os.path.join(here, "header.txt")).read()
    a1, a2 = Asm(), Asm()
    k1(a1)
    k2(a2)
    probs = check(a1.lines) + check(a2.lines)
    for p in probs:
        print("HAZARD", p, file=sys.stderr)
    txt = ref
    txt += f"; @launch kernel=k1_kernel grid=({256 + NG + 3},1,1) block=(512,1,1) lds=65536\n"
    txt += f"; @launch kernel=k2_kernel grid=(256,1,1) block=(512,1,1) lds={K2_LDS}\n"
    txt += '.amdgcn_target "amdgcn-amd-amdhsa--gfx950"\n.text\n'
    txt += ".globl k1_kernel\n.type k1_kernel,@function\n" + a1.text()
    txt += ".globl k2_kernel\n.type k2_kernel,@function\n" + a2.text()
    txt += '.section .rodata,"a"\n.p2align 6\n' + kd("k1_kernel", 128, 102) + ".p2align 6\n" + kd("k2_kernel", 256, 102)
    return txt, probs


if __name__ == "__main__":
    out = sys.argv[1] if len(sys.argv) > 1 else f"cdna_kernels/{NAME}.s"
    opt = {}
    for kv in sys.argv[2:]:
        k, val = kv.split("=", 1)
        opt[k] = int(val) if val.lstrip("-").isdigit() else val
    txt, probs = build(**opt)
    open(out, "w").write(txt)
    print("wrote", out, len(txt), "bytes;", len(probs), "hazards")
```

```python
import sys; sys.path.insert(0, "gen")
import gen as G
from asmlib import Asm
def fused(out, probe):
    G.OPT.update(stamps=0, ldnt="", hnt="", stoff="sc1", sortfirst=0)
    a1, a2 = Asm(), Asm(); G.k1(a1); G.k2(a2)
    L1 = a1.lines
    i_sort = L1.index("; ---- sort role: chunk s45 ----"); i_gemm = L1.index("K1_GEMM:")
    sort = L1[i_sort:i_gemm]; gemm = L1[i_gemm:]
    assert sort[-1] == "s_endpgm"; sort = sort[:-1]
    gemm = ["s_branch F_SORT" if x == "s_endpgm" else x for x in gemm]
    L2 = a2.lines[a2.lines.index("k2_kernel:") + 1:]
    name = G.NAME + "_kernel"
    a = Asm()
    a(f".p2align 8\n{name}:")
    a("""s_cmp_ge_u32 s2, 256
s_cbranch_scc1 K2_END
s_memrealtime s[98:99]
s_load_dwordx16 s[4:19], s[0:1], 0
s_load_dwordx2 s[24:25], s[0:1], 80
v_lshrrev_b32 v2, 6, v0
s_mov_b32 s45, s2
s_mov_b32 s26, s2
v_readfirstlane_b32 s44, v2""")
    a.ext(gemm)
    a("F_SORT:\ns_mov_b64 exec, -1\ns_load_dwordx16 s[4:19], s[0:1], 0\ns_waitcnt lgkmcnt(0)\ns_barrier")
    a.ext(sort)
    a("""s_mov_b64 exec, -1
s_load_dwordx2 s[22:23], s[0:1], 72
s_waitcnt vmcnt(0) lgkmcnt(0)
s_barrier
s_cmp_lg_u32 s44, 0
s_cbranch_scc1 F_W2
v_mov_b32 v1, 0
v_mov_b32 v2, 1
s_mov_b64 exec, 1
global_atomic_add v1, v2, s[22:23] sc1
s_mov_b32 s26, 0
F_W1:
global_load_dword v3, v1, s[22:23] sc1
s_add_u32 s26, s26, 1
s_cmp_gt_u32 s26, 20000
s_cbranch_scc1 F_W3
s_waitcnt vmcnt(0)
v_readfirstlane_b32 s27, v3
s_cmp_lt_u32 s27, 256
s_cbranch_scc1 F_W1
F_W3:
s_mov_b64 exec, -1
buffer_inv sc1
s_waitcnt vmcnt(0)
F_W2:
s_barrier""")
    if probe:
        i = L2.index("K2_END:")
        L2 = L2[:i] + """s_cmp_lg_u32 s2, 40
s_cbranch_scc1 K2_END
P_L:
s_memrealtime s[8:9]
s_waitcnt lgkmcnt(0)
s_sub_u32 s8, s8, s98
s_cmp_lt_u32 s8, 10000
s_cbranch_scc1 P_L""".split("\n") + L2[i:]
    a.ext(L2)
    txt = open("header.txt").read()
    txt += f"; @launch grid=(256,1,1) block=(512,1,1) lds={G.K2_LDS}\n"
    txt += '.amdgcn_target "amdgcn-amd-amdhsa--gfx950"\n.text\n'
    txt += f".globl {name}\n.type {name},@function\n" + a.text()
    txt += '.section .rodata,"a"\n.p2align 6\n' + G.kd(name, 256, 102)
    open(out, "w").write(txt)
    open(out.replace(".s", "_list.s"), "w").write(txt.replace("; @launch grid", f"; @launch kernel={name} grid"))
fused("fu.s", 0); fused("fu_probe.s", 1)
```

```python
import os
import struct
import sys

sys.path.insert(0, os.path.dirname(os.path.abspath(__file__)))
from asmlib import Asm, check, s, v

NAME = "standalone__cheap_equivariant_egnn__graph"
N, E = 25000, 400000
CH, BS = 1568, 98
CHB = CH * 12
WS_EPO, WS_TAB, WS_OFF, WS_F2, WS_X = 0, 4096, 0x640000, 0x6C0000, 0x6E0000
P4 = 0x4A0000
WS_DBG = 0x1000000


def f2u(x):
    return struct.unpack("<I", struct.pack("<f", x))[0]


C_FWD = f2u(-1.4426950408889634)
C_INV = f2u(-0.6931471805599453)
OOB = 0x30000

OPT = dict(stout="", stamps=0, prio=2, safe=0, x_nold=0, x_nox=0, x_norow=0, cpf=1, sched=1, hs="sc1",
           gpoll=-1, gsplit=0, f2s=6, pe=1, pp=1, tsfirst=0)
SPIN = 40000


def scan64(a, r):
    for d in ("row_shr:1 row_mask:0xf", "row_shr:2 row_mask:0xf", "row_shr:4 row_mask:0xf",
              "row_shr:8 row_mask:0xf", "row_bcast:15 row_mask:0xa", "row_bcast:31 row_mask:0xc"):
        a("s_nop 1")
        a(f"v_add_u32_dpp {r}, {r}, {r} {d} bank_mask:0xf")


STAMP_V = 35


def stamp(a, k):
    if OPT["stamps"]:
        a("s_memrealtime s[98:99]" if k < 30 else "s_memtime s[98:99]")
        a(f"s_waitcnt lgkmcnt(0)\nv_writelane_b32 v{STAMP_V}, s98, {k}")


def stamps_out(a, wave):
    if not OPT["stamps"]:
        return
    a(f"""
s_mov_b64 exec, -1
s_lshl_b32 s3, s2, 3
s_add_u32 s3, s3, {wave}
s_lshl_b32 s3, s3, 8
s_add_u32 s3, s3, {WS_DBG}
v_and_b32 v1, 63, v0
v_lshl_add_u32 v1, v1, 2, s3
global_store_dword v1, v{STAMP_V}, s[24:25]
""")


MA, SB, POS, HIST, FLAG, BASE = 0, 28832, 47264, 50624, 51136, 51200
PDL, OH, WX, SRC, AUX, AT, HR = 51712, 53760, 54016, 54272, 62720, 71184, 101376
W2L = HR + 112 * 256
SG = HR + 128 * 256
K2_LDS = W2L + 32768
CAP4 = 8192

vLANE, vAUXA, vSRCA, vSROW, vSRD, vWAB, vMRD, vMB, vPB, vH8, vNP, vPCON, vXOFF, vSA0, vSA1 = range(1, 16)
t0, t1, t2, t3, t4, t5 = range(16, 22)
vPDA, vOHA, vAUX, SEL, Z, SM = 22, 23, 24, 26, 28, 30
X, XC, S, EE, M = 32, 36, 40, 48, 56
R0, R1, PH, PL, T, H1, PD, WA, AD = 64, 80, 96, 112, 128, 192, 220, 224, 240
vREM, vKA, vWE, vWXD, vP4 = 22, 23, 40, 41, 44

sWAVE, sBIN, sN0, sDONE, sSPB, sTOT, sMORE, sINIT = range(44, 52)
sTILE, sEND, sDUM, sNBP, sNLP, sVAL2, sNB1, sNEW1, sVAL1, sNEW0, sNB0, sNBF = range(52, 64)
sGEMM, sREP, sNEW2, sIT, sCNT = 72, 73, 74, 75, 76
sNL0, sNL1, sNLF, sHEAD, sTAIL, sRD = 8, 9, 10, 11, 12, 13
sNONCE, sSPIN = 42, 43


def mf(d, aa, bb, c):
    cc = "0" if c is None else v(c, 16)
    return f"v_mfma_f32_32x32x16_bf16 {v(d, 16)}, {v(aa, 4)}, {v(bb, 4)}, {cc}"


def mf8(d, aa, bb, c):
    cc = "0" if c is None else v(c, 16)
    return f"v_mfma_f32_32x32x8_bf16 {v(d, 16)}, {v(aa, 2)}, {v(bb, 2)}, {cc}"


def mf16(d, aa, bb, c):
    cc = "0" if c is None else v(c, 4)
    return f"v_mfma_f32_16x16x32_bf16 {v(d, 4)}, {v(aa, 4)}, {v(bb, 4)}, {cc}"


B3 = "dst_sel:DWORD dst_unused:UNUSED_PAD src0_sel:DWORD src1_sel:BYTE_3"


def lines(txt):
    return [x.strip() for x in txt.strip().split("\n") if x.strip()]


def plan_a():
    return lines(f"""
s_add_u32 s77, s{sNBP}, 8
s_cmp_ge_i32 s{sNLP}, s77
s_cselect_b32 s{sREP}, 1, 0
s_cselect_b32 s{sNBP}, s77, s{sNBP}
s_cselect_b32 s77, 0, 128
s_add_u32 s{sTILE}, s{sTILE}, s77
s_cmp_lt_u32 s{sTILE}, s{sEND}
s_cselect_b32 s{sVAL2}, 1, 0
s_cselect_b32 s{sRD}, s{sTILE}, s{sDUM}
v_add_u32 v{t0}, s{sRD}, v{vAUXA}
ds_read2st64_b32 {v(vAUX, 2)}, v{t0} offset0:{SRC // 256} offset1:{AUX // 256}
s_sub_u32 s77, s{sTOT}, s{sTILE}
s_lshr_b32 s77, s77, 2
s_sub_u32 s77, s77, 1
s_min_u32 s79, s77, 31""")


def ad_reads():
    return [f"v_add_u32 v{t1}, s{sRD}, v{vSRCA}"] + [
        f"ds_read_b128 {v(AD + 4 * q, 4)}, v{t1} offset:{SRC + 16 + 32 * q}" for q in range(4)]


def plan_s():
    return lines(f"""
v_readlane_b32 s78, v{vAUX + 1}, 0
v_readlane_b32 s79, v{vAUX + 1}, s79
s_add_u32 s77, s{sNBP}, 8
s_lshr_b32 s78, s78, 24
s_lshr_b32 s79, s79, 24
s_cmp_eq_u32 s{sVAL2}, 0
s_cselect_b32 s{sNLP}, -1, s79
s_cmp_ge_i32 s{sNLP}, s77
s_cselect_b32 s{sNEW2}, 1, s{sREP}
s_cselect_b32 s78, s78, s{sNBP}
s_cmp_eq_u32 s{sREP}, 0
s_cselect_b32 s{sNBP}, s78, s{sNBP}""")


def plan_v():
    return lines(f"""
v_subrev_u32_sdwa v{t0}, s{sNBP}, v{vAUX + 1} {B3}
v_lshlrev_b32_sdwa v{vPDA}, 4, v{vAUX + 1} {B3}
v_and_b32 v{t1}, 0xffffff, v{vAUX + 1}
v_lshrrev_b32 v{t2}, 4, v{vAUX}
v_add_u32 v{t2}, v{t2}, v{vPCON}
v_min_u32 v{t0}, 8, v{t0}
v_cndmask_b32 v{vXOFF}, v{t1}, v{t2}, s[64:65]
v_lshl_add_u32 v{vOHA}, v{t0}, 4, v{vH8}
v_lshl_add_u32 v{vSA1}, v{t0}, 3, v{vSROW}""") + (
        ["s_waitcnt lgkmcnt(0)"] + [f"v_min_u32 v{AD + r}, {N * 256 + 128}, v{AD + r}" for r in range(16)] +
        [f"v_min_u32 v{vXOFF}, {P4 + N * 16}, v{vXOFF}"] if OPT["safe"] else []) + (
        [f"v_mov_b32 v{vXOFF}, {P4}"] if OPT["x_nox"] == 1 else [])


def rotate():
    return lines(f"""
s_mov_b32 s{sNEW0}, s{sNEW1}
s_mov_b32 s{sNB0}, s{sNB1}
s_mov_b32 s{sNL0}, s{sNL1}
s_mov_b32 s{sNEW1}, s{sNEW2}
s_mov_b32 s{sNB1}, s{sNBP}
s_mov_b32 s{sNL1}, s{sNLP}""")


def cost(x):
    return 8 if x.startswith(("v_exp", "v_rcp", "v_mfma")) else 4


def sched(main, side, first=0, last=None):
    last = len(main) if last is None else last
    ok, since = [], 99
    for g, x in enumerate(main):
        since = 0 if x.startswith("v_mfma") else since + cost(x)
        if first <= g < last and (since >= 40 or not OPT["sched"]):
            ok.append(g)
    put = {}
    for n, x in enumerate(side):
        put.setdefault(ok[n * len(ok) // len(side)], []).append(x)
    out = []
    for g, x in enumerate(main):
        out.append(x)
        out += put.get(g, [])
    return out


def x_reads():
    return [f"ds_read_b96 {v(PD, 3)}, v{vPDA} offset:{PDL}",
            f"ds_read_b64 {v(XC + 2, 2)}, v{vOHA} offset:{OH}"]


def x_build():
    return [f"v_pk_add_f32 {v(t0, 2)}, {v(PD, 2)}, {v(X, 2)} neg_lo:[0,1] neg_hi:[0,1]",
            f"v_sub_f32 v{t2}, v{PD + 2}, v{X + 2}",
            f"v_mov_b32 v{XC + 1}, v{X + 1}",
            f"v_mul_f32 v{t3}, v{t0}, v{t0}",
            f"v_mov_b32 v{vSA0}, v{vSA1}",
            f"v_fmac_f32 v{t3}, v{t1}, v{t1}",
            f"v_cvt_pk_bf16_f32 v{t0}, 1.0, v{t0}",
            f"v_fmac_f32 v{t3}, v{t2}, v{t2}",
            f"v_cvt_pk_bf16_f32 v{t1}, v{t1}, v{t2}",
            f"v_cvt_pk_bf16_f32 v{t3}, v{t3}, v{t3}",
            f"ds_write_b64 v{vSA0}, {v(t0, 2)}",
            f"v_cndmask_b32 v{XC}, v{X}, v{t3}, s[64:65]"]


def ld_x():
    return [f"global_load_dwordx3 {v(X, 3)}, v{vXOFF}, s[40:41] {OPT['hs']}"]


def ld_r(half):
    R = R1 if half else R0
    if OPT["x_nold"]:
        return []
    return [f"buffer_load_dword v{R + r}, v{Z if OPT['x_norow'] else AD + r}, s[28:31], 0 offen" + (" offset:128 " if half else " ") + OPT["hs"]
            for r in range(16)]


def wa_reads(nb):
    out = [f"s_mul_i32 s77, s{nb}, 264", f"v_add_u32 v{t3}, s77, v{vWAB}"]
    for t in range(4):
        out.append(f"ds_read_b64_tr_b16 {v(WA + 4 * t + 2, 2)}, v{t3} offset:{64 * t + 8 * 264}")
    return out


def m_reads(nb, cmp):
    out = [f"s_mul_i32 s77, s{nb}, 272", f"s_sub_u32 s78, s{sTAIL}, s{nb}",
           f"v_add_u32 v{SM}, s77, v{vMRD}", f"v_cmp_{cmp}_i32 vcc, s78, v{vNP}"]
    for t in range(4):
        out.append(f"ds_read_b64_tr_b16 {v(EE + 2 * t, 2)}, v{SM} offset:{64 * t}")
    out += [f"v_cndmask_b32 v{SM}, 0, v{SEL}, vcc", f"v_cndmask_b32 v{SM + 1}, 0, v{SEL + 1}, vcc"]
    return out


def batch(P, b, in_exp=(), in_rcp=()):
    in_exp, in_rcp = dict(in_exp), dict(in_rcp)
    o = []
    for i in range(8):
        o += in_exp.get(i, [])
        o.append(f"v_exp_f32 v{EE + i}, v{P + 8 * b + i}")
    o += in_exp.get(8, [])
    for i in range(0, 8, 2):
        o.append(f"v_pk_add_f32 {v(EE + i, 2)}, {v(EE + i, 2)}, 1.0 op_sel_hi:[1,0]")
    for i in range(8):
        o += in_rcp.get(i, [])
        o.append(f"v_rcp_f32 v{EE + i}, v{EE + i}")
    o += in_rcp.get(8, [])
    for i in range(0, 8, 2):
        o.append(f"v_pk_mul_f32 {v(EE + i, 2)}, {v(P + 8 * b + i, 2)}, {v(EE + i, 2)}")
    for i in range(4):
        o.append(f"v_cvt_pk_bf16_f32 v{M + 4 * b + i}, v{EE + 2 * i}, v{EE + 2 * i + 1}")
    return o


def seg(t, k):
    return mf(T + 16 * t, M + 4 * k, S + 4 * k, T + 16 * t)


def spread(lst, first=0):
    e, r = {}, {}
    for n, x in enumerate(lst):
        n += first
        if n < 9:
            e.setdefault(n, []).append(x)
        else:
            r.setdefault(min(n - 8, 8), []).append(x)
    return e, r


def node_gemm(a, do_a, do_h, hooks):
    W1, WH, HF, AC = T, T + 16, T + 32, PL
    a(f"""
v_and_b32 v{t0}, 15, v{vLANE}
v_lshrrev_b32 v{t1}, 4, v{vLANE}
v_xor_b32 v{t2}, v{t0}, v{t1}
v_lshlrev_b32 v{t2}, 4, v{t2}
v_lshl_add_u32 v{t2}, v{t0}, 8, v{t2}
v_add_u32 v{EE}, {HR}, v{t2}
""")
    for k in range(1, 4):
        a(f"v_xor_b32 v{EE + k}, {64 * k}, v{EE}")

    def rd(mt):
        for k in range(4):
            a(f"ds_read_b128 {v(HF + 16 * (mt & 1) + 4 * k, 4)}, v{EE + k} offset:{4096 * mt}")

    rd(0)
    rd(1)
    if do_a:
        a(f"""
s_lshl_b32 s77, s{sWAVE}, 5
s_add_u32 s77, s77, {AT + 8 * 264}
v_mul_u32_u24 v{t2}, 264, v{t0}
v_lshl_add_u32 v{t2}, v{t1}, 3, v{t2}
v_add_u32 v{EE + 4}, s77, v{t2}
v_cmp_gt_u32 vcc, 10, v{t0}
v_mov_b32 v{t2}, {OOB}
s_nop 0
v_cndmask_b32 v{EE + 5}, v{t2}, v{EE + 4}, vcc
""")

    def post(mt):
        o = []
        ac = AC + 4 * (mt & 3)
        if do_a:
            o += [f"v_mul_f32 v{ac + r}, s68, v{ac + r}" for r in range(4)]
        if do_h:
            o += [f"v_mul_f32 v{H1 + 4 * mt + r}, s68, v{H1 + 4 * mt + r}" for r in range(4)]
        if do_a:
            o += [f"v_cvt_pk_bf16_f32 v{ac}, v{ac}, v{ac + 1}", f"v_cvt_pk_bf16_f32 v{ac + 1}, v{ac + 2}, v{ac + 3}",
                  f"ds_write_b64 v{EE + (5 if mt == 6 else 4)}, {v(ac, 2)} offset:{16 * 264 * mt}"]
        return o

    lag = 1 if (do_a and do_h) else 2
    out = [4, 4]
    for mt in range(7):
        pend = list(post(mt - lag)) if mt >= lag else []
        a(f"s_waitcnt lgkmcnt({out[1]})")
        ms = []
        for k in range(4):
            hf = HF + 16 * (mt & 1) + 4 * k
            if do_a:
                ms.append(mf16(AC + 4 * (mt & 3), W1 + 4 * k, hf, None if k == 0 else AC + 4 * (mt & 3)))
            if do_h:
                ms.append(mf16(H1 + 4 * mt, WH + 4 * k, hf, None if k == 0 else H1 + 4 * mt))
        a.ext(ms)
        n = 0
        if mt + 2 < 7:
            rd(mt + 2)
            n = 4
        a.ext(pend)
        if pend and do_a:
            n += 1
        out = [out[1], n]
        if mt in hooks:
            hooks[mt]()
    a("s_nop 3")
    for mt in range(7 - lag, 7):
        if mt == 6:
            a("s_nop 3")
        a.ext(post(mt))


def w_voff(dst):
    return lines(f"""
v_lshrrev_b32 v{t0}, 4, v{vLANE}
v_and_b32 v{t1}, 15, v{vLANE}
s_lshl_b32 s77, s{sWAVE}, 12
v_lshlrev_b32 v{t2}, 2, v{t0}
v_xor_b32 v{t2}, v{t2}, v{t1}
v_lshl_add_u32 v{t0}, v{t0}, 8, s77
v_lshl_add_u32 v{dst}, v{t2}, 4, v{t0}""")


def w_dma(voff, srd, soff, base):
    return [f"s_lshl_b32 s77, s{sWAVE}, 12", f"s_add_u32 m0, s77, {base}", "s_nop 0"] + [
        f"buffer_load_dwordx4 v{voff}, {s(srd, 4)}, {soff} offen offset:{1024 * n} lds" for n in range(4)]


def w_fragaddr(dst, base):
    return lines(f"""
v_bfe_u32 v{t0}, v{vLANE}, 2, 2
v_lshrrev_b32 v{t1}, 4, v{vLANE}
v_lshl_add_u32 v{t1}, v{t1}, 3, v{t0}
s_lshr_b32 s77, s{sWAVE}, 1
v_xor_b32 v{t0}, s77, v{t0}
v_lshlrev_b32 v{t1}, 8, v{t1}
v_lshl_add_u32 v{t1}, v{t0}, 6, v{t1}
v_and_b32 v{t0}, 3, v{vLANE}
s_and_b32 s77, s{sWAVE}, 1
s_lshl_b32 s77, s77, 5
s_add_u32 s77, s77, {base}
v_lshl_add_u32 v{t1}, v{t0}, 3, v{t1}
v_add_u32 v{dst}, s77, v{t1}""")


def w_frags(dst, addr, off):
    return [f"ds_read_b64_tr_b16 {v(dst + 4 * k + 2 * q, 2)}, v{addr} offset:{off + 8192 * k + 1024 * q}"
            for k in range(4) for q in range(2)]


def k2(a):
    hs = OPT["hs"]
    KEYS = 2048
    EAL = KEYS + CH * 4
    D, SR, EA, BN, RK, KY, SC, OF = 64, 68, 72, 80, 84, 88, 96, H1
    vWV = 42

    def consts():
        a(f"""
s_add_u32 s28, s24, {WS_TAB - 128}
s_addc_u32 s29, s25, 0
s_and_b32 s29, s29, 0xffff
s_or_b32 s29, s29, 0x40000
s_mov_b32 s30, 64
s_mov_b32 s31, 0x800000
s_mov_b32 s64, 0
s_mov_b32 s65, -1
s_mov_b32 s70, {C_INV:#x}
s_mov_b32 s71, s70
v_and_b32 v{t0}, 31, v{vLANE}
v_lshrrev_b32 v{t1}, 5, v{vLANE}
v_lshl_add_u32 v{vAUXA}, v{t0}, 2, 16
v_lshlrev_b32 v{vSRCA}, 4, v{t1}
v_lshlrev_b32 v{vH8}, 3, v{t1}
v_lshrrev_b32 v{vNP}, 2, v{t0}
v_and_b32 v{vPCON}, 1, v{vNP}
v_lshlrev_b32 v{vPCON}, 3, v{vPCON}
v_add_u32 v{vPCON}, {P4 - 8}, v{vPCON}
s_mul_i32 s77, s{sWAVE}, 2304
s_add_u32 s77, s77, {SB}
v_mul_u32_u24 v{t2}, 72, v{t0}
v_add_u32 v{t2}, s77, v{t2}
v_mov_b32 v{t5}, {OOB}
v_cndmask_b32 v{vSROW}, v{t5}, v{t2}, s[64:65]
v_lshlrev_b32 v{vPB}, 3, v{t0}
v_bfe_u32 v{t2}, v{vLANE}, 2, 2
v_and_b32 v{t3}, 3, v{vLANE}
v_cmp_eq_u32 vcc, 0, v{t3}
v_lshlrev_b32 v{t3}, 3, v{t3}
v_and_b32 v{t4}, 16, v{vLANE}
v_lshl_add_u32 v{t3}, v{t4}, 1, v{t3}
v_lshl_add_u32 v{t4}, v{t1}, 2, v{t2}
v_mul_u32_u24 v{vSRD}, 72, v{t4}
v_add3_u32 v{vSRD}, v{vSRD}, v{t3}, s77
v_mul_u32_u24 v{vWAB}, 264, v{t4}
s_mov_b32 s77, {AT}
v_add3_u32 v{vWAB}, v{vWAB}, v{t3}, s77
v_mul_u32_u24 v{vMRD}, 272, v{t4}
v_add_u32 v{vMRD}, v{vMRD}, v{t3}
v_mul_u32_u24 v{t3}, 272, v{vNP}
v_add_u32 v{t3}, v{t3}, v{vH8}
v_cndmask_b32 v{vMB}, v{t5}, v{t3}, vcc
v_lshrrev_b32 v{t3}, 2, v{vNP}
v_cmp_eq_u32 s[66:67], v{t3}, v{t1}
v_mov_b32 v{t4}, 0x3f80
s_and_b64 vcc, vcc, s[66:67]
v_mov_b32 v{t5}, 0
v_cndmask_b32 v{t4}, 0, v{t4}, vcc
v_lshlrev_b32 v{t2}, 4, v{t2}
v_lshlrev_b64 {v(SEL, 2)}, v{t2}, {v(t4, 2)}
""")

    a(f".p2align 8\n{NAME}_kernel:")
    a(f"""
s_cmp_ge_u32 s2, 256
s_cbranch_scc1 K2_END
s_load_dwordx16 s[4:19], s[0:1], 0
s_load_dwordx4 s[20:23], s[0:1], 64
s_load_dwordx2 s[24:25], s[0:1], 80
""")
    stamp(a, 0)
    a(f"""
v_lshrrev_b32 v{t0}, 6, v0
v_and_b32 v{vLANE}, 63, v0
v_readfirstlane_b32 s{sWAVE}, v{t0}
s_mul_i32 s26, s2, {CH * 4}
v_lshl_add_u32 v3, v0, 4, s26
v_lshlrev_b32 v{t1}, 2, v0
v_add_u32 v{t1}, {SG}, v{t1}
v_mov_b64 {v(Z, 2)}, 0
ds_write_b32 v{t1}, v{Z}
v_cmp_gt_u32 vcc, {CH // 4}, v0
s_mov_b64 s[30:31], vcc
v_cmp_gt_u32 vcc, {E * 4}, v3
s_and_b64 s[30:31], s[30:31], vcc
v_cndmask_b32 v3, 0, v3, s[30:31]
s_or_b64 s[28:29], s[30:31], 1
v_lshlrev_b32 v4, 1, v3
s_and_b32 s{sBIN}, s2, 7
s_lshl_b32 s{sBIN}, s{sBIN}, 5
s_lshr_b32 s3, s2, 3
s_add_u32 s{sBIN}, s{sBIN}, s3
s_mul_i32 s{sN0}, s{sBIN}, {BS}
s_waitcnt lgkmcnt(0)
s_mov_b64 exec, s[28:29]
global_load_dwordx4 {v(D, 4)}, v3, s[12:13]
s_mov_b64 exec, -1
s_barrier
s_mov_b64 exec, s[28:29]
global_load_dwordx4 {v(SR, 4)}, v3, s[10:11]
global_load_dwordx4 {v(EA, 4)}, v4, s[8:9]
global_load_dwordx4 {v(EA + 4, 4)}, v4, s[8:9] offset:16
s_mov_b64 exec, -1
s_add_u32 s77, s{sN0}, {BS}
s_lshl_b32 s58, s77, 8
s_min_u32 s34, s58, {N * 256}
s_mov_b32 s32, s4
s_mov_b32 s33, s5
s_mov_b32 s35, 0x20000
s_lshl_b32 s77, s{sWAVE}, 12
s_add_u32 m0, s77, {HR}
s_lshl_b32 s78, s{sN0}, 8
s_add_u32 s78, s77, s78
v_lshrrev_b32 v{t0}, 4, v{vLANE}
v_and_b32 v{t1}, 15, v{vLANE}
v_xor_b32 v{t1}, v{t0}, v{t1}
v_lshlrev_b32 v{t1}, 4, v{t1}
v_lshl_add_u32 v{t1}, v{t0}, 8, v{t1}
v_add_u32 v{t3}, s78, v{t1}
""")
    a.ext(w_voff(vWV))
    a(f"""
s_mov_b32 s36, s14
s_mov_b32 s37, s15
s_mov_b32 s38, {261 * 256}
s_mov_b32 s39, 0x20000
s_mov_b32 s60, s6
s_mov_b32 s61, s7
s_mov_b32 s62, {N * 6}
s_mov_b32 s63, 0x20000
v_min_u32 v{t1}, 127, v0
v_add_u32 v43, s{sN0}, v{t1}
v_mul_u32_u24 v{t1}, 6, v43
buffer_load_short_d16_hi v{vP4}, v{t1}, s[60:63], 0 offen
buffer_load_short_d16_hi v{vP4 + 1}, v{t1}, s[60:63], 0 offen offset:2
buffer_load_short_d16_hi v{vP4 + 2}, v{t1}, s[60:63], 0 offen offset:4
v_lshlrev_b32 v{t0}, 2, v{vLANE}
global_load_dword v{vWXD}, v{t0}, s[16:17]
s_add_u32 s77, s{sWAVE}, 257
s_cmp_lt_u32 s{sWAVE}, 4
s_cselect_b32 s77, s77, 256
s_lshl_b32 s77, s77, 8
buffer_load_dword v{vWE}, v{t0}, s[36:39], s77 offen
s_mov_b32 s16, s18
s_mov_b32 s17, s19
s_mov_b32 s18, 65536
s_mov_b32 s19, 0x20000
s_lshl_b32 s77, s3, 3
s_add_u32 s77, s77, s{sWAVE}
s_lshl_b32 s77, s77, 8
v_lshlrev_b32 v{t0}, 7, v{vLANE}
s_mov_b64 exec, 3
buffer_load_dword v{X}, v{t0}, s[36:39], s77 offen
buffer_load_dword v{X + 1}, v{t0}, s[16:19], s77 offen
s_mov_b64 exec, -1
v_mov_b32 v{vP4 + 3}, 0
v_lshlrev_b32 v43, 4, v43
v_add_u32 v43, {P4}, v43
""")
    for n in range(4):
        if n:
            a(f"v_xor_b32 v{t2}, {64 * n}, v{t3}")
        a(f"buffer_load_dwordx4 v{t2 if n else t3}, s[32:35], 0 offen offset:{1024 * n} lds")
    a(f"""
s_lshl_b32 s26, s2, 3
s_add_u32 s26, s26, s{sWAVE}
s_cmp_lg_u32 s26, 2047
s_cbranch_scc1 F_1
s_load_dword s26, s[24:25], {WS_EPO}
s_waitcnt lgkmcnt(0)
s_mul_i32 s26, s26, 0x2c9277b5
s_add_u32 s26, s26, 0xac564b05
v_mov_b32 v{t0}, s26
v_mov_b32 v{t1}, 1
s_mov_b64 exec, 1
global_store_dwordx2 v{Z}, {v(t0, 2)}, s[22:23] sc1
global_store_dword v{Z}, v{t0}, s[24:25] offset:{WS_EPO} sc1
s_mov_b64 exec, -1
F_1:
s_mov_b32 s27, 32768
s_movk_i32 s26, {-BS}
s_mov_b32 s79, {SG}
v_mov_b32 v92, 4
s_mov_b64 exec, s[30:31]
s_waitcnt vmcnt(14)
""")
    stamp(a, 1)
    for i in range(4):
        a(f"v_mul_u32_u24 v{BN + i}, 2675, v{D + i}")
        a(f"v_lshrrev_b32 v{BN + i}, 18, v{BN + i}")
        a(f"v_mad_i32_i24 v{KY + i}, v{BN + i}, s26, v{D + i}")
        a(f"v_lshl_add_u32 v{BN + i}, v{BN + i}, 2, s79")
        a(f"ds_add_rtn_u32 v{RK + i}, v{BN + i}, v92")
    a("s_mov_b64 exec, -1")
    a(f"""
v_lshl_add_u32 v93, v{vLANE}, 4, s79
s_waitcnt lgkmcnt(0)
s_barrier
ds_read_b128 {v(SC, 4)}, v93
s_waitcnt lgkmcnt(0)
v_add_u32 v{SC + 5}, v{SC}, v{SC + 1}
v_add_u32 v{SC + 6}, v{SC + 5}, v{SC + 2}
v_add_u32 v{SC + 7}, v{SC + 6}, v{SC + 3}
v_mov_b32 v{SC + 8}, v{SC + 7}
""")
    scan64(a, f"v{SC + 8}")
    a(f"""
v_sub_u32 v{SC + 4}, v{SC + 8}, v{SC + 7}
v_add_u32 v{SC + 7}, v{SC + 4}, v{SC + 6}
v_add_u32 v{SC + 6}, v{SC + 4}, v{SC + 5}
v_add_u32 v{SC + 5}, v{SC + 4}, v{SC}
ds_write_b128 v93, {v(SC + 4, 4)} offset:1024
""")
    for i in range(4):
        a(f"v_lshl_or_b32 v{OF + 2 * i}, v{SC + i}, 16, v{SC + 4 + i}")
    a("s_mov_b64 exec, s[30:31]")
    for i in range(4):
        a(f"ds_read_b32 v{BN + i}, v{BN + i} offset:1024")
    a("s_waitcnt vmcnt(13)")
    for i in range(4):
        a(f"v_lshlrev_b32 v{KY + i}, 24, v{KY + i}")
        a(f"v_lshl_or_b32 v{KY + i}, v{SR + i}, 8, v{KY + i}")
    a("s_waitcnt lgkmcnt(0)")
    for i in range(4):
        a(f"v_add_u32 v{RK + i}, v{BN + i}, v{RK + i}")
        a(f"v_add_u32 v{BN + i}, s79, v{RK + i}")
        a(f"ds_write_b32 v{BN + i}, v{KY + i} offset:{KEYS}")
        a(f"v_add_u32 v{RK + i}, v{BN + i}, v{RK + i}")
    a("s_waitcnt vmcnt(11)")
    stamp(a, 2)
    for i in range(4):
        a(f"ds_write_b64 v{RK + i}, {v(EA + 2 * i, 2)} offset:{EAL}")
    a(f"""
s_mov_b64 exec, -1
s_add_u32 s40, s24, {WS_X}
s_addc_u32 s41, s25, 0
s_mul_i32 s26, s2, {CHB}
s_add_u32 s52, s40, s26
s_addc_u32 s53, s41, 0
s_movk_i32 s54, {CHB}
s_mov_b32 s55, 0x20000
v_lshlrev_b32 v3, 4, v0
v_add_u32 v4, 8192, v3
v_add_u32 v5, 16384, v3
v_add_u32 v6, s79, v3
s_waitcnt lgkmcnt(0)
s_barrier
ds_read_b128 {v(PH, 4)}, v6 offset:{KEYS}
ds_read_b128 {v(PH + 4, 4)}, v6 offset:{KEYS + 8192}
ds_read_b128 {v(PH + 8, 4)}, v6 offset:{KEYS + 16384}
s_waitcnt lgkmcnt(2)
buffer_store_dwordx4 {v(PH, 4)}, v3, s[52:55], 0 offen sc1
s_waitcnt lgkmcnt(1)
buffer_store_dwordx4 {v(PH + 4, 4)}, v4, s[52:55], 0 offen sc1
s_waitcnt lgkmcnt(0)
buffer_store_dwordx4 {v(PH + 8, 4)}, v5, s[52:55], 0 offen sc1
s_waitcnt vmcnt(7)
""")
    stamp(a, 3)
    a(f"""
v_cmp_gt_u32 vcc, {BS}, v0
v_mov_b32 v{t0}, {0x7f000000}
s_mov_b32 s52, s40
v_cndmask_b32 v43, v{t0}, v43, vcc
s_mov_b32 s53, s41
s_mov_b32 s54, {P4 + 25088 * 16}
buffer_store_dwordx4 {v(vP4, 4)}, v43, s[52:55], 0 offen sc1
global_load_dwordx2 {v(vAUX, 2)}, v{Z}, s[22:23] sc1
""")
    a.ext(w_dma(vWV, 36, "s27", 0))
    consts()
    HF, WF, AH, AL = R0, T, WA, AD
    bW0, bW1, bS0, bS1, q0, q1 = M, M + 1, M + 2, M + 3, M + 4, M + 5
    a(f"""
s_add_u32 s56, s24, {WS_TAB}
s_addc_u32 s57, s25, 0
s_mov_b32 s59, 0x20000
v_bfe_u32 v{t0}, v{vLANE}, 2, 2
v_and_b32 v{t3}, 3, v{vLANE}
v_lshrrev_b32 v{t1}, 5, v{vLANE}
v_lshl_add_u32 v{t2}, v{t1}, 3, v{t0}
v_lshlrev_b32 v{t2}, 8, v{t2}
v_lshl_add_u32 v{t2}, v{t3}, 3, v{t2}
v_and_b32 v{t3}, 16, v{vLANE}
v_lshl_add_u32 v{t2}, v{t3}, 1, v{t2}
s_and_b32 s26, s{sWAVE}, 1
s_lshr_b32 s27, s{sWAVE}, 1
s_lshl_b32 s77, s26, 1
v_xor_b32 v{t3}, s77, v{t0}
v_lshl_add_u32 v{bW0}, v{t3}, 6, v{t2}
v_xor_b32 v{bW1}, 64, v{bW0}
v_and_b32 v{q0}, 31, v{vLANE}
v_and_b32 v{q1}, 15, v{vLANE}
v_xor_b32 v{q1}, v{t1}, v{q1}
v_lshlrev_b32 v{q1}, 4, v{q1}
v_lshl_add_u32 v{q1}, v{q0}, 8, v{q1}
s_lshl_b32 s78, s27, 13
s_add_u32 s77, s78, {HR}
v_add_u32 v{EE}, s77, v{q1}
""")
    for k in range(1, 8):
        a(f"v_xor_b32 v{EE + k}, {32 * k}, v{EE}")
    a(f"""
s_lshl_b32 s77, s{sN0}, 8
s_add_u32 s78, s78, s77
s_lshl_b32 s26, s26, 7
s_add_u32 s78, s78, s26
v_lshlrev_b32 v{bS0}, 10, v{t1}
v_lshl_add_u32 v{bS0}, v{q0}, 2, v{bS0}
v_add_u32 v{bS0}, s78, v{bS0}
v_add_u32 v{bS1}, 4096, v{bS0}
s_mov_b32 s68, {C_FWD:#x}
s_mov_b32 s69, s68
s_mov_b32 s26, 0x07060302
""")
    a.ext(w_fragaddr(q0, 32768))
    if OPT["stamps"]:
        stamp(a, 16)
        a("s_waitcnt vmcnt(9)")
        stamp(a, 17)
        a("s_waitcnt vmcnt(5)")
        stamp(a, 18)
        a("s_waitcnt vmcnt(0)")
        stamp(a, 19)
    a(f"""
s_mov_b32 s{sSPIN}, 0
F_2:
s_waitcnt vmcnt(0)
v_readfirstlane_b32 s77, v{vAUX + 1}
v_readfirstlane_b32 s{sNONCE}, v{vAUX}
s_add_u32 s{sSPIN}, s{sSPIN}, 1
s_cmp_gt_u32 s{sSPIN}, {SPIN}
s_cselect_b32 s77, 1, s77
s_cmp_lg_u32 s77, 0
s_cbranch_scc1 F_3
global_load_dwordx2 {v(vAUX, 2)}, v{Z}, s[22:23] sc1
s_branch F_2
F_3:
s_barrier
""")
    stamp(a, 4)
    a(f"""
s_cmp_lg_u32 s{sWAVE}, 7
s_cbranch_scc1 F_4
s_lshl_b32 s77, s2, 11
s_add_u32 s77, s77, {WS_OFF}
v_lshl_add_u32 v{t0}, v{vLANE}, 4, s77
""")
    for i in range(4):
        a(f"v_mov_b32 v{OF + 2 * i + 1}, s{sNONCE}")
    a(f"""
global_store_dwordx4 v{t0}, {v(OF, 4)}, s[24:25] sc1
global_store_dwordx4 v{t0}, {v(OF + 4, 4)}, s[24:25] offset:1024 sc1
F_4:
""")

    def brd(k):
        o = [f"ds_read_b128 {v(HF + 4 * k, 4)}, v{EE + k}"]
        for j, ad in enumerate((f"v{bW0}", f"v{bW1}")):
            o.append(f"ds_read_b64_tr_b16 {v(WF + 8 * k + 4 * j, 2)}, {ad} offset:{4096 * k}")
            o.append(f"ds_read_b64_tr_b16 {v(WF + 8 * k + 4 * j + 2, 2)}, {ad} offset:{4096 * k + 1024}")
        return o

    for k in range(3):
        a.ext(brd(k))
    for k in range(8):
        a(f"s_waitcnt lgkmcnt({5 * min(2, 7 - k)})")
        for j, acc in enumerate((AH, AL)):
            a(mf(acc, HF + 4 * k, WF + 8 * k + 4 * j, None if k == 0 else acc))
        if k + 3 < 8:
            a.ext(brd(k + 3))
        dma = w_dma(vWV, 36, "0", 32768) if k < 4 else w_dma(vWV, 16, "0", 65536)
        a.ext(dma[:4] if k % 4 == 0 else [dma[3 + k % 4]])
    if not OPT["tsfirst"]:
        a("s_waitcnt vmcnt(0)\ns_barrier")
        stamp(a, 5)
        a.ext(w_frags(T, q0, 0) + w_frags(T + 16, q0, 32768))
    else:
        a("s_nop 8")
    a("s_cmp_eq_u32 s27, 3")
    for r in range(0, 16, 2):
        if r == 2:
            a("s_cbranch_scc1 F_5")
        a(f"v_pk_mul_f32 {v(AH + r, 2)}, {v(AH + r, 2)}, s[68:69]")
        a(f"v_pk_mul_f32 {v(AL + r, 2)}, {v(AL + r, 2)}, s[68:69]")
        for q in (r, r + 1):
            a(f"v_add_u32 v{AL + q}, 0x4000, v{AL + q}")
            a(f"v_perm_b32 v{AH + q}, v{AH + q}, v{AL + q}, s26")
            a(f"buffer_store_dword v{AH + q}, v{bS1 if q >= 8 else bS0}, s[56:59], 0 offen "
              f"offset:{(8 * ((q >> 2) & 1) + (q & 3)) * 256} sc1")
    a(f"""
""")
    if OPT["tsfirst"]:
        a("s_waitcnt vmcnt(16)\ns_branch F_6\nF_5:\ns_waitcnt vmcnt(2)\nF_6:\ns_barrier")
        stamp(a, 5)
        a.ext(w_frags(T, q0, 0) + w_frags(T + 16, q0, 32768))
    else:
        a("F_5:")
    a(f"""
s_waitcnt lgkmcnt(0)
s_barrier
""")
    stamp(a, 6)
    a(f"v_mov_b64 {v(M, 2)}, 0\nv_mov_b64 {v(M + 2, 2)}, 0")
    a(f"v_lshlrev_b32 v{t0}, 4, v0\nv_lshlrev_b32 v{t1}, 2, v0")
    a(f"ds_write_b32 v{t1}, v{Z} offset:49152")
    for i in range(6):
        a(f"ds_write_b128 v{t0}, {v(M, 4)} offset:{8192 * i}")

    def wext():
        a(f"""
s_cmp_lt_u32 s{sWAVE}, 6
s_cselect_b32 s77, s68, 0
s_cmp_eq_u32 s{sWAVE}, 5
s_cselect_b32 s79, -1.0, 0
s_mul_i32 s78, s{sWAVE}, 264
s_add_u32 s78, s78, {AT}
v_lshlrev_b32 v{t0}, 16, v{vWE}
v_and_b32 v{t1}, 0xffff0000, v{vWE}
v_mul_f32 v{t0}, s77, v{t0}
v_mul_f32 v{t1}, s77, v{t1}
v_cvt_pk_bf16_f32 v{t2}, v{t0}, v{t1}
v_lshlrev_b32 v{t3}, 16, v{t2}
v_and_b32 v{t2}, 0xffff0000, v{t2}
v_fmac_f32 v{t0}, s79, v{t3}
v_fmac_f32 v{t1}, s79, v{t2}
v_cvt_pk_bf16_f32 v{t0}, v{t0}, v{t1}
v_lshl_add_u32 v{t1}, v{vLANE}, 2, s78
ds_write_b32 v{t1}, v{t0}
""")

    a(f"""
s_mov_b32 s{sDONE}, 0
s_movk_i32 s{sSPB}, 128
s_mov_b32 s{sINIT}, 0
v_min_u32 v{t0}, 127, v0
v_lshlrev_b32 v{t0}, 4, v{t0}
ds_write_b128 v{t0}, {v(vP4, 4)} offset:{PDL}
v_lshrrev_b32 v{t0}, 2, v{vLANE}
v_and_b32 v{t2}, 3, v{vLANE}
v_lshrrev_b32 v{t3}, 1, v{t0}
v_lshlrev_b32 v{t0}, 4, v{t0}
v_mov_b32 v{t4}, 0x3f80
v_cmp_eq_u32 vcc, v{t2}, v{t3}
v_lshlrev_b32 v{t4}, v{t0}, v{t4}
v_lshlrev_b32 v{t1}, 2, v{vLANE}
v_cndmask_b32 v{t4}, 0, v{t4}, vcc
ds_write2st64_b32 v{t1}, v{t4}, v{vWXD} offset0:{OH // 256} offset1:{WX // 256}
""")
    wext()

    def poll_issue():
        a(f"""
s_lshr_b32 s77, s{sBIN}, 2
s_lshl_b32 s77, s77, 4
s_and_b32 s78, s{sBIN}, 1
s_lshl_b32 s78, s78, 3
s_add_u32 s77, s77, s78
s_and_b32 s78, s{sBIN}, 2
s_lshl_b32 s78, s78, 9
s_add_u32 s77, s77, s78
s_add_u32 s77, s77, {WS_OFF}
v_lshrrev_b32 v{vKA}, 1, v0
v_lshl_add_u32 v{t0}, v{vKA}, 11, s77
global_load_dwordx2 {v(vAUX, 2)}, v{t0}, s[24:25] sc1
""")

    def keys():
        if OPT["gpoll"] != OPT["gsplit"]:
            a("s_branch K2_B1")
        a("K2_BATCH:")
        poll_issue()
        a(f"""
K2_B1:
s_add_u32 s{sSPIN}, s{sSPIN}, 1
s_waitcnt vmcnt(0)
v_cmp_ne_u32 vcc, s{sNONCE}, v{vAUX + 1}
s_cmp_gt_u32 s{sSPIN}, {SPIN}
s_cbranch_scc1 K2_B2
s_cbranch_vccnz K2_BATCH
K2_B2:
""")
        stamp(a, 7)
        a(f"""
v_mul_u32_u24 v{vKA}, {CHB}, v{vKA}
v_and_b32 v{t0}, 0xffff, v{vAUX}
v_lshrrev_b32 v{vREM}, 16, v{vAUX}
v_and_b32 v{t1}, 1, v0
v_lshlrev_b32 v{t1}, 4, v{t1}
v_subrev_u32 v{vREM}, s{sDONE}, v{vREM}
v_add3_u32 v{t0}, v{t0}, v{t1}, s{sDONE}
v_add_u32 v{vKA}, v{vKA}, v{t0}
v_cmp_lt_i32 s[26:27], s{sSPB}, v{vREM}
v_min_i32 v{vREM}, s{sSPB}, v{vREM}
v_sub_u32 v{vREM}, v{vREM}, v{t1}
global_load_dwordx4 {v(R0, 4)}, v{vKA}, s[40:41] {hs}
v_cmp_lt_i32 vcc, 32, v{vREM}
s_mov_b64 exec, vcc
s_cbranch_execz K2_B3
global_load_dwordx4 {v(R0 + 4, 4)}, v{vKA}, s[40:41] offset:32 {hs}
v_cmp_lt_i32 vcc, 64, v{vREM}
s_mov_b64 exec, vcc
s_cbranch_execz K2_B3
global_load_dwordx4 {v(R0 + 8, 4)}, v{vKA}, s[40:41] offset:64 {hs}
global_load_dwordx4 {v(R0 + 12, 4)}, v{vKA}, s[40:41] offset:96 {hs}
K2_B3:
s_mov_b64 exec, -1
s_movk_i32 s77, {CH * 4}
v_add3_u32 v{vKA}, v{vKA}, v{t0}, s77
s_cmp_lg_u32 s{sINIT}, 0
s_cbranch_scc1 K2_B4
s_mov_b32 s{sINIT}, 1
s_waitcnt lgkmcnt(0)
s_barrier
s_cmp_lg_u32 s{sWAVE}, 7
s_cbranch_scc1 F_7
s_lshl_b32 s77, s2, {OPT["f2s"]}
s_add_u32 s77, s77, {WS_F2}
v_mov_b32 v{t0}, s77
v_mov_b32 v{t1}, s{sNONCE}
s_mov_b64 exec, 1
global_store_dword v{t0}, v{t1}, s[24:25] sc1
s_mov_b64 exec, -1
F_7:
s_mov_b32 s3, 32768
""")
        a.ext(w_dma(vWV, 16, "s3", W2L))
        stamp(a, 8)

    hooks = {OPT["gsplit"]: keys}
    if OPT["gpoll"] != OPT["gsplit"]:
        hooks[OPT["gpoll"]] = poll_issue
    if -1 in hooks:
        hooks[-1]()
    node_gemm(a, True, True, hooks)
    a("K2_B4:\ns_waitcnt vmcnt(0)")
    stamp(a, 9)
    a(f"""
v_mov_b32 v{t1}, 32
s_cmp_eq_u64 s[26:27], 0
s_cbranch_scc1 K2_B6
ds_write_b32 v{Z}, v{t1} offset:{FLAG}
K2_B6:
""")
    for k in range(4):
        for i in range(4):
            j = 4 * k + i
            if j in (0, 8, 12):
                for q in range(8 if j == 0 else 4):
                    a(f"v_lshlrev_b32_sdwa v{PH + j + q}, 2, v{R0 + j + q} {B3}")
            a(f"v_cmpx_lt_i32 vcc, {32 * k + 4 * i}, v{vREM}")
            if j in (6, 8, 12):
                a("s_cbranch_execz K2_B7")
            a(f"ds_add_rtn_u32 v{R1 + j}, v{PH + j}, v{t1} offset:{HIST}")
    a(f"""
K2_B7:
s_mov_b64 exec, -1
v_lshlrev_b32 v{t0}, 3, v{vLANE}
s_mov_b32 s78, 0xff000000
""")

    def aux(j):
        k, i = j >> 2, j & 3
        return [f"v_add_u32 v{PL + j}, {64 * k + 8 * i}, v{vKA}", f"v_and_or_b32 v{PL + j}, v{R0 + j}, s78, v{PL + j}"]

    for j in range(4):
        a.ext(aux(j))
    f2 = lines(f"""
v_lshrrev_b32 v{t4}, 1, v0
v_lshlrev_b32 v{t4}, {OPT["f2s"]}, v{t4}
v_add_u32 v{t4}, {WS_F2}, v{t4}
global_load_dword v{vAUX}, v{t4}, s[24:25] sc1""")
    if OPT["pe"]:
        a(f"global_load_dword v{vAUX + 1}, v{vKA}, s[40:41] {hs}")
    if OPT["pp"]:
        a(f"""
s_lshr_b32 s77, s2, 3
s_lshl_b32 s77, s77, 3
s_add_u32 s77, s77, s{sWAVE}
s_mul_i32 s77, s77, {13 * 128}
s_add_u32 s77, s77, {P4}
v_lshl_add_u32 v{t4}, v{vLANE}, 7, s77
s_mov_b64 exec, 0x1fff
global_load_dword v{vAUX + 1}, v{t4}, s[40:41] {hs}
s_mov_b64 exec, -1
""")
    a(f"""
s_waitcnt lgkmcnt(0)
s_barrier
ds_read_b64 {v(t2, 2)}, v{t0} offset:{HIST}
ds_read_b32 v{t1}, v{Z} offset:{FLAG}
""")
    for j in range(4, 8):
        a.ext(aux(j))
    a(f"""
s_waitcnt lgkmcnt(0)
v_add_u32 v{t3}, v{t2}, v{t3}
v_readfirstlane_b32 s{sMORE}, v{t1}
v_mov_b32 v{t5}, v{t3}
v_subrev_u32 v{t3}, 128, v{t3}
""")
    scan64(a, f"v{t5}")
    a(f"""
v_sub_u32 v{X}, v{t5}, v{t3}
v_readlane_b32 s{sTOT}, v{t5}, 63
v_add_u32 v{X + 1}, v{X}, v{t2}
ds_write_b64 v{t0}, {v(X, 2)} offset:{BASE}
""")
    for j in range(8):
        a(f"ds_read_b32 v{PH + j}, v{PH + j} offset:{BASE}")
    a.ext(f2)
    a(f"""
s_lshr_b32 s{sTOT}, s{sTOT}, 3
s_cmp_gt_u32 s{sTOT}, {CAP4}
s_cbranch_scc0 K2_B8
s_mov_b32 s{sSPB}, 32
s_branch K2_AGAIN
K2_B8:
s_mov_b32 s77, 0xffff7f
s_cmp_lg_u32 s{sWAVE}, 7
s_cbranch_scc1 K2_B9
s_add_u32 s79, s{sTOT}, 16
v_lshl_add_u32 v{t0}, v{vLANE}, 2, s79
v_and_b32 v{t1}, 16, v{t0}
v_lshlrev_b32 v{t1}, 3, v{t1}
v_or_b32 v{t1}, {N * 256}, v{t1}
v_mov_b32 v{t2}, {(127 << 24) | (P4 + N * 16):#x}
ds_write2st64_b32 v{t0}, v{t1}, v{t2} offset0:{SRC // 256} offset1:{AUX // 256}
K2_B9:
""")
    for k in range(4):
        for i in range(4):
            j = 4 * k + i
            a(f"v_cmpx_lt_i32 vcc, {32 * k + 4 * i}, v{vREM}")
            if j >= 6:
                a("s_cbranch_execz K2_B10")
            if j in (8, 12):
                for q in range(4):
                    a(f"ds_read_b32 v{PH + j + q}, v{PH + j + q} offset:{BASE}")
            if j >= 8:
                a.ext(aux(j))
            if j in (0, 8, 12):
                a("s_waitcnt lgkmcnt(0)")
            a(f"v_add_u32 v{PH + j}, v{PH + j}, v{R1 + j}")
            a(f"v_bfi_b32 v{R0 + j}, s77, v{R0 + j}, v{PH + j}")
            a(f"v_lshrrev_b32 v{PH + j}, 3, v{PH + j}")
            a(f"ds_write2st64_b32 v{PH + j}, v{R0 + j}, v{PL + j} offset0:{SRC // 256} offset1:{AUX // 256}")
    a(f"""
K2_B10:
s_mov_b64 exec, -1
s_add_u32 s77, s{sTOT}, 127
s_lshr_b32 s77, s77, 7
s_lshl_b32 s{sDUM}, s77, 7
s_lshr_b32 s78, s77, 3
s_and_b32 s77, s77, 7
s_mul_i32 s{sTILE}, s78, s{sWAVE}
s_min_u32 s79, s77, s{sWAVE}
s_add_u32 s{sTILE}, s{sTILE}, s79
s_cmp_lt_u32 s{sWAVE}, s77
s_addc_u32 s{sCNT}, s78, 0
s_add_u32 s{sEND}, s{sTILE}, s{sCNT}
s_lshl_b32 s{sEND}, s{sEND}, 7
s_lshl_b32 s{sTILE}, s{sTILE}, 7
s_sub_u32 s{sTILE}, s{sTILE}, 128
s_mov_b32 s{sNBP}, -8
s_mov_b32 s{sNLP}, -1
""")
    stamp(a, 10)
    a(f"""
K2_B11:
s_add_u32 s{sSPIN}, s{sSPIN}, 1
s_waitcnt vmcnt(0)
v_cmp_ne_u32 vcc, s{sNONCE}, v{vAUX}
s_cmp_gt_u32 s{sSPIN}, {SPIN}
s_cbranch_scc1 K2_B12
s_cbranch_vccz K2_B12
{f2[-1]}
s_branch K2_B11
K2_B12:
s_min_u32 s77, s{sEND}, s{sTOT}
v_mov_b32 v{t4}, s77
s_waitcnt lgkmcnt(0)
s_barrier
""")
    stamp(a, 11)
    a(f"ds_read_b32 v{t4}, v{t4} offset:{AUX + 12}")
    a.ext(plan_a() + ad_reads())
    a("s_waitcnt lgkmcnt(4)")
    a(f"v_readfirstlane_b32 s{sTAIL}, v{t4}")
    a.ext(plan_s() + plan_v())
    a.ext(ld_x())
    a("s_waitcnt lgkmcnt(0)")
    a.ext(ld_r(0) + rotate())
    a(f"s_lshr_b32 s{sTAIL}, s{sTAIL}, 24")
    a(f"""
s_cmp_eq_u32 s{sCNT}, 0
s_cbranch_scc1 K2_SETF
""")
    a.ext(m_reads(sNB1, "gt"))
    a.ext(x_reads())
    for t in range(4):
        a(f"ds_read_b64_tr_b16 {v(WA + 4 * t, 2)}, v{vWAB} offset:{64 * t}")
    a.ext(wa_reads(sNB1))
    a.ext(plan_a())
    for i in range(0, 8, 2):
        a(f"v_mov_b64 {v(S + i, 2)}, 0")
        a(f"v_mov_b64 {v(M + i, 2)}, 0")
    a("s_waitcnt lgkmcnt(0)")
    for t in range(4):
        a(mf8(T + 16 * t, EE + 2 * t, SM, None))
    a.ext(plan_s())
    a.ext(ld_r(1) + ad_reads())
    a("s_waitcnt vmcnt(16)")
    stamp(a, 12)
    stamp(a, 30)
    a.ext(x_build())
    a.ext(plan_v())
    a(mf(PH, XC, WA, R0))
    a.ext(rotate())
    a(f"""
s_mov_b32 s{sVAL1}, s{sVAL2}
s_mov_b32 s{sNBF}, s{sNB0}
s_mov_b32 s{sHEAD}, s{sNB0}
s_mov_b32 s{sNEW0}, 0
s_waitcnt lgkmcnt(0)
s_mov_b32 s{sIT}, {0 if OPT["prio"] == 1 else f"s{sCNT}"}
""")
    if OPT["prio"]:
        a("s_setprio 3")

    def shifts(R):
        return [f"v_lshlrev_b64 {v(PL + r, 2)}, 16, {v(R + r, 2)}" for r in range(0, 16, 2)]

    a("K2_LOOP:")
    main = [seg(3, 0)] + shifts(R0) + batch(PH, 0, {0: [seg(3, 1)], 3: [mf(PL, XC, WA + 4, PL)]}) + batch(PH, 1)
    sr = [f"ds_read_b64_tr_b16 {v(S + 2 * q, 2)}, v{vSRD} offset:{576 * q}" for q in range(4)]
    sr.append(f"ds_write_b64 v{vSA0}, {v(Z, 2)}")
    ld = ld_x() + ld_r(0)
    a.ext(sched(main, ld[:9] + sr + ld[9:] + [f"s_cmp_eq_u32 s{sNEW0}, 0"], first=9))
    a(f"""
s_cbranch_scc1 K2_L1
s_call_b64 s[66:67], K2_FLUSH
""")
    for t in range(4):
        a(mf8(T + 16 * t, EE + 2 * t, SM, None))
    a(f"""
s_mov_b32 s{sNBF}, s{sNB0}
s_cmp_gt_u32 s{sNB0}, s{sHEAD}
s_cbranch_scc0 K2_L1
s_lshl_b32 s77, s{sWAVE}, 2
v_mov_b32 v{t0}, s77
ds_write_b32 v{t0}, v{vPCON} offset:{FLAG + 16}
K2_L1:
s_waitcnt lgkmcnt(0)
""")
    main = batch(PL, 0, {0: [seg(0, 0)], 3: [seg(0, 1)]}, {0: ["s_waitcnt vmcnt(17)", mf(PH, XC, WA + 8, R1)]})
    a.ext(sched(main, [f"s_mov_b32 s{sNLF}, s{sNL0}"] + plan_a()[:11]))
    a.ext(sched(batch(PL, 1), plan_a()[11:] + ["s_waitcnt lgkmcnt(0)"] + plan_s()))
    ld = ld_r(1)
    main = [seg(1, 0)] + shifts(R1) + batch(PH, 0, {0: [seg(1, 1)], 3: [mf(PL, XC, WA + 12, PL)]})
    a.ext(sched(main, ld[:7] + [f"s_cmp_eq_u32 s{sNEW1}, 0"], first=9))
    a("s_cbranch_scc1 K2_L2")
    a.ext(wa_reads(sNB1))
    a("K2_L2:")
    a.ext(sched(batch(PH, 1), ld[7:] + x_reads()))
    pr = []
    if OPT["prio"]:
        pr.append(f"s_add_u32 s{sIT}, s{sIT}, {1 if OPT['prio'] == 1 else -1}")
        lad = {1: ((2, 2), (4, 1), (6, 0)), 2: ((3, 2), (2, 1), (1, 0)), 3: ((4, 2), (2, 1), (1, 0))}[OPT["prio"]]
        for n, (it, p_) in enumerate(lad):
            pr += [f"s_cmp_lg_u32 s{sIT}, {it}", f"s_cbranch_scc1 K2_PR{n}\ns_setprio {p_}\nK2_PR{n}:"]
    a.ext(sched(batch(PL, 0, {0: [seg(2, 0)], 3: [seg(2, 1)]}), ad_reads() + rotate()))
    a("s_waitcnt vmcnt(16) lgkmcnt(4)")
    xb = x_build() + plan_v()
    main = xb + batch(PL, 1, {0: [mf(PH, XC, WA, R0)]})
    a.ext(sched(main, pr + ["s_waitcnt lgkmcnt(0)", f"s_cmp_lg_u32 s{sVAL1}, 0", f"s_mov_b32 s{sVAL1}, s{sVAL2}"]))
    a("s_cbranch_scc1 K2_LOOP")
    a(seg(3, 0))
    a(seg(3, 1))
    a(f"""
ds_write_b64 v{vSA0}, {v(Z, 2)}
s_cmp_eq_u32 s{sWAVE}, 7
s_cbranch_scc1 K2_W2
s_lshl_b32 s77, s{sWAVE}, 2
v_mov_b32 v{t0}, s77
{"s_mov_b32 s79, 0" if OPT["safe"] else ""}
K2_W1:
{"s_add_u32 s79, s79, 1" if OPT["safe"] else ""}
{"s_cmp_gt_u32 s79, 100000" if OPT["safe"] else ""}
{"s_cbranch_scc1 K2_W2" if OPT["safe"] else ""}
ds_read_b32 v{t1}, v{t0} offset:{FLAG + 20}
s_waitcnt lgkmcnt(0)
v_readfirstlane_b32 s77, v{t1}
s_cmp_eq_u32 s77, 0
s_cbranch_scc1 K2_W1
K2_W2:
""")
    a.ext(m_reads(sNBF, "eq"))
    a("s_nop 0\ns_waitcnt lgkmcnt(0)")
    for t in range(4):
        a(mf8(T + 16 * t, EE + 2 * t, SM, T + 16 * t))
    a(f"""
s_call_b64 s[66:67], K2_FLUSH
K2_SETF:
s_lshl_b32 s77, s{sWAVE}, 2
v_mov_b32 v{t0}, s77
ds_write_b32 v{t0}, v{vPCON} offset:{FLAG + 16}
""")
    stamp(a, 13)
    stamp(a, 31)
    a.ext(w_fragaddr(t5, W2L))
    a(f"""
s_cmp_eq_u32 s{sMORE}, 0
s_cbranch_scc1 K2_FINAL
s_add_u32 s{sDONE}, s{sDONE}, s{sSPB}
v_and_b32 v{t0}, 15, v{vLANE}
v_lshrrev_b32 v{t1}, 4, v{vLANE}
v_mul_u32_u24 v{t2}, 272, v{t0}
v_lshl_add_u32 v{t2}, v{t1}, 4, v{t2}
s_waitcnt vmcnt(0) lgkmcnt(0)
s_barrier
""")
    a.ext(w_frags(AD, t5, 0))
    for mt in range(7):
        for k in range(4):
            a(f"ds_read_b128 {v(T + 4 * k, 4)}, v{t2} offset:{MA + 16 * 272 * mt + 64 * k}")
        a("s_waitcnt lgkmcnt(0)")
        for k in range(4):
            a(mf16(H1 + 4 * mt, AD + 4 * k, T + 4 * k, H1 + 4 * mt))
    a(f"""
v_lshlrev_b32 v{t0}, 3, v0
s_barrier
""")
    for i in range(8):
        a(f"ds_write_b64 v{t0}, {v(Z, 2)} offset:{MA + 4096 * i}")
    a(f"""
K2_AGAIN:
s_waitcnt vmcnt(0) lgkmcnt(0)
s_barrier
v_lshlrev_b32 v{t0}, 3, v{vLANE}
ds_write_b64 v{t0}, {v(Z, 2)} offset:{HIST}
ds_write_b64 v{t0}, {v(Z, 2)} offset:{HIST + 64}
s_waitcnt lgkmcnt(0)
s_barrier
s_branch K2_BATCH
""")
    a(f"""
K2_FLUSH:
s_mul_i32 s77, s{sNBF}, 272
s_sub_u32 s79, s{sNLF}, s{sNBF}
s_lshl_b32 s78, s{sNBF}, 5
v_cmp_ge_i32 vcc, s79, v{vNP}
v_add_u32 v{t4}, s77, v{vMB}
v_mov_b32 v{t0}, {OOB}
v_add_u32 v{t5}, s78, v{vPB}
v_cndmask_b32 v{t4}, v{t0}, v{t4}, vcc
v_add_u32 v{t3}, {WX}, v{vH8}
""")
    for t in range(4):
        for i in range(8):
            a(f"v_cvt_pk_bf16_f32 v{T + 16 * t + i}, v{T + 16 * t + 2 * i}, v{T + 16 * t + 2 * i + 1}")
        for k in range(2):
            o = 8 * t + 4 * k
            a(f"ds_read2_b64 {v(T + 16 * t + 8 + 4 * k, 4)}, v{t3} offset0:{o} offset1:{o + 2}")
            a(f"ds_write2_b64 v{t4}, {v(T + 16 * t + 4 * k, 2)}, {v(T + 16 * t + 4 * k + 2, 2)} offset0:{o} offset1:{o + 2}")
    a.ext(m_reads(sNB0, "gt"))
    a("s_waitcnt lgkmcnt(5)")
    for i in range(8):
        for t in range(4):
            a(f"v_dot2_f32_bf16 v{t0 + t}, v{T + 16 * t + i}, v{T + 16 * t + 8 + i}, {'0' if i == 0 else v(t0 + t)}")
    a(f"""
s_nop 0
v_add_f32 v{t0}, v{t0}, v{t1}
s_nop 0
v_add_f32 v{t2}, v{t2}, v{t3}
v_add_f32 v{t0}, v{t0}, v{t2}
v_cvt_f64_f32 {v(t2, 2)}, v{t0}
s_waitcnt lgkmcnt(0)
ds_add_f64 v{t5}, {v(t2, 2)} offset:{POS}
s_setpc_b64 s[66:67]
""")

    MF, HRS = T, R0
    a(f"""
K2_FINAL:
s_setprio 0
s_mov_b32 s36, s20
s_mov_b32 s37, s21
s_mov_b32 s38, s34
s_mov_b32 s39, 0x20000
v_and_b32 v{t0}, 15, v{vLANE}
v_lshrrev_b32 v{t1}, 4, v{vLANE}
v_mul_u32_u24 v2, 272, v{t0}
v_lshl_add_u32 v2, v{t1}, 4, v2
s_lshl_b32 s77, s{sWAVE}, 1
v_lshrrev_b32 v{t2}, 1, v{t1}
v_add_u32 v{t2}, s77, v{t2}
v_xor_b32 v{t2}, v{t2}, v{t0}
v_lshlrev_b32 v{t2}, 4, v{t2}
v_lshl_add_u32 v{t2}, v{t0}, 8, v{t2}
v_and_b32 v{t3}, 1, v{t1}
v_lshl_add_u32 v{t2}, v{t3}, 3, v{t2}
v_add_u32 v3, {HR}, v{t2}
s_waitcnt vmcnt(0)
""")
    for mt in range(7):
        a(f"ds_read_b64 {v(PH + 2 * mt, 2)}, v3 offset:{4096 * mt}")
    a(f"""
s_mul_i32 s78, s{sN0}, 6
v_lshl_add_u32 v4, v0, 1, s78
v_mul_u32_u24 v{t2}, 171, v0
v_lshrrev_b32 v{t2}, 9, v{t2}
v_add_lshl_u32 v5, v{t2}, v0, 2
v_lshlrev_b32 v6, 1, v5
v_cmp_gt_u32 vcc, {3 * BS}, v0
v_mov_b32 v{t2}, {N * 6}
s_add_u32 s12, s20, {N * 256}
v_cndmask_b32 v4, v{t2}, v4, vcc
s_addc_u32 s13, s21, 0
s_mov_b32 s14, {N * 6}
s_mov_b32 s15, 0x20000
ds_read_b32 v7, v5 offset:{PDL}
v_xor_b32 v{t2}, v{t0}, v{t1}
v_lshlrev_b32 v{t2}, 4, v{t2}
v_lshl_add_u32 v{t2}, v{t1}, 8, v{t2}
s_lshl_b32 s77, s{sWAVE}, 12
s_lshl_b32 s78, s{sN0}, 8
s_add_u32 s78, s78, s77
v_add_u32 v10, s78, v{t2}
v_xor_b32 v11, 64, v10
v_xor_b32 v12, 128, v10
v_xor_b32 v13, 192, v10
s_add_u32 s77, s77, {HR}
v_lshl_add_u32 v14, v{vLANE}, 4, s77
s_waitcnt lgkmcnt(0)
""")
    for mt in range(7):
        for q in range(2):
            a(f"v_lshlrev_b32 v{HRS + 4 * mt + 2 * q}, 16, v{PH + 2 * mt + q}")
            a(f"v_and_b32 v{HRS + 4 * mt + 2 * q + 1}, 0xffff0000, v{PH + 2 * mt + q}")
    a("s_barrier")
    stamp(a, 14)
    a.ext(w_frags(AD, t5, 0))

    def mrd(mt):
        for k in range(4):
            a(f"ds_read_b128 {v(MF + 16 * (mt & 3) + 4 * k, 4)}, v2 offset:{MA + 16 * 272 * mt + 64 * k}")

    def mm(mt):
        return [mf16(H1 + 4 * mt, AD + 4 * k, MF + 16 * (mt & 3) + 4 * k, H1 + 4 * mt) for k in range(4)]

    def fin(mt, n, ins):
        P = H1 + 4 * mt
        ins = list(ins)
        for i in range(n):
            if ins:
                a(ins.pop(0))
            a(f"v_exp_f32 v{EE + i}, v{P + i}")
        for i in range(n):
            a(f"v_add_f32 v{EE + i}, 1.0, v{EE + i}")
        for i in range(n):
            a(f"v_rcp_f32 v{EE + i}, v{EE + i}")
        for i in range(0, n, 2):
            a(f"v_pk_mul_f32 {v(EE + i, 2)}, {v(P + i, 2)}, {v(EE + i, 2)}")
        for i in range(0, n, 2):
            a(f"v_pk_fma_f32 {v(EE + i, 2)}, {v(EE + i, 2)}, s[70:71], {v(HRS + 4 * mt + i, 2)}")
        for i in range(0, n, 2):
            a(f"v_cvt_pk_bf16_f32 v{M + i // 2}, v{EE + i}, v{EE + i + 1}")
        for q in range(n // 4):
            a(f"ds_write_b64 v3, {v(M + 2 * q, 2)} offset:{4096 * (mt + q)}")

    a(f"ds_read_b64 v[8:9], v6 offset:{POS + 8}")
    for mt in range(4):
        mrd(mt)
    a("s_waitcnt lgkmcnt(8)")
    x0, x1 = mm(0), mm(1)
    for k in range(4):
        a(x0[k])
        a(x1[k])
    mrd(4)
    mrd(5)
    a(f"""
v_cvt_f32_f64 v8, v[8:9]
v_fma_f32 v7, v8, s70, v7
v_cvt_pk_bf16_f32 v7, v7, v7
buffer_store_short v7, v4, s[12:15], 0 offen
s_waitcnt lgkmcnt(8)
""")
    x0, x1 = mm(2), mm(3)
    fin(0, 8, [q for k in range(4) for q in (x0[k], x1[k])])
    mrd(6)
    a("s_waitcnt lgkmcnt(6)")
    x0, x1 = mm(4), mm(5)
    fin(2, 8, [q for k in range(4) for q in (x0[k], x1[k])])
    a("s_waitcnt lgkmcnt(2)")
    fin(4, 8, mm(6))
    fin(6, 4, [])
    a(f"""
s_waitcnt lgkmcnt(0)
s_barrier
s_cmp_eq_u32 s{sWAVE}, 7
s_cbranch_scc1 K2_F9
""")
    for n in range(4):
        a(f"ds_read_b128 {v(T + 4 * n, 4)}, v14 offset:{1024 * n}")
    for n in range(4):
        a(f"s_waitcnt lgkmcnt({3 - n})")
        a(f"buffer_store_dwordx4 {v(T + 4 * n, 4)}, v{10 + n}, s[36:39], 0 offen offset:{1024 * n} {OPT['stout']}")
    a("K2_F9:")
    stamp(a, 15)
    stamps_out(a, f"s{sWAVE}")
    a("K2_END:\ns_endpgm")


def kd(name, vgpr, sgpr):
    return f""".amdhsa_kernel {name}
  .amdhsa_next_free_vgpr {vgpr}
  .amdhsa_next_free_sgpr {sgpr}
  .amdhsa_accum_offset {vgpr}
  .amdhsa_group_segment_fixed_size 0
  .amdhsa_kernarg_size 88
  .amdhsa_user_sgpr_count 2
  .amdhsa_user_sgpr_kernarg_segment_ptr 1
  .amdhsa_system_sgpr_workgroup_id_x 1
.end_amdhsa_kernel
"""


def build(**opt):
    OPT.update(opt)
    here = os.path.dirname(os.path.abspath(__file__))
    ref = open(os.path.join(here, "header.txt")).read()
    a = Asm()
    k2(a)
    probs = check(a.lines)
    for p in probs:
        print("HAZARD", p, file=sys.stderr)
    kn = NAME + "_kernel"
    txt = ref
    txt += f"; @launch grid=(256,1,1) block=(512,1,1) lds={K2_LDS}\n"
    txt += '.amdgcn_target "amdgcn-amd-amdhsa--gfx950"\n.text\n'
    txt += f".globl {kn}\n.type {kn},@function\n" + a.text()
    txt += '.section .rodata,"a"\n.p2align 6\n' + kd(kn, 256, 102)
    return txt, probs


if __name__ == "__main__":
    out = sys.argv[1] if len(sys.argv) > 1 else f"cdna_kernels/{NAME}.s"
    opt = {}
    for kv in sys.argv[2:]:
        k, val = kv.split("=", 1)
        opt[k] = int(val) if val.lstrip("-").isdigit() else val
    txt, probs = build(**opt)
    open(out, "w").write(txt)
    print("wrote", out, len(txt), "bytes;", len(probs), "hazards")
```

```python
import re


class Asm:
    def __init__(self):
        self.lines = []

    def __call__(self, text):
        for ln in text.strip("\n").split("\n"):
            ln = ln.strip()
            if ln:
                self.lines.append(ln)

    def ext(self, lst):
        for x in lst:
            self(x)

    def text(self):
        out = []
        for ln in self.lines:
            if ln.endswith(":") or ln.startswith(".") or ln.startswith(";"):
                out.append(ln)
            else:
                out.append("    " + ln)
        return "\n".join(out) + "\n"


def v(i, n=1):
    return f"v{i}" if n == 1 else f"v[{i}:{i + n - 1}]"


def s(i, n=1):
    return f"s{i}" if n == 1 else f"s[{i}:{i + n - 1}]"


_REG = re.compile(r"\b([vs])(?:(\d+)|\[(\d+):(\d+)\])")
TRANS = ("v_exp_", "v_log_", "v_rcp_", "v_rsq_", "v_sqrt_", "v_sin_", "v_cos_")


def _regs(op):
    out = set()
    for m in _REG.finditer(op):
        k = m.group(1)
        if m.group(2) is not None:
            out.add((k, int(m.group(2))))
        else:
            for i in range(int(m.group(3)), int(m.group(4)) + 1):
                out.add((k, i))
    if re.search(r"\bvcc\b", op):
        out.add(("s", "vcc"))
    if re.search(r"\bexec\b", op):
        out.add(("s", "exec"))
    if re.search(r"\bm0\b", op):
        out.add(("s", "m0"))
    return out


class Ins:
    def __init__(self, text):
        self.text = text
        body = text.split(";")[0].strip()
        parts = body.split(None, 1)
        self.op = parts[0]
        rest = parts[1] if len(parts) > 1 else ""
        ops = [x.strip() for x in re.split(r",(?![^\[]*\])", rest)] if rest else []
        self.ops = ops
        op = self.op
        self.mfma = op.startswith("v_mfma")
        self.valu = op.startswith("v_") and not self.mfma
        self.trans = op.startswith(TRANS)
        self.dot = op.startswith("v_dot")
        self.dpp = "dpp" in op or "row_" in body or "quad_perm" in body
        self.sdwa = "sdwa" in op
        self.ds = op.startswith("ds_")
        self.vmem = op.startswith(("buffer_", "global_"))
        self.salu = op.startswith("s_")
        self.lds_dma = self.vmem and (body.endswith(" lds") or " lds " in body or "_lds_" in op)
        w, r = set(), set()
        if self.mfma:
            w = _regs(ops[0])
            self.a, self.b, self.c = _regs(ops[1]), _regs(ops[2]), _regs(ops[3])
            r = self.a | self.b | self.c
            self.passes = 8 if "32x32" in op else 4
        elif self.valu:
            nd = 1
            if op.startswith(("v_add_co", "v_sub_co", "v_addc_co", "v_mad_u64")):
                nd = 2
            for o in ops[:nd]:
                w |= _regs(o)
            for o in ops[nd:]:
                r |= _regs(o)
            if op.startswith("v_cmpx"):
                w.add(("s", "exec"))
            if op.startswith(("v_fmac", "v_pk_fmac", "v_writelane")) or self.dpp or "PRESERVE" in body:
                r |= _regs(ops[0])
            if op.startswith("v_permlane"):
                w |= _regs(ops[1])
                r |= _regs(ops[0])
        elif self.ds:
            if op.startswith("ds_read") or "_rtn" in op or "permute" in op or "swizzle" in op:
                w = _regs(ops[0])
                for o in ops[1:]:
                    r |= _regs(o)
            else:
                for o in ops:
                    r |= _regs(o)
        elif self.vmem:
            if "load" in op and not self.lds_dma:
                w = _regs(ops[0])
                for o in ops[1:]:
                    r |= _regs(o)
            else:
                for o in ops:
                    r |= _regs(o)
            self.wide_store = "store" in op and ("x3" in op or "x4" in op)
            if self.wide_store:
                self.data = _regs(ops[0]) if op.startswith("buffer") else _regs(ops[1])
        elif self.salu:
            if op.startswith(("s_cmp", "s_cbranch", "s_branch", "s_waitcnt", "s_nop", "s_barrier", "s_endpgm",
                              "s_setprio", "s_setpc", "s_bitcmp", "s_sleep")):
                for o in ops:
                    r |= _regs(o)
            else:
                w = _regs(ops[0]) if ops else set()
                for o in ops[1:]:
                    r |= _regs(o)
                if "saveexec" in op:
                    w.add(("s", "exec"))
        self.w, self.r = w, r
        self.states = 1
        if op == "s_nop":
            self.states = int(ops[0], 0) + 1


def _vg(x):
    return {q for q in x if q[0] == "v"}


def _sg(x):
    return {q for q in x if q[0] == "s"}


def need(p, c):
    n = 0
    if p.mfma:
        k = {4: (6, 8, 3), 8: (10, 12, 7)}[p.passes]
        if c.mfma:
            if p.w & (c.a | c.b):
                n = max(n, k[1])
            if p.w & c.c and not (p.w == c.c and p.passes == c.passes):
                n = max(n, k[0])
            if p.w & c.w and not (p.w == c.w):
                n = max(n, k[0])
        else:
            if p.w & (c.r | c.w):
                n = max(n, k[1])
            if c.valu and p.c & c.w:
                n = max(n, k[2])
    if p.valu:
        pv, ps = _vg(p.w), _sg(p.w)
        if c.mfma and pv & c.r:
            n = max(n, 3 if p.dot else 2)
        if c.mfma and ("s", "exec") in ps:
            n = max(n, 4)
        if c.valu:
            if c.dpp and pv & c.r:
                n = max(n, 2)
            if c.dpp and ("s", "exec") in ps:
                n = max(n, 5)
            if c.op.startswith(("v_readlane", "v_readfirstlane")) and pv & c.r:
                n = max(n, 1)
            if c.op.startswith(("v_readlane", "v_writelane")) and ps & c.r:
                n = max(n, 4)
            if c.op.startswith(("v_readlane", "v_readfirstlane", "v_writelane")) and ("s", "exec") in ps:
                n = max(n, 4)
            if ps & c.r:
                n = max(n, 2)
            if p.trans and not c.trans and pv & c.r:
                n = max(n, 1)
            if p.sdwa and pv & (c.r | c.w):
                n = max(n, 1)
            if c.op.startswith("v_permlane") and pv & c.r:
                n = max(n, 2)
            if p.dot and pv & (c.r | c.w):
                same_c = c.op == p.op and not (pv & (_regs(c.ops[1]) | _regs(c.ops[2])))
                if not same_c:
                    n = max(n, 3)
        if (c.vmem or c.ds) and p.dot and pv & c.r:
            n = max(n, 3)
        if (c.vmem or c.ds) and p.trans and pv & c.r:
            n = max(n, 1)
        if c.vmem and ps & c.r:
            n = max(n, 5)
    if p.vmem and getattr(p, "wide_store", False) and p.data & c.w:
        n = max(n, 2)
    if p.salu and ("s", "m0") in p.w and c.lds_dma:
        n = max(n, 1)
    return n


def check(lines):
    ins, labels = [], {}
    for ln in lines:
        t = ln.split(";")[0].strip()
        if not t or t.startswith("."):
            continue
        if t.endswith(":"):
            labels[t[:-1]] = len(ins)
            continue
        ins.append(Ins(t))
    calls = [i for i, x in enumerate(ins) if x.op == "s_call_b64"]

    def succ(i):
        x = ins[i]
        if x.op == "s_endpgm":
            return []
        if x.op == "s_branch":
            return [labels[x.ops[0]]]
        if x.op == "s_call_b64":
            return [labels[x.ops[1]]]
        if x.op == "s_setpc_b64":
            return [c + 1 for c in calls if ins[c].ops[0] == x.ops[0]]
        out = [i + 1] if i + 1 < len(ins) else []
        if x.op.startswith("s_cbranch"):
            out.append(labels[x.ops[0]])
        return out

    problems = set()
    for i, p in enumerate(ins):
        if not (p.mfma or p.valu or p.vmem or (p.salu and ("s", "m0") in p.w)):
            continue
        stack = [(j, 0) for j in succ(i)]
        seen = {}
        while stack:
            j, d = stack.pop()
            if d > 14 or seen.get(j, 99) <= d:
                continue
            seen[j] = d
            c = ins[j]
            n = need(p, c)
            if n > d:
                problems.add((i, j, n, d))
            for k in succ(j):
                stack.append((k, d + c.states))
    return [f"need {n} have {d}: [{i}] {ins[i].text}  ->  [{j}] {ins[j].text}" for i, j, n, d in sorted(problems)]


def sizes(lines):
    import subprocess
    import tempfile
    body = [ln for ln in lines]
    refs = set(re.findall(r"\b(?:K2|F)_\w+", "\n".join(body)))
    defs = {ln[:-1] for ln in body if ln.endswith(":")}
    src = '.amdgcn_target "amdgcn-amd-amdhsa--gfx950"\n.text\n'
    src += "\n".join(ln for ln in body if not ln.startswith(".p2align")) + "\n" + "".join(f"{r}:\n" for r in refs - defs)
    with tempfile.TemporaryDirectory() as d:
        open(d + "/x.s", "w").write(src)
        subprocess.run(["clang", "-x", "assembler", "-target", "amdgcn-amd-amdhsa", "-mcpu=gfx950",
                        "-c", d + "/x.s", "-o", d + "/x.o"], check=True)
        dis = subprocess.run(["llvm-objdump", "-d", "--mcpu=gfx950", d + "/x.o"],
                             capture_output=True, text=True).stdout
    enc = [4 * len(m.group(1).split()) for m in re.finditer(r"// [0-9A-F]{12}: ((?:[0-9A-F]{8} ?)+)", dis)]
    out, k = [], 0
    for ln in body:
        if ln.endswith(":") or ln.startswith((".", ";")):
            out.append(0)
        else:
            out.append(enc[k])
            k += 1
    assert k == len(enc)
    return out


_WIDE_OK = ("v_exp_f32", "v_rcp_f32", "v_or_b32", "v_mov_b32", "v_sub_f32", "v_add_u32", "v_min_u32", "v_mul_f32",
            "v_add_f32", "v_fmac_f32", "v_lshlrev_b32", "v_xor_b32", "v_and_b32", "v_lshrrev_b32", "v_mov_b64")


def align8(lines, phase=0):
    sz = sizes(lines)
    out, off, cand = list(lines), 0, None
    for i, ln in enumerate(lines):
        if sz[i] == 8:
            if off % 8 != phase and cand is not None:
                op, rest = out[cand].split(" ", 1)
                out[cand] = f"{op}_e64 {rest}"
                off += 4
            cand = None
        elif sz[i] == 4 and ln.split(" ")[0] in _WIDE_OK:
            cand = i
        off += sz[i]
    return out
```

```python
import os
import struct
import sys

sys.path.insert(0, os.path.dirname(os.path.abspath(__file__)))
from asmlib import Asm, align8, check, s, v

NAME = "standalone__cheap_equivariant_egnn__graph"
N, E = 25000, 400000
CH, BS = 1568, 98
CHB = CH * 12
WS_EPO, WS_TAB, WS_OFF, WS_F2, WS_W, WS_X = 0, 4096, 0x640000, 0x6C0000, 0x6D0000, 0x6F0000
P4 = 0x4A0000
WS_DBG = 0x1000000


def f2u(x):
    return struct.unpack("<I", struct.pack("<f", x))[0]


C_FWD = f2u(-1.4426950408889634)
C_INV = f2u(-0.6931471805599453)
C_LO = f2u(-1.4426950408889634 * 2.0 ** 24)
OOB = 0x30000

OPT = dict(stout="nt", stpos="", stamps=0, prio=0, safe=0, x_nold=0, x_nox=0, x_norow=0, sched=1, hs="sc1", f2s=5, pe=1, pp=1, f2pos=1,
           hlate=1, cpf=1, pa="BNCL", pb="T", gpoll=0, gsplit=2, wpos=1, w1in=1, epub=0, ool=0, php="FD", yb=11, tp=1, al=0, lal=0, hend=0, r1pos=0, burst=8, lut=1, lb=8, merge=1, lsp=1, nopk=0, ldp=0)
SPIN = 40000


def scan64(a, r, fill=()):
    fill = list(fill)
    for d in ("row_shr:1 row_mask:0xf", "row_shr:2 row_mask:0xf", "row_shr:4 row_mask:0xf",
              "row_shr:8 row_mask:0xf", "row_bcast:15 row_mask:0xa", "row_bcast:31 row_mask:0xc"):
        a.ext(fill.pop(0) if fill else ["s_nop 1"])
        a(f"v_add_u32_dpp {r}, {r}, {r} {d} bank_mask:0xf")


STAMP_V = 35


def stamp(a, k):
    if OPT["stamps"]:
        a("s_memrealtime s[98:99]" if k < 30 else "s_memtime s[98:99]")
        a(f"s_waitcnt lgkmcnt(0)\nv_writelane_b32 v{STAMP_V}, s98, {k}")


def stamps_out(a, wave):
    if not OPT["stamps"]:
        return
    a(f"""
s_mov_b64 exec, -1
s_lshl_b32 s3, s2, 3
s_add_u32 s3, s3, {wave}
s_lshl_b32 s3, s3, 8
s_add_u32 s3, s3, {WS_DBG}
v_and_b32 v1, 63, v0
v_lshl_add_u32 v1, v1, 2, s3
global_store_dword v1, v{STAMP_V}, s[24:25]
""")


POS, HIST, FLAG, BASE, PDL, OH, WX, SRC, AUX = 32768, 36128, 36640, 36704, 37216, 39424, 39680, 39936, 48384
MA, SB, AT, HR, MS = 56848, 87376, 105808, 135936, 288
SG, W2L, W1L = SRC, HR - 32768, 60928
K2_LDS = 163840
LSH = 25
CAP4 = 8192

vLANE, vAUXA, vSRCA, vSROW, vSRD, vWAB, vMRD, vMB, vPB, vH8, vNP, vXI, vXC, vSA, vSH = range(1, 16)
t0, t1, t2, t3, t4, t5 = range(16, 22)
vPDA, vOHA, vAUX, SEL, Z, SM = 22, 23, 24, 26, 28, 30
X, XC, S, EE, M = 32, 36, 40, 48, 56
R0, R1, PH, PL, T, H1, PD, WA, AD = 64, 80, 96, 112, 128, 192, 220, 224, 240
vREM, vKA, vWE, vWXD, vP4 = 22, 23, 40, 41, 44

sWAVE, sBIN, sN0, sDONE, sSPB, sTOT, sMORE, sINIT = range(44, 52)
sTILE, sEND, sDUM, sRT, sRD, sRDP, sNB1, sNL1 = range(52, 60)
sIT, sCNT = 75, 76
sNBF, sNLF, sHEAD, sTAIL = 8, 9, 10, 11
sNONCE, sSPIN = 14, 15


def mf(d, aa, bb, c):
    cc = "0" if c is None else v(c, 16)
    return f"v_mfma_f32_32x32x16_bf16 {v(d, 16)}, {v(aa, 4)}, {v(bb, 4)}, {cc}"


def mf8(d, aa, bb, c):
    cc = "0" if c is None else v(c, 16)
    return f"v_mfma_f32_32x32x8_bf16 {v(d, 16)}, {v(aa, 2)}, {v(bb, 2)}, {cc}"


def mf16(d, aa, bb, c):
    cc = "0" if c is None else v(c, 4)
    return f"v_mfma_f32_16x16x32_bf16 {v(d, 4)}, {v(aa, 4)}, {v(bb, 4)}, {cc}"


B3 = "dst_sel:DWORD dst_unused:UNUSED_PAD src0_sel:DWORD src1_sel:BYTE_3"


def lines(txt):
    return [x.strip() for x in txt.strip().split("\n") if x.strip()]


def advance():
    return lines(f"""
s_add_u32 s77, s{sNB1}, 8
s_cmp_ge_i32 s{sNL1}, s77
s_cselect_b32 s{sRT}, s77, 0
s_cselect_b32 s77, 0, 128
s_add_u32 s{sTILE}, s{sTILE}, s77
s_mov_b32 s{sRDP}, s{sRD}
s_cmp_lt_u32 s{sTILE}, s{sEND}
s_cselect_b32 s{sRD}, s{sTILE}, s{sDUM}""")


def tile_reads():
    return [f"v_add_u32 v{t0}, s{sRD}, v{vAUXA}", f"v_add_u32 v{t1}, s{sRD}, v{vSRCA}",
            f"ds_read2st64_b32 {v(vAUX, 2)}, v{t0} offset0:{SRC // 256} offset1:{AUX // 256}"] + [
        f"ds_read_b128 {v(AD + 4 * q, 4)}, v{t1} offset:{SRC + 16 + 32 * q}" for q in range(4)]


def window():
    return lines(f"""
v_readlane_b32 s78, v{vAUX + 1}, 0
v_readlane_b32 s79, v{vAUX + 1}, 31
s_add_u32 s77, s{sNBF}, 8
s_lshr_b32 s78, s78, 24
s_lshr_b32 s79, s79, 24
s_max_u32 s78, s78, s{sRT}
s_min_u32 s{sNL1}, s79, s{sTAIL}
s_cmp_ge_i32 s{sNL1}, s77
s_cselect_b32 s{sNB1}, s78, s{sNBF}""")


def x_addr():
    return [f"v_cndmask_b32 v{vXI}, v{vAUX + 1}, v{vAUX}, s[64:65]", f"v_bfe_u32 v{vXI}, v{vXI}, v{vSH}, 20"] + (
        [f"v_min_u32 v{AD + r}, {N * 256}, v{AD + r}" for r in range(16)] if OPT["safe"] else []) + (
        [f"v_mov_b32 v{vXI}, 0xfffff"] if OPT["x_nox"] == 1 else [])


def plan_v():
    return lines(f"""
v_subrev_u32_sdwa v{t0}, s{sNB1}, v{vAUX + 1} {B3}
v_lshlrev_b32_sdwa v{vPDA}, 4, v{vAUX + 1} {B3}
v_min_u32 v{t0}, 8, v{t0}
v_lshl_add_u32 v{vOHA}, v{t0}, 4, v{vH8}
v_lshl_add_u32 v{vSA}, v{t0}, 3, v{vSROW}""")


def cost(x):
    return 8 if x.startswith(("v_exp", "v_rcp", "v_mfma")) else 4


def sched(main, side, first=0, last=None, win=40):
    last = len(main) if last is None else last
    ok, since = [], 99
    for g, x in enumerate(main):
        since = 0 if x.startswith("v_mfma") else since + cost(x)
        if first <= g < last and (since >= win or not OPT["sched"]) and not x.startswith("?"):
            ok.append(g)
    put = {}
    for n, x in enumerate(side or []):
        put.setdefault(ok[n * len(ok) // len(side)], []).append(x)
    out = []
    for g, x in enumerate(main):
        out.append(x)
        out += put.get(g, [])
    return out


def x_reads():
    return [f"ds_read_b96 {v(PD, 3)}, v{vPDA} offset:{PDL}",
            f"ds_read_b64 {v(XC + 2, 2)}, v{vOHA} offset:{OH}"]


def x_build():
    return [f"v_pk_add_f32 {v(t0, 2)}, {v(PD, 2)}, {v(X, 2)} neg_lo:[0,1] neg_hi:[0,1]",
            f"v_sub_f32 v{t2}, v{PD + 2}, v{X + 2}",
            f"v_cvt_pk_bf16_f32 v{t0}, 1.0, v{t0}",
            f"v_cvt_pk_bf16_f32 v{t1}, v{t1}, v{t2}",
            f"v_dot2_f32_bf16 v{t3}, v{t1}, v{t1}, 0",
            f"v_and_b32 v{t2}, 0xffff0000, v{t0}",
            f"v_mov_b32 v{XC + 1}, v{X + 1}",
            f"ds_write_b64 v{vSA}, {v(t0, 2)}",
            f"v_fmac_f32 v{t3}, v{t2}, v{t2}",
            f"v_cvt_pk_bf16_f32 v{t3}, v{t3}, v{t3}",
            f"v_cndmask_b32 v{XC}, v{X}, v{t3}, s[64:65]"]


def ld_x():
    return [f"buffer_load_dwordx3 {v(X, 3)}, {v(vXI, 2)}, s[60:63], 0 idxen offen {OPT['hs']}"]


def ld_r(half):
    R = R1 if half else R0
    if OPT["x_nold"]:
        return []
    return [f"buffer_load_dword v{R + r}, v{AD + r}, s[28:31], 0 offen" + (" offset:128 " if half else " ") + OPT["hs"]
            for r in range(16)]


def grp(lst):
    n = OPT["burst"]
    return ["\n".join(lst[i:i + n]) for i in range(0, len(lst), n)]


def wa_reads(nb):
    out = [f"s_mul_i32 s77, s{nb}, 264", f"v_add_u32 v{t3}, s77, v{vWAB}"]
    for t in range(4):
        out.append(f"ds_read_b64_tr_b16 {v(WA + 4 * t + 2, 2)}, v{t3} offset:{64 * t + 8 * 264}")
    return out


def m_reads(nb, cmp):
    out = [f"s_mul_i32 s77, s{nb}, {MS}", f"s_sub_u32 s78, s{sTAIL}, s{nb}",
           f"v_add_u32 v{SM}, s77, v{vMRD}", f"v_cmp_{cmp}_i32 vcc, s78, v{vNP}"]
    for t in range(4):
        out.append(f"ds_read_b64_tr_b16 {v(EE + 2 * t, 2)}, v{SM} offset:{64 * t}")
    out += [f"v_cndmask_b32 v{SM}, 0, v{SEL}, vcc", f"v_cndmask_b32 v{SM + 1}, 0, v{SEL + 1}, vcc"]
    return out


def batch(P, b, in_exp=(), in_rcp=()):
    in_exp, in_rcp = dict(in_exp), dict(in_rcp)
    o = []
    for i in range(8):
        o += in_exp.get(i, [])
        o.append(f"v_exp_f32 v{EE + i}, v{P + 8 * b + i}")
    o += in_exp.get(8, [])
    for i in range(0, 8, 2):
        if OPT["nopk"] & 1:
            o.append(f"v_add_f32 v{EE + i}, 1.0, v{EE + i}\nv_add_f32 v{EE + i + 1}, 1.0, v{EE + i + 1}")
        else:
            o.append(f"v_pk_add_f32 {v(EE + i, 2)}, {v(EE + i, 2)}, 1.0 op_sel_hi:[1,0]")
    for i in range(8):
        o += in_rcp.get(i, [])
        o.append(f"v_rcp_f32 v{EE + i}, v{EE + i}")
    o += in_rcp.get(8, [])
    for i in range(0, 8, 2):
        if OPT["nopk"] & 2:
            o.append("\n".join(f"v_mul_f32 v{EE + q}, v{P + 8 * b + q}, v{EE + q}" for q in (i, i + 1)))
        else:
            o.append(f"v_pk_mul_f32 {v(EE + i, 2)}, {v(P + 8 * b + i, 2)}, {v(EE + i, 2)}")
    for i in range(4):
        o.append(f"v_cvt_pk_bf16_f32 v{M + 4 * b + i}, v{EE + 2 * i}, v{EE + 2 * i + 1}")
    return o


def seg(t, k):
    return mf(T + 16 * t, M + 4 * k, S + 4 * k, T + 16 * t)


class Cnt:
    def __init__(self):
        self.ops = []

    def __call__(self, tag, ins):
        self.ops.append(tag)
        return ins

    def wait(self, tag):
        last = max(n for n, t in enumerate(self.ops) if t == tag)
        return f"s_waitcnt lgkmcnt({min(15, len(self.ops) - 1 - last)})"


gH, gA = XC, SM


def node_addr():
    return lines(f"""
v_and_b32 v{t0}, 15, v{vLANE}
v_lshrrev_b32 v{t1}, 4, v{vLANE}
v_xor_b32 v{t2}, v{t0}, v{t1}
v_lshlrev_b32 v{t2}, 4, v{t2}
v_lshl_add_u32 v{t2}, v{t0}, 8, v{t2}
v_add_u32 v{gH}, {HR}, v{t2}
v_xor_b32 v{gH + 1}, 64, v{gH}
v_xor_b32 v{gH + 2}, 128, v{gH}
v_xor_b32 v{gH + 3}, 192, v{gH}
s_lshl_b32 s77, s{sWAVE}, 5
s_add_u32 s77, s77, {AT + 8 * 264}
v_cmp_gt_u32 vcc, 10, v{t0}
v_mul_u32_u24 v{t2}, 264, v{t0}
v_lshl_add_u32 v{t2}, v{t1}, 3, v{t2}
v_add_u32 v{gA}, s77, v{t2}
v_mov_b32 v{t2}, {OOB}
v_cndmask_b32 v{gA + 1}, v{t2}, v{gA}, vcc""")


NBUF = [T + 32, T + 48, WA, PH]


def node_gemm(a, which, hooks, c, NBUF=NBUF, gH=gH, W=None):
    W = W or (T if which == "A" else T + 16)

    def node_rd(mt, k):
        return f"ds_read_b128 {v(NBUF[mt & 3] + 4 * k, 4)}, v{gH + k} offset:{4096 * mt}"

    def acc(mt):
        return PL + 4 * (mt & 3) if which == "A" else H1 + 4 * mt

    def post(mt):
        ac = acc(mt)
        if which == "H":
            return []
        return [f"v_mul_f32 v{ac + r}, s3, v{ac + r}" for r in range(4)] + [
            f"v_cvt_pk_bf16_f32 v{ac}, v{ac}, v{ac + 1}", f"v_cvt_pk_bf16_f32 v{ac + 1}, v{ac + 2}, v{ac + 3}",
            f"ds_write_b64 v{gA + (1 if mt == 6 else 0)}, {v(ac, 2)} offset:{16 * 264 * mt}"]

    for mt in range(4):
        for k in range(4):
            a(c(f"r{mt}", node_rd(mt, k)))
    for p_ in range(4):
        mts = [m for m in (2 * p_, 2 * p_ + 1) if m < 7]
        pend = (post(2 * p_ - 2) + post(2 * p_ - 1)) if p_ else []
        a(c.wait(f"r{mts[-1]}"))
        n = 0
        for k in range(4):
            for m in mts:
                a(mf16(acc(m), W + 4 * k, NBUF[m & 3] + 4 * k, None if k == 0 else acc(m)))
                if m + 4 < 7:
                    a(c(f"r{m + 4}", node_rd(m + 4, k)))
                n += 1
                for _ in range(3 if n > 3 else 0):
                    if pend:
                        x = pend.pop(0)
                        a(c("w", x) if x.startswith("ds_") else x)
        for x in pend:
            a(c("w", x) if x.startswith("ds_") else x)
        if p_ in hooks:
            hooks[p_]()
    if which == "H":
        a.ext(f"v_pk_mul_f32 {v(H1 + r, 2)}, {v(H1 + r, 2)}, s[68:69]" for r in range(0, 28, 2))
    a.ext(post(6))


def w_voff(dst):
    return lines(f"""
v_lshrrev_b32 v{t0}, 4, v{vLANE}
v_and_b32 v{t1}, 15, v{vLANE}
s_lshl_b32 s77, s{sWAVE}, 12
v_lshlrev_b32 v{t2}, 2, v{t0}
v_xor_b32 v{t2}, v{t2}, v{t1}
v_lshl_add_u32 v{t0}, v{t0}, 8, s77
v_lshl_add_u32 v{dst}, v{t2}, 4, v{t0}""")


def w_dma(voff, srd, soff, base):
    return [f"s_lshl_b32 s77, s{sWAVE}, 12", f"s_add_u32 m0, s77, {base}", "s_nop 0"] + [
        f"buffer_load_dwordx4 v{voff}, {s(srd, 4)}, {soff} offen offset:{1024 * n} lds" for n in range(4)]


def w_fragaddr(dst, base):
    return lines(f"""
v_bfe_u32 v{t0}, v{vLANE}, 2, 2
v_lshrrev_b32 v{t1}, 4, v{vLANE}
v_lshl_add_u32 v{t1}, v{t1}, 3, v{t0}
s_lshr_b32 s77, s{sWAVE}, 1
v_xor_b32 v{t0}, s77, v{t0}
v_lshlrev_b32 v{t1}, 8, v{t1}
v_lshl_add_u32 v{t1}, v{t0}, 6, v{t1}
v_and_b32 v{t0}, 3, v{vLANE}
s_and_b32 s77, s{sWAVE}, 1
s_lshl_b32 s77, s77, 5
s_add_u32 s77, s77, {base}
v_lshl_add_u32 v{t1}, v{t0}, 3, v{t1}
v_add_u32 v{dst}, s77, v{t1}""")


def w_frags(dst, addr, off):
    return [f"ds_read_b64_tr_b16 {v(dst + 4 * k + 2 * q, 2)}, v{addr} offset:{off + 8192 * k + 1024 * q}"
            for k in range(4) for q in range(2)]


def k2(a):
    hs = OPT["hs"]
    KEYS = 2048
    EAL = KEYS + CH * 4
    D, SR, EA, BN, RK, KY, eo, SC, CA, OF, ZQ = 64, 68, 72, 80, 84, 88, 92, 96, 108, H1, PD
    vWV, vPA, vPOLL, vF2, vP16 = 42, 43, vXI, vSA, M + 7
    HF, WF, AH, AL = R0, T, WA, AD
    bW0, bW1, bS0, bS1, q0, q1 = M, M + 1, M + 2, M + 3, M + 4, M + 5

    def consts():
        a(f"""
s_add_u32 s28, s24, {WS_TAB - 128}
s_addc_u32 s29, s25, 0
s_and_b32 s29, s29, 0xffff
s_or_b32 s29, s29, 0x40000
s_mov_b32 s30, 64
s_mov_b32 s31, 0x800000
s_mov_b32 s64, 0
s_mov_b32 s65, -1
s_mov_b32 s70, {C_INV:#x}
s_mov_b32 s71, s70
v_and_b32 v{t0}, 31, v{vLANE}
v_lshrrev_b32 v{t1}, 5, v{vLANE}
v_lshl_add_u32 v{vAUXA}, v{t0}, 2, 16
v_lshlrev_b32 v{vSRCA}, 4, v{t1}
v_lshlrev_b32 v{vH8}, 3, v{t1}
v_lshrrev_b32 v{vNP}, 2, v{t0}
v_and_b32 v{vXC}, 1, v{vNP}
v_lshlrev_b32 v{vXC}, 3, v{vXC}
v_add_u32 v{vXC}, {P4 - 8}, v{vXC}
v_mul_u32_u24 v{vXC}, v{vXC}, v{t1}
v_mul_u32_u24 v{vSH}, 7, v{t1}
s_mul_i32 s77, s{sWAVE}, 2304
s_add_u32 s77, s77, {SB}
v_mul_u32_u24 v{t2}, 72, v{t0}
v_add_u32 v{t2}, s77, v{t2}
v_mov_b32 v{t5}, {OOB}
v_cndmask_b32 v{vSROW}, v{t5}, v{t2}, s[64:65]
v_lshlrev_b32 v{vPB}, 3, v{t0}
v_bfe_u32 v{t2}, v{vLANE}, 2, 2
v_and_b32 v{t3}, 3, v{vLANE}
v_cmp_eq_u32 vcc, 0, v{t3}
v_lshlrev_b32 v{t3}, 3, v{t3}
v_and_b32 v{t4}, 16, v{vLANE}
v_lshl_add_u32 v{t3}, v{t4}, 1, v{t3}
v_lshl_add_u32 v{t4}, v{t1}, 2, v{t2}
v_mul_u32_u24 v{vSRD}, 72, v{t4}
v_add3_u32 v{vSRD}, v{vSRD}, v{t3}, s77
v_mul_u32_u24 v{vWAB}, 264, v{t4}
s_mov_b32 s77, {AT}
v_add3_u32 v{vWAB}, v{vWAB}, v{t3}, s77
v_mul_u32_u24 v{vMRD}, {MS}, v{t4}
s_mov_b32 s77, {MA}
v_add3_u32 v{vMRD}, v{vMRD}, v{t3}, s77
v_mul_u32_u24 v{t3}, {MS}, v{vNP}
v_add3_u32 v{t3}, v{t3}, v{vH8}, s77
v_cndmask_b32 v{vMB}, v{t5}, v{t3}, vcc
v_lshrrev_b32 v{t3}, 2, v{vNP}
v_cmp_eq_u32 s[66:67], v{t3}, v{t1}
v_mov_b32 v{t4}, 0x3f80
s_and_b64 vcc, vcc, s[66:67]
v_mov_b32 v{t5}, 0
v_cndmask_b32 v{t4}, 0, v{t4}, vcc
v_lshlrev_b32 v{t2}, 4, v{t2}
v_lshlrev_b64 {v(SEL, 2)}, v{t2}, {v(t4, 2)}
""")

    def cell_addr():
        return lines(f"""
s_lshr_b32 s77, s{sBIN}, 2
s_lshl_b32 s77, s77, 4
s_and_b32 s78, s{sBIN}, 1
s_lshl_b32 s78, s78, 3
s_add_u32 s77, s77, s78
s_and_b32 s78, s{sBIN}, 2
s_lshl_b32 s78, s78, 9
s_add_u32 s77, s77, s78
s_add_u32 s77, s77, {WS_OFF}
v_lshrrev_b32 v{vKA}, 1, v0
v_lshl_add_u32 v{vPOLL}, v{vKA}, 11, s77
s_mov_b32 s77, {WS_F2}
v_lshl_add_u32 v{vF2}, v{vKA}, {OPT["f2s"]}, s77
v_mul_u32_u24 v{vKA}, {CHB}, v{vKA}
v_and_b32 v{vP16}, 1, v0
v_lshlrev_b32 v{vP16}, 4, v{vP16}""")

    a(f".p2align 8\n{NAME}_kernel:")
    a(f"""
s_cmp_ge_u32 s2, 256
s_cbranch_scc1 K2_END
s_load_dwordx16 s[4:19], s[0:1], 0
s_load_dwordx2 s[20:21], s[0:1], 64
s_load_dwordx2 s[24:25], s[0:1], 80
""")
    stamp(a, 0)
    a(f"v_lshrrev_b32 v{t0}, 6, v0")
    if OPT["cpf"]:
        a(f"""
s_getpc_b64 s[74:75]
K2_PC:
s_and_b32 s3, s2, -8
v_add_lshl_u32 v{t1}, v{t0}, s3, 6
v_min_u32 v{t1}, K2_END-K2_PC, v{t1}
global_load_dword v{X + 2}, v{t1}, s[74:75]
""")
    a(f"""
v_and_b32 v{vLANE}, 63, v0
v_readfirstlane_b32 s{sWAVE}, v{t0}
s_mul_i32 s26, s2, {CH * 4}
v_lshl_add_u32 v{eo}, v0, 4, s26
s_mov_b32 s79, {SG}
v_lshl_add_u32 v{t1}, v0, 2, s79
v_mov_b64 {v(Z, 2)}, 0
ds_write_b32 v{t1}, v{Z}
v_cmp_gt_u32 vcc, {CH // 4}, v0
s_mov_b64 s[72:73], vcc
v_cmp_gt_u32 vcc, {E * 4}, v{eo}
s_and_b64 s[72:73], s[72:73], vcc
v_cndmask_b32 v{eo}, 0, v{eo}, s[72:73]
s_or_b64 exec, s[72:73], 1
v_lshlrev_b32 v{eo + 1}, 1, v{eo}
s_and_b32 s{sBIN}, s2, 7
s_lshl_b32 s{sBIN}, s{sBIN}, 5
s_lshr_b32 s3, s2, 3
s_add_u32 s{sBIN}, s{sBIN}, s3
s_mul_i32 s{sN0}, s{sBIN}, {BS}
s_mov_b32 s38, {261 * 256}
s_mov_b32 s39, 0x20000
s_waitcnt lgkmcnt(0)
global_load_dwordx4 {v(D, 4)}, v{eo}, s[12:13]
s_load_dword s22, s[24:25], {WS_EPO}
s_barrier
global_load_dwordx4 {v(SR, 4)}, v{eo}, s[10:11]
global_load_dwordx4 {v(EA, 4)}, v{eo + 1}, s[8:9]
global_load_dwordx4 {v(EA + 4, 4)}, v{eo + 1}, s[8:9] offset:16
s_mov_b64 exec, -1
s_mov_b32 s36, s14
s_mov_b32 s37, s15
s_add_u32 s77, s{sWAVE}, 257
s_cmp_lt_u32 s{sWAVE}, 4
s_cselect_b32 s77, s77, 256
s_lshl_b32 s77, s77, 8
v_lshlrev_b32 v{t0}, 2, v{vLANE}
buffer_load_dword v{vWE}, v{t0}, s[36:39], s77 offen
s_mov_b32 s60, s16
s_mov_b32 s61, s17
s_mov_b32 s16, s18
s_mov_b32 s17, s19
v_add_u32 v{vPA}, s{sN0}, v0
s_cmp_lt_u32 s{sWAVE}, 2
s_cbranch_scc1 F_A
global_load_dword v{vWXD}, v{t0}, s[60:61]
s_mul_i32 s77, s3, 6
s_add_u32 s77, s77, s{sWAVE}
s_sub_u32 s77, s77, 2
s_mul_i32 s77, s77, 384
v_min_u32 v{t0}, 2, v{vLANE}
v_lshl_add_u32 v{t0}, v{t0}, 7, s77
buffer_load_dword v{X}, v{t0}, s[36:39], 0 offen
s_and_b32 s77, s2, 30
s_lshl_b32 s77, s77, 10
s_lshr_b32 s78, s2, 5
s_lshl_b32 s78, s78, 5
s_add_u32 s77, s77, s78
s_and_b32 s78, s2, 1
s_lshl_b32 s78, s78, 4
s_add_u32 s77, s77, s78
s_cmp_eq_u32 s{sWAVE}, 7
s_cselect_b32 s78, 32768, 0
s_add_u32 s77, s77, s78
v_and_b32 v{t0}, 7, v{vLANE}
v_lshrrev_b32 v{t1}, 3, v{vLANE}
v_lshl_add_u32 v{t0}, v{t0}, 8, s77
v_lshl_add_u32 v{t0}, v{t1}, 1, v{t0}
global_load_short_d16_hi v{vP4}, v{t0}, s[16:17]
s_branch F_B
F_A:
s_mov_b32 s60, s6
s_mov_b32 s61, s7
s_mov_b32 s62, {N * 6}
s_mov_b32 s63, 0x20000
v_mul_u32_u24 v{t1}, 6, v{vPA}
buffer_load_short_d16_hi v{vP4}, v{t1}, s[60:63], 0 offen
buffer_load_short_d16_hi v{vP4 + 1}, v{t1}, s[60:63], 0 offen offset:2
buffer_load_short_d16_hi v{vP4 + 2}, v{t1}, s[60:63], 0 offen offset:4
F_B:
s_add_u32 s77, s{sN0}, {BS}
s_lshl_b32 s58, s77, 8
s_min_u32 s34, s58, {N * 256}
s_mov_b32 s32, s4
s_mov_b32 s33, s5
s_mov_b32 s35, 0x20000
s_lshl_b32 s77, s{sWAVE}, 12
s_add_u32 m0, s77, {HR}
s_lshl_b32 s78, s{sN0}, 8
s_add_u32 s78, s77, s78
v_lshrrev_b32 v{t0}, 4, v{vLANE}
v_and_b32 v{t1}, 15, v{vLANE}
v_xor_b32 v{t1}, v{t0}, v{t1}
v_lshlrev_b32 v{t1}, 4, v{t1}
v_lshl_add_u32 v{t1}, v{t0}, 8, v{t1}
v_add_u32 v{PL}, s78, v{t1}
v_xor_b32 v{PL + 1}, 64, v{PL}
v_xor_b32 v{PL + 2}, 128, v{PL}
v_xor_b32 v{PL + 3}, 192, v{PL}
""")
    hdma = [f"buffer_load_dwordx4 v{PL + n}, s[32:35], 0 offen offset:{1024 * n} lds" for n in range(4)]
    if not OPT["hlate"]:
        a.ext(hdma)
    a(f"""
F_1:
v_lshlrev_b32 v{CA}, 4, v0
v_add_u32 v{CA + 1}, 8192, v{CA}
v_add_u32 v{CA + 2}, 16384, v{CA}
v_add_u32 v{CA + 3}, s79, v{CA}
s_mov_b32 s68, {C_FWD:#x}
s_mov_b32 s69, s68
s_mov_b32 s18, {C_LO if OPT["lut"] else C_FWD:#x}
s_mov_b32 s19, s18
v_lshlrev_b32 v{t1}, 3, v0
ds_write_b64 v{t1}, {v(Z, 2)} offset:{POS}
""")
    a.ext(w_voff(vWV))

    def blk_B():
        a(f"""
s_add_u32 s56, s24, {WS_TAB}
s_addc_u32 s57, s25, 0
s_mov_b32 s59, 0x20000
v_bfe_u32 v{t0}, v{vLANE}, 2, 2
v_and_b32 v{t3}, 3, v{vLANE}
v_lshrrev_b32 v{t1}, 5, v{vLANE}
v_lshl_add_u32 v{t2}, v{t1}, 3, v{t0}
v_lshlrev_b32 v{t2}, 8, v{t2}
v_lshl_add_u32 v{t2}, v{t3}, 3, v{t2}
v_and_b32 v{t3}, 16, v{vLANE}
v_lshl_add_u32 v{t2}, v{t3}, 1, v{t2}
s_and_b32 s66, s{sWAVE}, 1
s_lshr_b32 s27, s{sWAVE}, 1
s_lshl_b32 s77, s66, 1
v_xor_b32 v{t3}, s77, v{t0}
v_lshl_add_u32 v{bW0}, v{t3}, 6, v{t2}
v_add_u32 v{bW0}, {W2L}, v{bW0}
v_xor_b32 v{bW1}, 64, v{bW0}
v_and_b32 v{q0}, 31, v{vLANE}
v_and_b32 v{q1}, 15, v{vLANE}
v_xor_b32 v{q1}, v{t1}, v{q1}
v_lshlrev_b32 v{q1}, 4, v{q1}
v_lshl_add_u32 v{q1}, v{q0}, 8, v{q1}
s_lshl_b32 s78, s27, 13
s_add_u32 s77, s78, {HR}
v_add_u32 v{EE}, s77, v{q1}
""")
        for k in range(1, 8):
            a(f"v_xor_b32 v{EE + k}, {32 * k}, v{EE}")
        a(f"""
s_lshl_b32 s77, s{sN0}, 8
s_add_u32 s78, s78, s77
s_lshl_b32 s66, s66, 7
s_add_u32 s78, s78, s66
v_lshlrev_b32 v{bS0}, 10, v{t1}
v_lshl_add_u32 v{bS0}, v{q0}, 2, v{bS0}
v_add_u32 v{bS0}, s78, v{bS0}
v_add_u32 v{bS1}, 4096, v{bS0}
""")
        a.ext(w_fragaddr(q0, W1L))

    def blk_Z():
        a(f"v_mov_b64 {v(ZQ, 2)}, 0\nv_mov_b64 {v(ZQ + 2, 2)}, 0\nv_add_u32 v{t0}, {AT - 49152}, v{CA}")
        for i in range(6):
            a(f"ds_write_b128 v{t0}, {v(ZQ, 4)} offset:{8192 * i}")

    def blk_T():
        if not OPT["lut"]:
            return
        G, U, R1 = T, T + 8, T + 16
        a(f"s_mov_b32 s77, {(-65537 * 8) & 0xffffffff:#x}\nv_mul_lo_u32 v{G}, v0, s77")
        for r in range(3):
            for q in range(4):
                if r or q:
                    d = G + 4 * (r & 1) + q
                    src = G + 4 * ((r - 1) & 1) if q == 0 else G + 4 * (r & 1)
                    a(f"v_subrev_u32 v{d}, {0x10001000 if q == 0 else 131074 * q:#x}, v{src}")
            a(f"ds_write_b128 v{CA}, {v(G + 4 * (r & 1), 4)} offset:{8192 * r}")
        a(f"v_lshlrev_b32 v{t0}, 19, v0\ns_mov_b32 s66, {f2u(-2.0 ** (1 - LSH)):#x}\ns_mov_b32 s67, s66")
        for j in range(8):
            a(f"v_sub_u32 v{U + j}, {(20480 - j) << 16:#x}, v{t0}")
        for j in range(0, 8, 2):
            a(f"v_pk_mul_f32 {v(R1 + j, 2)}, {v(U + j, 2)}, s[66:67]")
        for j in range(8):
            a(f"v_exp_f32 v{R1 + j}, v{R1 + j}")
        for j in range(0, 8, 2):
            a(f"v_pk_add_f32 {v(R1 + 8 + j, 2)}, {v(R1 + j, 2)}, 1.0 op_sel_hi:[1,0]")
        for j in range(8):
            a(f"v_rcp_f32 v{R1 + 8 + j}, v{R1 + 8 + j}")
        for j in range(0, 8, 2):
            a(f"v_pk_add_f32 {v(R1 + j, 2)}, {v(R1 + j, 2)}, -1.0 op_sel_hi:[1,0]")
        for j in range(0, 8, 2):
            a(f"v_pk_mul_f32 {v(R1 + j, 2)}, {v(R1 + j, 2)}, {v(R1 + 8 + j, 2)}")
        for j in range(0, 8, 2):
            a(f"v_pk_mul_f32 {v(R1 + j, 2)}, {v(R1 + j, 2)}, {v(U + j, 2)}")
        for j in range(4):
            a(f"v_cvt_pk_bf16_f32 v{U + j}, v{R1 + 2 * j}, v{R1 + 2 * j + 1}")
        a(f"ds_write_b128 v{CA}, {v(U, 4)} offset:24576")

    poll = f"global_load_dwordx2 {v(vAUX, 2)}, v{vPOLL}, s[24:25] sc1"
    blocks = dict(B=blk_B, Z=blk_Z, C=consts, T=blk_T, N=lambda: a.ext(node_addr()), L=lambda: a.ext(cell_addr()),
                  P=lambda: a(poll))
    assert sorted(OPT["pa"] + OPT["pb"]) == sorted("BCNLT")
    for ch in OPT["pa"]:
        blocks[ch]()
    a(f"""
s_add_u32 s40, s24, {WS_X}
s_addc_u32 s41, s25, 0
s_mov_b32 s42, {P4 + N * 16}
s_mov_b32 s43, 0x20000
s_mul_i32 s26, s2, {CHB}
s_add_u32 s52, s40, s26
s_addc_u32 s53, s41, 0
s_movk_i32 s54, {CHB}
s_mov_b32 s55, 0x20000
s_mov_b32 s{sDONE}, 0
s_movk_i32 s{sSPB}, 128
s_mov_b32 s{sINIT}, 0
s_mov_b32 s{sSPIN}, 0
s_mov_b32 s3, 32768
v_mov_b32 v{vP4 + 3}, 0
v_lshlrev_b32 v{vPA}, 4, v{vPA}
v_add_u32 v{vPA}, {P4}, v{vPA}
v_cmp_gt_u32 vcc, {BS}, v0
v_mov_b32 v{t0}, {0x7f000000}
s_movk_i32 s26, {-BS}
v_cndmask_b32 v{vPA}, v{t0}, v{vPA}, vcc
v_mov_b32 v{t5}, 4
v_lshl_add_u32 v{t4}, v{vLANE}, 4, s79
s_mov_b64 exec, s[72:73]
s_waitcnt vmcnt({7 if OPT["hlate"] else 11})
""")
    stamp(a, 1)
    for i in range(4):
        a(f"v_mul_u32_u24 v{BN + i}, 2675, v{D + i}")
    for i in range(4):
        a(f"v_lshrrev_b32 v{KY + i}, 18, v{BN + i}")
    for i in range(4):
        a(f"v_lshl_add_u32 v{BN + i}, v{KY + i}, 2, s79")
    for i in range(4):
        a(f"ds_add_rtn_u32 v{RK + i}, v{BN + i}, v{t5}")
    for i in range(4):
        a(f"v_mad_i32_i24 v{KY + i}, v{KY + i}, s26, v{D + i}")
    for i in range(4):
        a(f"v_lshlrev_b32 v{KY + i}, 24, v{KY + i}")
    a("s_mov_b64 exec, -1")
    if OPT["hlate"]:
        a.ext(hdma)
    a(f"""
s_waitcnt lgkmcnt(0)
s_barrier
ds_read_b128 {v(SC, 4)}, v{t4}
s_waitcnt lgkmcnt(0)
v_add_u32 v{SC + 5}, v{SC}, v{SC + 1}
v_add_u32 v{SC + 6}, v{SC + 5}, v{SC + 2}
v_add_u32 v{SC + 7}, v{SC + 6}, v{SC + 3}
v_mov_b32 v{SC + 8}, v{SC + 7}
""")
    scan64(a, f"v{SC + 8}")
    a(f"""
v_sub_u32 v{SC + 4}, v{SC + 8}, v{SC + 7}
v_add_u32 v{SC + 7}, v{SC + 4}, v{SC + 6}
v_add_u32 v{SC + 6}, v{SC + 4}, v{SC + 5}
v_add_u32 v{SC + 5}, v{SC + 4}, v{SC}
ds_write_b128 v{t4}, {v(SC + 4, 4)} offset:1024
s_mov_b64 exec, s[72:73]
""")
    for i in range(4):
        a(f"ds_read_b32 v{BN + i}, v{BN + i} offset:1024")
    a("s_waitcnt vmcnt(10)")
    for i in range(4):
        a(f"v_lshl_or_b32 v{KY + i}, v{SR + i}, 8, v{KY + i}")
    a("s_waitcnt lgkmcnt(0)")
    for i in range(4):
        a(f"v_add_u32 v{RK + i}, v{BN + i}, v{RK + i}")
    for i in range(4):
        a(f"v_add_u32 v{BN + i}, s79, v{RK + i}")
    for i in range(4):
        a(f"ds_write_b32 v{BN + i}, v{KY + i} offset:{KEYS}")
        a(f"v_add_u32 v{RK + i}, v{BN + i}, v{RK + i}")
    a("s_waitcnt vmcnt(8)")
    stamp(a, 2)
    for i in range(4):
        a(f"ds_write_b64 v{RK + i}, {v(EA + 2 * i, 2)} offset:{EAL}")
    a("s_mov_b64 exec, -1")
    for i in range(4):
        a(f"v_lshl_or_b32 v{OF + 2 * i}, v{SC + i}, 16, v{SC + 4 + i}")
    a(f"""
s_waitcnt lgkmcnt(0)
s_barrier
ds_read_b128 {v(PH, 4)}, v{CA + 3} offset:{KEYS}
ds_read_b128 {v(PH + 4, 4)}, v{CA + 3} offset:{KEYS + 8192}
ds_read_b128 {v(PH + 8, 4)}, v{CA + 3} offset:{KEYS + 16384}
s_waitcnt lgkmcnt(2)
buffer_store_dwordx4 {v(PH, 4)}, v{CA}, s[52:55], 0 offen sc1
s_waitcnt lgkmcnt(1)
buffer_store_dwordx4 {v(PH + 4, 4)}, v{CA + 1}, s[52:55], 0 offen sc1
s_waitcnt lgkmcnt(0)
buffer_store_dwordx4 {v(PH + 8, 4)}, v{CA + 2}, s[52:55], 0 offen sc1
s_waitcnt vmcnt(7)
s_cmp_ge_u32 s{sWAVE}, 2
s_cbranch_scc1 F_C
buffer_store_dwordx4 {v(vP4, 4)}, v{vPA}, s[40:43], 0 offen sc1
ds_write_b128 v{CA}, {v(vP4, 4)} offset:{PDL}
s_branch F_D
F_C:
s_cmp_eq_u32 s{sWAVE}, 7
s_cselect_b32 s77, s2, 0
s_bitcmp1_b32 s77, 3
s_cselect_b32 s77, {f2u(2.0 ** -LSH) if OPT["lut"] else f2u(1.0):#x}, 1.0
v_mul_f32 v{vP4}, s77, v{vP4}
s_add_u32 s52, s24, {WS_W}
s_addc_u32 s53, s25, 0
s_mov_b32 s54, {2 * 32768}
s_sub_u32 s77, s{sWAVE}, 6
s_min_u32 s77, s77, 2
s_lshl_b32 s77, s77, 8
s_add_u32 s77, s77, s2
s_lshl_b32 s77, s77, 7
v_lshl_add_u32 v{t0}, v{vLANE}, 1, s77
buffer_store_short_d16_hi v{vP4}, v{t0}, s[52:55], 0 offen sc1
s_cmp_lg_u32 s{sWAVE}, 2
s_cbranch_scc1 F_D
v_lshrrev_b32 v{t0}, 2, v{vLANE}
v_and_b32 v{t2}, 3, v{vLANE}
v_lshrrev_b32 v{t3}, 1, v{t0}
v_lshlrev_b32 v{t0}, 4, v{t0}
v_mov_b32 v{t4}, 0x3f80
v_cmp_eq_u32 vcc, v{t2}, v{t3}
v_lshlrev_b32 v{t4}, v{t0}, v{t4}
v_bfe_u32 v{t2}, v{vLANE}, 4, 1
v_cndmask_b32 v{t4}, 0, v{t4}, vcc
v_mul_i32_i24 v{t2}, {-LSH if OPT["lut"] else 0}, v{t2}
v_lshlrev_b32 v{t0}, 16, v{vWXD}
v_and_b32 v{t1}, 0xffff0000, v{vWXD}
v_ldexp_f32 v{t0}, v{t0}, v{t2}
v_ldexp_f32 v{t1}, v{t1}, v{t2}
v_cvt_pk_bf16_f32 v{vWXD}, v{t0}, v{t1}
v_lshlrev_b32 v{t1}, 2, v{vLANE}
ds_write2st64_b32 v{t1}, v{t4}, v{vWXD} offset0:{OH // 256} offset1:{WX // 256}
F_D:
""")
    stamp(a, 3)
    a(f"s_mul_i32 s{sNONCE}, s22, 0x2c9277b5\ns_add_u32 s{sNONCE}, s{sNONCE}, 0xac564b05")
    w1d = w_dma(vWV, 36, "0", W1L)
    wl = w_dma(vWV, 36, "s3", W2L) + ([] if OPT["w1in"] else w1d)
    nw1 = 0 if OPT["w1in"] else 4
    if OPT["wpos"] == 0:
        a.ext(wl)
    a(f"""
s_mov_b32 s66, 0xffff0000
s_mov_b32 s67, s66
s_cmp_lt_u32 s{sWAVE}, 6
s_cselect_b32 s77, s68, 0
s_cselect_b32 s78, s18, 0
v_mov_b32 v{t2}, s77
v_mov_b32 v{t3}, s78
v_cndmask_b32 v{t2}, v{t2}, v{t3}, s[66:67]
s_cmp_eq_u32 s{sWAVE}, 5
s_cselect_b32 s26, -1.0, 0
s_mul_i32 s78, s{sWAVE}, 264
s_add_u32 s78, s78, {AT}
v_lshlrev_b32 v{t0}, 16, v{vWE}
v_and_b32 v{t1}, 0xffff0000, v{vWE}
v_mul_f32 v{t0}, v{t2}, v{t0}
v_mul_f32 v{t1}, v{t2}, v{t1}
v_cvt_pk_bf16_f32 v{t2}, v{t0}, v{t1}
v_lshlrev_b32 v{t3}, 16, v{t2}
v_and_b32 v{t2}, 0xffff0000, v{t2}
v_fmac_f32 v{t0}, s26, v{t3}
v_fmac_f32 v{t1}, s26, v{t2}
v_cvt_pk_bf16_f32 v{vWE}, v{t0}, v{t1}
v_lshl_add_u32 v{vPA}, v{vLANE}, 2, s78
s_mov_b32 s26, 0x07060302
""")
    if OPT["wpos"] == 3:
        a.ext(wl)
    for ch in OPT["pb"]:
        blocks[ch]()
    if OPT["wpos"] == 1:
        a.ext(wl)
    a(f"""
s_waitcnt vmcnt({nw1 + 4 * OPT['epub']})
s_barrier
""")
    stamp(a, 4)
    a(f"""
s_cmp_lg_u32 s{sWAVE}, 7
s_cbranch_scc1 F_4
s_lshl_b32 s77, s2, 11
s_add_u32 s77, s77, {WS_OFF}
v_lshl_add_u32 v{t0}, v{vLANE}, 4, s77
""")
    for i in range(4):
        a(f"v_mov_b32 v{OF + 2 * i + 1}, s{sNONCE}")
    a(f"""
global_store_dwordx4 v{t0}, {v(OF, 4)}, s[24:25] sc1
global_store_dwordx4 v{t0}, {v(OF + 4, 4)}, s[24:25] offset:1024 sc1
""")
    if OPT["epub"]:
        a(f"s_waitcnt vmcnt({nw1 + 2})\ns_branch F_41\nF_4:\ns_waitcnt vmcnt({nw1})\nF_41:\ns_barrier")
    else:
        a("F_4:")

    def brd(k):
        o = [f"ds_read_b128 {v(HF + 4 * k, 4)}, v{EE + k}"]
        for j, ad in enumerate((f"v{bW0}", f"v{bW1}")):
            o.append(f"ds_read_b64_tr_b16 {v(WF + 8 * k + 4 * j, 2)}, {ad} offset:{4096 * k}")
            o.append(f"ds_read_b64_tr_b16 {v(WF + 8 * k + 4 * j + 2, 2)}, {ad} offset:{4096 * k + 1024}")
        return o

    for k in range(3):
        a.ext(brd(k))
    for k in range(8):
        a(f"s_waitcnt lgkmcnt({5 * min(2, 7 - k)})")
        for j, acc in enumerate((AH, AL)):
            a(mf(acc, HF + 4 * k, WF + 8 * k + 4 * j, None if k == 0 else acc))
        if k + 3 < 8:
            a.ext(brd(k + 3))
        if OPT["w1in"] and k < 4:
            a.ext(w1d[:4] if k == 0 else [w1d[3 + k]])
    a("s_nop 10")
    stamp(a, 5)
    a("s_cmp_eq_u32 s27, 3")
    for r in range(0, 16, 2):
        if r == 2:
            a("s_cbranch_scc1 F_5")
        a(f"v_pk_mul_f32 {v(AL + r, 2)}, {v(AL + r, 2)}, s[18:19]")
        a(f"v_pk_mul_f32 {v(AH + r, 2)}, {v(AH + r, 2)}, s[68:69]")
        for q in (r, r + 1):
            a(f"v_add_u32 v{AL + q}, 0x4000, v{AL + q}")
        for q in (r, r + 1):
            a(f"v_perm_b32 v{AH + q}, v{AH + q}, v{AL + q}, s26")
        for q in (r, r + 1):
            a(f"buffer_store_dword v{AH + q}, v{bS1 if q >= 8 else bS0}, s[56:59], 0 offen "
              f"offset:{(8 * ((q >> 2) & 1) + (q & 3)) * 256} sc1")
    a("s_waitcnt vmcnt(16)\ns_branch F_6\nF_5:")
    if not OPT["w1in"]:
        a("s_waitcnt vmcnt(4)\ns_cmp_eq_u32 s44, 7\ns_cbranch_scc1 F_6")
    a("s_waitcnt vmcnt(2)\nF_6:\ns_barrier")
    stamp(a, 6)
    cg = Cnt()
    for x in w_frags(T, q0, 0):
        a(cg("f", x))
    a(cg("w", f"ds_write_b32 v{vPA}, v{vWE}"))
    a(f"s_bitcmp1_b32 s{sWAVE}, 1\ns_cselect_b32 s3, s18, s68")

    def keys():
        if OPT["gpoll"] != OPT["gsplit"]:
            a("s_branch K2_B1")
        a(f"""
K2_B0:
{poll}
K2_B1:
s_add_u32 s{sSPIN}, s{sSPIN}, 1
s_waitcnt vmcnt(0)
v_cmp_ne_u32 vcc, s{sNONCE}, v{vAUX + 1}
s_cmp_gt_u32 s{sSPIN}, {SPIN}
s_cbranch_scc1 K2_B2
s_cbranch_vccnz K2_B0
K2_B2:
""")
        stamp(a, 7)
        a(f"""
v_and_b32 v{t0}, 0xffff, v{vAUX}
v_lshrrev_b32 v{vREM}, 16, v{vAUX}
v_add3_u32 v{t0}, v{t0}, v{vP16}, s{sDONE}
v_subrev_u32 v{vREM}, s{sDONE}, v{vREM}
v_add_u32 v{vKA}, v{vKA}, v{t0}
global_load_dwordx4 {v(R0, 4)}, v{vKA}, s[40:41] {hs}
v_cmp_lt_i32 s[26:27], s{sSPB}, v{vREM}
v_min_i32 v{vREM}, s{sSPB}, v{vREM}
v_sub_u32 v{vREM}, v{vREM}, v{vP16}
v_cmp_lt_i32 vcc, 32, v{vREM}
s_mov_b64 exec, vcc
s_cbranch_execz K2_B3
global_load_dwordx4 {v(R0 + 4, 4)}, v{vKA}, s[40:41] offset:32 {hs}
v_cmp_lt_i32 vcc, 64, v{vREM}
s_mov_b64 exec, vcc
s_cbranch_execz K2_B3
global_load_dwordx4 {v(R0 + 8, 4)}, v{vKA}, s[40:41] offset:64 {hs}
global_load_dwordx4 {v(R0 + 12, 4)}, v{vKA}, s[40:41] offset:96 {hs}
K2_B3:
s_mov_b64 exec, -1
s_movk_i32 s77, {CH * 4}
v_add3_u32 v{vKA}, v{vKA}, v{t0}, s77
s_cmp_lg_u32 s{sINIT}, 0
s_cbranch_scc1 K2_B4
s_mov_b32 s{sINIT}, 1
s_barrier
s_cmp_lg_u32 s{sWAVE}, 7
s_cbranch_scc1 F_7
s_lshl_b32 s77, s2, {OPT["f2s"]}
s_add_u32 s77, s77, {WS_F2}
v_mov_b32 v{t0}, s77
v_mov_b32 v{t1}, s{sNONCE}
s_mov_b64 exec, 1
global_store_dword v{t0}, v{t1}, s[24:25] sc1
s_cmp_lg_u32 s2, 255
s_cbranch_scc1 F_8
global_store_dword v{Z}, v{t1}, s[24:25] offset:{WS_EPO} sc1
F_8:
s_mov_b64 exec, -1
F_7:
""")
        stamp(a, 8)

    hooks = {OPT["gsplit"]: keys}
    if OPT["gpoll"] != OPT["gsplit"]:
        hooks[OPT["gpoll"]] = lambda: a(poll)
    if -1 in hooks:
        hooks[-1]()
    node_gemm(a, "A", hooks, cg)
    a(f"v_lshlrev_b32 v{CA}, 4, v0")
    blk_Z()
    late = lines(f"""
s_lshl_b32 s77, s{sWAVE}, 12
s_add_u32 s77, s77, {WS_W}
v_lshl_add_u32 v{t4}, v{vLANE}, 4, s77""")
    late += [f"global_load_dwordx4 {v(T + 16 + 4 * k, 4)}, v{t4}, s[24:25] offset:{1024 * k} {hs}" for k in range(4)]
    if OPT["hend"]:
        late = []
    if OPT["pe"] == 1:
        late.append(f"global_load_dword v{X}, v{vKA}, s[40:41] {hs}")
    if OPT["pe"] == 2:
        late += lines(f"""
v_and_b32 v{t4}, 96, v{vKA}
v_cmp_eq_u32 vcc, 0, v{t4}
s_or_b64 exec, vcc, 1
global_load_dword v{X}, v{vKA}, s[40:41] {hs}
s_mov_b64 exec, -1""")
    if OPT["pp"]:
        late += lines(f"""
s_lshr_b32 s77, s2, 3
s_lshl_b32 s77, s77, 3
s_add_u32 s77, s77, s{sWAVE}
s_mul_i32 s77, s77, {13 * 128}
s_add_u32 s77, s77, {P4}
v_lshl_add_u32 v{t4}, v{vLANE}, 7, s77
s_mov_b64 exec, 0x1fff
global_load_dword v{X}, v{t4}, s[40:41] {hs}
s_mov_b64 exec, -1""")
    a.ext(late)
    nlate = sum(x.startswith(("global_", "buffer_")) for x in late)
    a(f"s_waitcnt vmcnt({nlate})\ns_branch K2_B5\nK2_B4:\ns_waitcnt vmcnt(0)\nK2_B5:")
    stamp(a, 9)
    f2 = f"global_load_dword v{vAUX}, v{vF2}, s[24:25] sc1"
    a(f"""
v_mov_b32 v{t1}, 32
v_lshrrev_b32 v{vKA}, 3, v{vKA}
s_cmp_eq_u64 s[26:27], 0
s_cbranch_scc1 K2_B6
ds_write_b32 v{Z}, v{t1} offset:{FLAG}
K2_B6:
""")
    for k in range(4):
        for i in range(4):
            j = 4 * k + i
            a(f"v_cmpx_lt_i32 vcc, {32 * k + 4 * i}, v{vREM}")
            if j in (6, 8, 12):
                a("s_cbranch_execz K2_B7")
            if i == 0:
                for q in range(4):
                    a(f"v_lshlrev_b32_sdwa v{PH + j + q}, 2, v{R0 + j + q} {B3}")
            a(f"ds_add_rtn_u32 v{R1 + j}, v{PH + j}, v{t1} offset:{HIST}")
    a(f"""
K2_B7:
s_mov_b64 exec, -1
v_lshlrev_b32 v{t0}, 3, v{vLANE}
s_mov_b32 s78, 0xff000000
""")

    def aux(j):
        k, i = j >> 2, j & 3
        return [f"v_add_u32 v{PL + j}, {8 * k + i}, v{vKA}", f"v_and_or_b32 v{PL + j}, v{R0 + j}, s78, v{PL + j}"]

    a(f"s_mov_b32 s60, s40\ns_or_b32 s61, s41, 0x80000\ns_mov_b32 s62, {P4 // 8}\ns_mov_b32 s63, 0x20000")
    if OPT["f2pos"] == 0:
        a(f2)
    a(f"""
s_waitcnt lgkmcnt(0)
s_barrier
ds_read_b64 {v(t2, 2)}, v{t0} offset:{HIST}
ds_read_b32 v{t1}, v{Z} offset:{FLAG}
""")
    if OPT["stamps"] == 2:
        stamp(a, 24)
    if OPT["f2pos"] == 1:
        a(f2)
    for j in range(2):
        a.ext(aux(j))
    a(f"""
s_waitcnt lgkmcnt(0)
v_add_u32 v{t3}, v{t2}, v{t3}
v_readfirstlane_b32 s{sMORE}, v{t1}
v_mov_b32 v{t5}, v{t3}
v_subrev_u32 v{t3}, 128, v{t3}
""")
    scan64(a, f"v{t5}", [aux(j) for j in range(2, 8)])
    a(f"""
v_sub_u32 v{EE}, v{t5}, v{t3}
v_readlane_b32 s{sTOT}, v{t5}, 63
v_add_u32 v{EE + 1}, v{EE}, v{t2}
ds_write_b64 v{t0}, {v(EE, 2)} offset:{BASE}
""")
    for j in range(8):
        if j % 4 == 0:
            a(f"v_cmpx_lt_i32 vcc, {8 * j}, v{vREM}")
        a(f"ds_read_b32 v{PH + j}, v{PH + j} offset:{BASE}")
    a("s_mov_b64 exec, -1")
    if OPT["f2pos"] == 2:
        a(f2)
    a(f"""
s_lshr_b32 s{sTOT}, s{sTOT}, 3
s_cmp_gt_u32 s{sTOT}, {CAP4}
s_cbranch_scc0 K2_B8
s_mov_b32 s{sSPB}, 32
s_branch K2_AGAIN
K2_B8:
s_add_u32 s77, s{sTOT}, 127
s_lshr_b32 s77, s77, 7
s_lshl_b32 s{sDUM}, s77, 7
s_lshr_b32 s3, s77, 3
s_and_b32 s77, s77, 7
s_mul_i32 s{sTILE}, s3, s{sWAVE}
s_min_u32 s79, s77, s{sWAVE}
s_add_u32 s{sTILE}, s{sTILE}, s79
s_cmp_lt_u32 s{sWAVE}, s77
s_addc_u32 s{sCNT}, s3, 0
s_and_b32 s79, s{sWAVE}, 3
s_cmp_lt_u32 s79, s77
s_addc_u32 s79, s3, 0
s_cmp_eq_u32 s79, s{sCNT}
s_cselect_b32 s{sHEAD}, 4, 8
s_add_u32 s{sEND}, s{sTILE}, s{sCNT}
s_lshl_b32 s{sEND}, s{sEND}, 7
s_lshl_b32 s{sTILE}, s{sTILE}, 7
s_min_u32 s{sRD}, s{sTILE}, s{sDUM}
s_mov_b32 s{sNBF}, -8
s_mov_b32 s{sRT}, 0
s_min_u32 s77, s{sEND}, s{sTOT}
v_mov_b32 v{t4}, s77
s_mov_b32 s77, {0x3ff7f if OPT['x_norow'] else 0xffff7f:#x}
s_cmp_lg_u32 s{sWAVE}, 7
s_cbranch_scc1 K2_B9
s_add_u32 s79, s{sTOT}, 16
v_lshl_add_u32 v{t0}, v{vLANE}, 2, s79
v_and_b32 v{t1}, 16, v{t0}
v_lshlrev_b32 v{t1}, 3, v{t1}
s_lshl_b32 s79, s{sN0}, 8
v_or_b32 v{t1}, s79, v{t1}
v_mov_b32 v{t2}, 0x7f0fffff
ds_write2st64_b32 v{t0}, v{t1}, v{t2} offset0:{SRC // 256} offset1:{AUX // 256}
K2_B9:
s_waitcnt lgkmcnt(0)
""")

    def place(js):
        o = [f"v_add_u32 v{PH + j}, v{PH + j}, v{R1 + j}" for j in js]
        o += [f"v_bfi_b32 v{R0 + j}, s77, v{R0 + j}, v{PH + j}" for j in js]
        return o + [f"v_lshrrev_b32 v{PH + j}, 3, v{PH + j}" for j in js]

    for j in range(16):
        if j == 0:
            a.ext(place(range(0, 6)))
        a(f"v_cmpx_lt_i32 vcc, {32 * (j >> 2) + 4 * (j & 3)}, v{vREM}")
        if j in (6, 8, 12):
            a("s_cbranch_execz K2_B10")
        if j == 6:
            a.ext(place((6, 7)))
        if j in (8, 12):
            for q in range(4):
                a(f"ds_read_b32 v{PH + j + q}, v{PH + j + q} offset:{BASE}")
                a.ext(aux(j + q))
            a("s_waitcnt lgkmcnt(0)")
            a.ext(place(range(j, j + 4)))
        a(f"ds_write2st64_b32 v{PH + j}, v{R0 + j}, v{PL + j} offset0:{SRC // 256} offset1:{AUX // 256}")
    a("K2_B10:\ns_mov_b64 exec, -1")
    stamp(a, 10)
    tr = tile_reads()
    a.ext(tr[:2])
    a(f"""
K2_B11:
s_add_u32 s{sSPIN}, s{sSPIN}, 1
s_waitcnt vmcnt(0)
v_cmp_ne_u32 vcc, s{sNONCE}, v{vAUX}
s_cmp_gt_u32 s{sSPIN}, {SPIN}
s_cbranch_scc1 K2_B12
s_cbranch_vccz K2_B12
{f2}
s_branch K2_B11
K2_B12:
s_waitcnt lgkmcnt(0)
s_barrier
""")
    stamp(a, 11)
    if OPT["prio"] >= 4 or OPT["php"]:
        a("s_setprio 3")
    a.ext(tr[2:])
    a(f"ds_read_b32 v{t4}, v{t4} offset:{AUX + 12}")
    a(f"s_waitcnt lgkmcnt({0 if OPT['safe'] else 5})")
    a.ext(x_addr() + ld_x() + ["s_waitcnt lgkmcnt(0)"] + ld_r(0))
    a(f"v_readfirstlane_b32 s{sTAIL}, v{t4}\ns_lshr_b32 s{sTAIL}, s{sTAIL}, 24")
    a.ext(window() + plan_v())
    a(f"s_cmp_lg_u32 s{sINIT}, 1\ns_cbranch_scc1 K2_G8\ns_mov_b32 s{sINIT}, 2")
    node_gemm(a, "H", {}, Cnt())
    a("K2_G8:")
    a.ext(ld_r(1))
    stamp(a, 23)
    for t in range(4):
        a(mf8(T + 16 * t, Z, Z, None))
    a(f"""
s_cmp_lg_u32 s{sCNT}, 0
s_cbranch_scc1 K2_G10
s_mov_b32 s{sNBF}, 0
s_mov_b32 s{sNLF}, -1
s_mov_b32 s{sTAIL}, -1
s_waitcnt vmcnt(0)
s_branch K2_TAIL
K2_G10:
""")
    a.ext(x_reads())
    for t in range(4):
        a(f"ds_read_b64_tr_b16 {v(WA + 4 * t, 2)}, v{vWAB} offset:{64 * t}")
    a.ext(wa_reads(sNB1) + advance() + tile_reads())
    a(f"""
s_mov_b32 s{sNBF}, s{sNB1}
s_mov_b32 s{sIT}, s{sCNT}
s_waitcnt vmcnt(16) lgkmcnt(0)
""")
    stamp(a, 12)
    stamp(a, 30)
    sh0 = [f"v_lshlrev_b64 {v(PL + r, 2)}, 16, {v(R0 + r, 2)}" for r in range(0, 16, 2)]
    a.ext(x_build() + x_addr() + sh0[:2] + [mf(PH, XC, WA, R0)] + sh0[2:])
    a(f"s_setprio {2 if OPT['prio'] in (0, 4, 5, 10) else 3}\ns_nop 0")
    a(mf(PL, XC, WA + 4, PL))

    def shifts(R):
        return [f"v_lshlrev_b64 {v(PL + r, 2)}, 16, {v(R + r, 2)}" for r in range(0, 16, 2)]

    def fl_addr():
        return lines(f"""
s_mul_i32 s77, s{sNBF}, {MS}
s_sub_u32 s79, s{sNLF}, s{sNBF}
s_lshl_b32 s78, s{sNBF}, 5
v_cmp_ge_i32 vcc, s79, v{vNP}
v_add_u32 v{t4}, s77, v{vMB}
v_mov_b32 v{t0}, {OOB}
v_add_u32 v{t5}, s78, v{vPB}
v_cndmask_b32 v{t4}, v{t0}, v{t4}, vcc
v_add_u32 v{t3}, {WX}, v{vH8}""")

    def fl_cvt(t):
        return [f"v_cvt_pk_bf16_f32 v{T + 16 * t + i}, v{T + 16 * t + 2 * i}, v{T + 16 * t + 2 * i + 1}" for i in range(8)]

    def fl_wx(t, k):
        return f"ds_read2_b64 {v(T + 16 * t + 8 + 4 * k, 4)}, v{t3} offset0:{8 * t + 4 * k} offset1:{8 * t + 4 * k + 2}"

    def fl_st(t, k):
        o = 8 * t + 4 * k
        return f"ds_write2_b64 v{t4}, {v(T + 16 * t + 4 * k, 2)}, {v(T + 16 * t + 4 * k + 2, 2)} offset0:{o} offset1:{o + 2}"

    def fl_dot():
        o = [f"v_dot2_f32_bf16 v{t0 + t}, v{T + 16 * t + i}, v{T + 16 * t + 8 + i}, {'0' if i == 0 else v(t0 + t)}"
             for i in range(8) for t in range(4)]
        return o + lines(f"""
s_nop 0
v_add_f32 v{t0}, v{t0}, v{t1}
s_nop 0
v_add_f32 v{t2}, v{t2}, v{t3}
v_add_f32 v{t0}, v{t0}, v{t2}
v_cvt_f64_f32 {v(t2, 2)}, v{t0}""")

    cold = []

    def rare(label, body):
        if not OPT["ool"]:
            return [f"s_cbranch_scc1 {label}"] + body + [f"{label}:"]
        cold.extend([f"{label}_X:"] + body + [f"s_branch {label}"])
        return [f"s_cbranch_scc0 {label}_X", f"{label}:"]

    def flush():
        o = fl_addr()
        for t in (0, 1, 3, 2):
            o += fl_cvt(t) + [fl_wx(t, 0), fl_st(t, 0), fl_wx(t, 1), fl_st(t, 1)]
        o += m_reads(sNB1, "gt") + ["s_waitcnt lgkmcnt(5)"] + fl_dot()
        o += ["s_waitcnt lgkmcnt(0)", f"ds_add_f64 v{t5}, {v(t2, 2)} offset:{POS}"]
        o += [mf8(T + 16 * t, EE + 2 * t, SM, None) for t in range(4)]
        return rare("K2_L1", o + lines(f"""
s_mov_b32 s{sNBF}, s{sNB1}
s_lshl_b32 s77, s{sWAVE}, 2
v_mov_b32 v{t0}, s77
ds_write_b32 v{t0}, v{vAUXA} offset:{FLAG + 16}"""))

    pr = []
    if OPT["prio"]:
        pr.append(f"s_add_u32 s{sIT}, s{sIT}, {1 if OPT['prio'] == 1 else -1}")
        lad = {1: ((2, 2), (4, 1), (6, 0)), 2: ((3, 2), (2, 1), (1, 0)), 3: ((4, 2), (2, 1), (1, 0)),
               4: ((2, 1), (1, 0)), 5: ((3, 1), (1, 0)), 6: ((3, 2), (2, 1), (1, 0)),
               7: ((2, 2), (1, 1)), 8: ((3, 2), (1, 1)), 9: ((3, 2), (2, 1)), 10: ((2, 1),)}[OPT["prio"]]
        for n, (it, p_) in enumerate(lad):
            pr += [f"s_cmp_lg_u32 s{sIT}, {it}", "\n".join(rare(f"K2_PR{n}", [f"s_setprio {p_}"]))]
    sr = [f"ds_read_b64_tr_b16 {v(S + 2 * q, 2)}, v{vSRD} offset:{576 * q}" for q in range(4)]
    sr.append(f"ds_write_b64 v{vSA}, {v(Z, 2)}")

    def loop_lut():
        SX = "dst_sel:WORD_0 dst_unused:UNUSED_SEXT src0_sel:WORD_0 src1_sel:WORD_"

        def tag(t, lst):
            return [f"@{t} {x}" if x.startswith("ds_") else x for x in lst]

        def look(b):
            G, Y = PL + 8 * b, M + 4 * b
            o = [f"v_cvt_pk_bf16_f32 v{Y + i}, v{G + 2 * i}, v{G + 2 * i + 1}" for i in range(4)]
            o += [f"v_mul_lo_u16_sdwa v{G + i}, -2, v{Y + i} {SX}0" for i in range(4)]
            lo = [f"@g{b} ds_read_u16 v{G + i}, v{G + i}" for i in range(4)]
            hi = [f"v_mul_lo_u16_sdwa v{G + 4 + i}, -2, v{Y + i} {SX}1" for i in range(4)]
            rd = [f"@g{b} ds_read_u16_d16_hi v{G + 4 + i}, v{G + 4 + i}" for i in range(4)]
            return (o + hi + lo + rd) if OPT["lb"] == 8 else (o + lo + hi + rd)

        def su(u):
            th, tl, un = 2 * u, 2 * u + 1, 1 - u
            Tl = T + 16 * tl
            h0, h1 = batch(PH, 0), batch(PH, 1)
            sh = shifts(R1 if un else R0)
            g = [mf(Tl, PL + 4 * n, S + 4 * (n >> 1), Tl) for n in range(4)]
            pA = h0[:8]
            pB = look(0) + (["?S"] if u == 0 else []) + [seg(tl, 0)] + look(1)
            pC = h0[8:12] + [seg(tl, 1)] + h0[12:24]
            pD = ["?g0", g[0]] + h0[24:] + h1[:1] + [g[1]] + h1[1:3] + [seg(th, 0)] + h1[3:12]
            pE = ["?g1", g[2]] + h1[12:15] + [g[3]] + h1[15:24]
            if OPT["merge"]:
                mg = [[f"v_or_b32 v{PL + 8 * b + i}, v{PL + 8 * b + i}, v{PL + 8 * b + 4 + i}" for i in range(4)] for b in range(2)]
                pD = ["?g0"] + mg[0] + h0[24:26] + [g[0]] + h0[26:] + h1[:2] + [seg(th, 0)] + h1[2:12]
                pE = ["?g1"] + mg[1] + h1[12:14] + [g[2]] + h1[14:24]
            if OPT["lsp"] == 1:
                l0, l1 = look(0), look(1)
                pB = l0[:6] + (["?S"] if u == 0 else []) + [seg(tl, 0)] + l0[6:] + l1[:4]
                pC = h0[8:12] + [seg(tl, 1)] + h0[12:20] + l1[4:] + h0[20:24]
            if OPT["lsp"] == 2:
                l0, l1 = look(0), look(1)
                pB = l0[:12] + (["?S"] if u == 0 else []) + [seg(tl, 0)] + l1[:12]
                rd = l0[12:] + l1[12:]
                pC = rd[:4] + h0[8:12] + rd[4:8] + [seg(tl, 1)] + h0[12:17] + rd[8:12] + h0[17:20] + rd[12:] + h0[20:24]
            pF = [mf(PH, XC, WA + 8 * un, R1 if un else R0)] + h1[24:] + sh[:2] + [seg(th, 1)] + sh[2:]
            ph = OPT["php"]
            if ph:
                parts = dict(A=pA, B=pB, C=pC, D=pD, E=pE, F=pF)
                parts[ph[0]].insert(0, "s_setprio 2")
                lo = "s_setprio 0"
                if OPT["yb"] >> u & 1:
                    th_ = f"s{sHEAD}" if (OPT["yb"] >> 2 + u) & 1 else "4"
                    lo += f"\ns_cmp_lt_u32 s{sWAVE}, {th_}\ns_cbranch_scc1 K2_Y{u}\ns_setprio 1\nK2_Y{u}:"
                parts[ph[1]].insert(0, lo)
            return pA, pB, pC, pD, pE, pF, mf(PL, XC, WA + 8 * un + 4, PL)

        o = []
        pA, pB, pC, pD, pE, pF, xl = su(0)
        ld = grp(ld_r(0))
        pv = plan_v()
        o += tag("S", sr[:4]) + tag("c", sr[4:]) + ld_x() + ld[:1] + [f"s_cmp_eq_u32 s{sNB1}, s{sNBF}"] + flush()
        o += sched(pA, ld[1:], win=0) + pB
        o += sched(pC, [f"s_mov_b32 s{sNLF}, s{sNL1}"] + window())
        o += sched(pD, advance()[:5])
        o += sched(pE, advance()[5:])
        o += pv[:3] + ["s_waitcnt vmcnt(17)"] + pF + pv[3:] + [xl]
        pA, pB, pC, pD, pE, pF, xl = su(1)
        ld = grp(ld_r(1))
        tr = tag("d", tile_reads())
        if OPT["prio"] >= 7:
            o += [f"s_cmp_lg_u32 s{sIT}, 1"] + rare("K2_PR9", ["s_setprio 0"])
        o += ld[:1] + [f"s_cmp_eq_u32 s{sNB1}, s{sNBF}"] + rare("K2_L2", wa_reads(sNB1))
        o += tag("x", x_reads()) + sched(pA, ld[1:], win=0) + pB
        o += sched(pC, ["\n".join(tr)] + pr[:1])
        o += sched(pD, pr[1:3])
        o += sched(pE, pr[3:])
        xa = x_addr()
        o += ["s_waitcnt vmcnt(16)", "?d"] + tag("w", x_build()) + xa + pF
        o += [f"s_cmp_lg_u32 s{sRDP}, s{sDUM}", "s_nop 0", xl]
        c = Cnt()
        if OPT["lal"]:
            a(f".p2align {OPT['lal']}")
        a("K2_LOOP:")
        for x in "\n".join(o).split("\n"):
            if x.startswith("@"):
                t, x = x[1:].split(" ", 1)
                a(c(t, x))
            elif x.startswith("?"):
                a(c.wait(x[1:]))
            else:
                a(x)
        a("s_cbranch_scc1 K2_LOOP")

    loop_lut()

    fM, fH, fW, HRS = XC, XC + 1, XC + 2, R0
    RAW = [S, S + 2, S + 4, S + 6, M, M + 2, M + 4]
    a(f"""
K2_TAIL:
s_setprio {3 if OPT["tp"] else 0}
s_lshl_b32 s3, s{sWAVE}, 2
v_mov_b32 v{X}, s3
s_cmp_eq_u32 s{sWAVE}, 7
s_cselect_b32 s26, 1, 0
{"s_mov_b32 s79, 0" if OPT["safe"] else ""}
ds_read_b32 v{X + 1}, v{X} offset:{FLAG + 20}
""")
    stamp(a, 16)
    a(f"s_lshl_b32 s77, s{sWAVE}, 12\ns_add_u32 s77, s77, {WS_W + 32768}\nv_lshl_add_u32 v{fW}, v{vLANE}, 4, s77")
    if OPT["hend"]:
        a(f"v_subrev_u32 v{t0}, 32768, v{fW}")
        for k in range(4):
            a(f"global_load_dwordx4 {v(WA + 4 * k, 4)}, v{t0}, s[24:25] offset:{1024 * k} {hs}")
    for k in range(4):
        a(f"global_load_dwordx4 {v(AD + 4 * k, 4)}, v{fW}, s[24:25] offset:{1024 * k} {hs}")
    a(f"""
v_and_b32 v{t0}, 15, v{vLANE}
v_lshrrev_b32 v{t1}, 4, v{vLANE}
v_mul_u32_u24 v{fM}, {MS}, v{t0}
v_lshl_add_u32 v{fM}, v{t1}, 4, v{fM}
v_add_u32 v{fM}, {MA}, v{fM}
s_lshl_b32 s77, s{sWAVE}, 1
v_lshrrev_b32 v{t2}, 1, v{t1}
v_add_u32 v{t2}, s77, v{t2}
v_xor_b32 v{t2}, v{t2}, v{t0}
v_lshlrev_b32 v{t2}, 4, v{t2}
v_lshl_add_u32 v{t2}, v{t0}, 8, v{t2}
v_and_b32 v{t3}, 1, v{t1}
v_lshl_add_u32 v{t2}, v{t3}, 3, v{t2}
v_add_u32 v{fH}, {HR}, v{t2}
K2_W1:
s_waitcnt lgkmcnt(0)
v_readfirstlane_b32 s77, v{X + 1}
{"s_add_u32 s79, s79, 1" if OPT["safe"] else ""}
{"s_cmp_gt_u32 s79, 100000" if OPT["safe"] else ""}
{"s_cbranch_scc1 K2_W2" if OPT["safe"] else ""}
s_or_b32 s77, s77, s26
s_cbranch_scc1 K2_W2
ds_read_b32 v{X + 1}, v{X} offset:{FLAG + 20}
s_branch K2_W1
K2_W2:
""")
    a.ext(m_reads(sNBF, "eq"))
    for mt in range(7):
        a(f"ds_read_b64 {v(RAW[mt], 2)}, v{fH} offset:{4096 * mt}")
    a.ext(fl_addr())
    a(f"s_waitcnt vmcnt({8 if OPT['hend'] else 4}) lgkmcnt(0)")
    unp = []
    for mt in range(7):
        for q in range(2):
            unp.append(f"v_lshlrev_b32 v{HRS + 4 * mt + 2 * q}, 16, v{RAW[mt] + q}")
            unp.append(f"v_and_b32 v{HRS + 4 * mt + 2 * q + 1}, 0xffff0000, v{RAW[mt] + q}")
    rmw = [mf8(T + 16 * t, EE + 2 * t, SM, T + 16 * t) for t in range(4)]
    a.ext([rmw[0]] + unp[:6] + [rmw[1]] + unp[6:12])
    for t in range(4):
        if t < 2:
            a(rmw[t + 2])
        a.ext(fl_cvt(t) + [fl_st(t, 0), fl_st(t, 1)])
        if t == 2:
            a("s_nop 0")
    a(f"""
v_mov_b32 v{X + 1}, 1
s_mov_b64 exec, 1
ds_write_b32 v{X}, v{X + 1} offset:{FLAG + 16}
ds_add_u32 v{Z}, v{X + 1} offset:{FLAG + 56}
s_mov_b64 exec, -1
{"s_setprio 0" if OPT["tp"] == 1 else ""}
""")
    stamp(a, 13)
    stamp(a, 31)
    for t in range(4):
        a.ext([fl_wx(t, 0), fl_wx(t, 1)])
    a.ext(unp[12:])
    oA, oL, pO, pA_, pB_ = S, S + 4, S + 5, S + 6, S + 7
    a(f"""
s_mul_i32 s78, s{sN0}, 6
v_lshl_add_u32 v{pO}, v0, 1, s78
v_mul_u32_u24 v{t2}, 171, v0
v_lshrrev_b32 v{t2}, 9, v{t2}
v_add_lshl_u32 v{pA_}, v{t2}, v0, 2
v_lshlrev_b32 v{pB_}, 1, v{pA_}
v_cmp_gt_u32 vcc, {3 * BS}, v0
v_mov_b32 v{t2}, {N * 6}
v_and_b32 v{t0}, 15, v{vLANE}
v_cndmask_b32 v{pO}, v{t2}, v{pO}, vcc
v_lshrrev_b32 v{t1}, 4, v{vLANE}
v_xor_b32 v{t2}, v{t0}, v{t1}
v_lshlrev_b32 v{t2}, 4, v{t2}
v_lshl_add_u32 v{t2}, v{t1}, 8, v{t2}
s_lshl_b32 s77, s{sWAVE}, 12
s_lshl_b32 s78, s{sN0}, 8
s_add_u32 s78, s78, s77
v_add_u32 v{oA}, s78, v{t2}
v_xor_b32 v{oA + 1}, 64, v{oA}
v_xor_b32 v{oA + 2}, 128, v{oA}
v_xor_b32 v{oA + 3}, 192, v{oA}
v_lshl_add_u32 v{oL}, v{vLANE}, 4, s77
v_subrev_u32 v{fH}, {HR}, v{fH}
s_mov_b32 s36, s20
s_mov_b32 s37, s21
s_mov_b32 s38, s34
s_add_u32 s16, s20, {N * 256}
s_addc_u32 s17, s21, 0
s_mov_b32 s18, {N * 6}
s_mov_b32 s19, 0x20000
s_waitcnt lgkmcnt(0)
""")
    a.ext(fl_dot())
    a(f"""
ds_add_f64 v{t5}, {v(t2, 2)} offset:{POS}
""")
    if OPT["hend"]:
        a(f"s_waitcnt vmcnt(4)\ns_cmp_lg_u32 s{sINIT}, 1\ns_cbranch_scc1 K2_G8\ns_mov_b32 s{sINIT}, 2")
        a.ext(x.replace(f"v{gH + 3}", f"v{PD + 3}").replace(f"v{gH + 2}", f"v{PD + 2}").replace(f"v{gH + 1}", f"v{PD + 1}")
              .replace(f"v{gH}", f"v{PD}").replace(f"v{t2}", f"v{t4}") for x in node_addr()[:9])
        node_gemm(a, "H", {}, Cnt(), NBUF=[T, T + 16, T + 32, T + 48], gH=PD, W=WA)
        a("K2_G8:")
    a(f"""
{"s_mov_b32 s79, 0" if OPT["safe"] else ""}
{"s_setprio 0" if OPT["tp"] == 2 else ""}
K2_W3:
ds_read_b32 v{X + 1}, v{Z} offset:{FLAG + 56}
{"s_add_u32 s79, s79, 1" if OPT["safe"] else ""}
{"s_cmp_gt_u32 s79, 1000000" if OPT["safe"] else ""}
{"s_cbranch_scc1 K2_W4" if OPT["safe"] else ""}
s_waitcnt lgkmcnt(0)
v_readfirstlane_b32 s77, v{X + 1}
s_cmp_lg_u32 s77, 8
s_cbranch_scc1 K2_W3
K2_W4:
""")
    stamp(a, 14)
    c = Cnt()
    MF = [PH, PL, WA, T, T + 16, T + 32, T + 48]

    def mrd(mt):
        return [f"@m{mt} ds_read_b128 {v(MF[mt] + 4 * k, 4)}, v{fM} offset:{16 * MS * mt + 64 * k}" for k in range(4)]

    def mm(mt):
        return [mf16(H1 + 4 * mt, AD + 4 * k, MF[mt] + 4 * k, H1 + 4 * mt) for k in range(4)]

    def emit(lst):
        for x in lst:
            if x.startswith("@"):
                t, x = x[1:].split(" ", 1)
                a(c(t, x))
            elif x.startswith("?"):
                a(c.wait(x[1:]))
            else:
                a(x)

    emit(mrd(0) + mrd(1) + mrd(2))
    a(f"""
s_waitcnt vmcnt(0)
s_cmp_eq_u32 s{sMORE}, 0
s_cbranch_scc1 K2_FINAL
s_add_u32 s{sDONE}, s{sDONE}, s{sSPB}
""")
    for mt in range(3, 7):
        a.ext(x.split(" ", 1)[1] for x in mrd(mt))
    a("s_waitcnt lgkmcnt(0)")
    for mt in range(7):
        a.ext(mm(mt))
    a(f"v_lshlrev_b32 v{t0}, 3, v0\nv_add_u32 v{t0}, {MA}, v{t0}\ns_barrier")
    for i in range(8):
        a(f"ds_write_b64 v{t0}, {v(Z, 2)} offset:{4096 * i}")
    a(f"""
K2_AGAIN:
s_waitcnt vmcnt(0) lgkmcnt(0)
s_barrier
v_lshlrev_b32 v{t0}, 3, v{vLANE}
ds_write_b64 v{t0}, {v(Z, 2)} offset:{HIST}
ds_write_b64 v{t0}, {v(Z, 2)} offset:{HIST + 64}
""")
    a.ext(cell_addr())
    a("s_waitcnt lgkmcnt(0)\ns_barrier\ns_branch K2_B0")
    a.ext(cold)

    def fin(mt, n, m1, m2, rd):
        P = H1 + 4 * mt
        o = []
        for i in range(n):
            o += m1[i:i + 1] + [f"v_exp_f32 v{EE + i}, v{P + i}"]
        o += rd
        o += [f"v_pk_add_f32 {v(EE + i, 2)}, {v(EE + i, 2)}, 1.0 op_sel_hi:[1,0]" for i in range(0, n, 2)]
        o += m2[:1]
        for i in range(n):
            o += m2[i + 1:i + 2] + [f"v_rcp_f32 v{EE + i}, v{EE + i}"]
        o += [f"v_pk_mul_f32 {v(EE + i, 2)}, {v(P + i, 2)}, {v(EE + i, 2)}" for i in range(0, n, 2)]
        o += [f"v_pk_fma_f32 {v(EE + i, 2)}, {v(EE + i, 2)}, s[70:71], {v(HRS + 4 * mt + i, 2)}" for i in range(0, n, 2)]
        o += [f"v_cvt_pk_bf16_f32 v{P + i // 2}, v{EE + i}, v{EE + i + 1}" for i in range(0, n, 2)]
        o += [f"@o ds_write_b64 v{fH}, {v(P + 2 * q, 2)} offset:{4096 * (mt + q)}" for q in range(n // 4)]
        return o

    a("K2_FINAL:")
    emit(["?m0"] + mm(0) + mrd(3) + ["?m1"] + mm(1) + ["?m2"])
    emit(fin(0, 8, mm(2), ["?m3"] + mm(3), mrd(4) + mrd(5)))
    emit(["?m4"] + fin(2, 8, mm(4), ["?m5"] + mm(5), mrd(6)))
    emit(["?m6"] + fin(4, 8, mm(6), [], []))
    emit(fin(6, 4, [], [], []))
    if OPT["stamps"] == 2:
        stamp(a, 22)
    a("s_waitcnt lgkmcnt(0)\ns_barrier")
    for n in range(4):
        a(f"ds_read_b128 {v(T + 4 * n, 4)}, v{oL} offset:{1024 * n}")
    a(f"ds_read_b64 {v(M, 2)}, v{pB_} offset:{POS + 8}\nds_read_b32 v{M + 2}, v{pA_} offset:{PDL}")
    for n in range(4):
        a(f"s_waitcnt lgkmcnt({5 - n})")
        a(f"buffer_store_dwordx4 {v(T + 4 * n, 4)}, v{oA + n}, s[36:39], 0 offen offset:{1024 * n} {OPT['stout']}")
    a(f"""
s_waitcnt lgkmcnt(0)
v_cvt_f32_f64 v{M}, {v(M, 2)}
v_fma_f32 v{M}, v{M}, s70, v{M + 2}
v_cvt_pk_bf16_f32 v{M}, v{M}, v{M}
buffer_store_short v{M}, v{pO}, s[16:19], 0 offen {OPT['stpos']}
""")
    stamp(a, 15)
    stamps_out(a, f"s{sWAVE}")
    a("K2_END:\ns_endpgm")


def kd(name, vgpr, sgpr):
    return f""".amdhsa_kernel {name}
  .amdhsa_next_free_vgpr {vgpr}
  .amdhsa_next_free_sgpr {sgpr}
  .amdhsa_accum_offset {vgpr}
  .amdhsa_group_segment_fixed_size 0
  .amdhsa_kernarg_size 88
  .amdhsa_user_sgpr_count 2
  .amdhsa_user_sgpr_kernarg_segment_ptr 1
  .amdhsa_system_sgpr_workgroup_id_x 1
.end_amdhsa_kernel
"""


def build(**opt):
    OPT.update(opt)
    here = os.path.dirname(os.path.abspath(__file__))
    ref = open(os.path.join(here, "header.txt")).read()
    a = Asm()
    k2(a)
    if OPT["al"]:
        a.lines = align8(a.lines)
    probs = check(a.lines)
    for p in probs:
        print("HAZARD", p, file=sys.stderr)
    kn = NAME + "_kernel"
    txt = ref
    txt += f"; @launch grid=(256,1,1) block=(512,1,1) lds={K2_LDS}\n"
    txt += '.amdgcn_target "amdgcn-amd-amdhsa--gfx950"\n.text\n'
    txt += f".globl {kn}\n.type {kn},@function\n" + a.text()
    txt += '.section .rodata,"a"\n.p2align 6\n' + kd(kn, 256, 102)
    return txt, probs


if __name__ == "__main__":
    out = sys.argv[1] if len(sys.argv) > 1 else f"cdna_kernels/{NAME}.s"
    opt = {}
    for kv in sys.argv[2:]:
        k, val = kv.split("=", 1)
        opt[k] = int(val) if val.lstrip("-").isdigit() else val.replace("+", " ")
    txt, probs = build(**opt)
    open(out, "w").write(txt)
    print("wrote", out, len(txt), "bytes;", len(probs), "hazards")
```

```python
import os
import struct
import sys

sys.path.insert(0, os.path.dirname(os.path.abspath(__file__)))
from asmlib import Asm, align8, check, s, v

NAME = "standalone__cheap_equivariant_egnn__graph"
N, E = 25000, 400000
CH, BS = 1568, 98
CHB = CH * 12
WS_EPO, WS_TAB, WS_OFF, WS_F2, WS_W, WS_X = 0, 4096, 0x640000, 0x6C0000, 0x6D0000, 0x6F0000
P4 = 0x4A0000
WS_DBG = 0x1000000


def f2u(x):
    return struct.unpack("<I", struct.pack("<f", x))[0]


C_FWD = f2u(-1.4426950408889634)
C_INV = f2u(-0.6931471805599453)
C_LO = f2u(-1.4426950408889634 * 2.0 ** 24)
OOB = 0x30000

OPT = dict(stout="nt", stpos="", stamps=0, prio=0, safe=0, x_nold=0, x_nox=0, x_norow=0, sched=1, hs="sc1", f2s=5, pe=1, pp=1, f2pos=1,
           hlate=1, cpf=1, pa="BNCL", pb="TW", pk="", ps="", early=0, lz=0, eal=0, pco=1, gpoll=0, gsplit=2, wpos=1, w1in=1, epub=0, ool=0, php="FD", yb=11, tp=2, al=0, b0l=0, ks=0, lal=0, hend=0, r1pos=0, burst=8, lut=1, lb=8, merge=1, lsp=1, nopk=0, ldp=0)
SPIN = 40000


def scan64(a, r, fill=()):
    fill = list(fill)
    for d in ("row_shr:1 row_mask:0xf", "row_shr:2 row_mask:0xf", "row_shr:4 row_mask:0xf",
              "row_shr:8 row_mask:0xf", "row_bcast:15 row_mask:0xa", "row_bcast:31 row_mask:0xc"):
        a.ext(fill.pop(0) if fill else ["s_nop 1"])
        a(f"v_add_u32_dpp {r}, {r}, {r} {d} bank_mask:0xf")


STAMP_V = 35


def stamp(a, k):
    if OPT["stamps"]:
        a("s_memrealtime s[98:99]" if k < 30 else "s_memtime s[98:99]")
        a(f"s_waitcnt lgkmcnt(0)\nv_writelane_b32 v{STAMP_V}, s98, {k}")


def stamps_out(a, wave):
    if not OPT["stamps"]:
        return
    a(f"""
s_mov_b64 exec, -1
s_lshl_b32 s3, s2, 3
s_add_u32 s3, s3, {wave}
s_lshl_b32 s3, s3, 8
s_add_u32 s3, s3, {WS_DBG}
v_and_b32 v1, 63, v0
v_lshl_add_u32 v1, v1, 2, s3
global_store_dword v1, v{STAMP_V}, s[24:25]
""")


POS, HIST, FLAG, BASE, PDL, OH, WX, SRC, AUX = 32768, 36128, 36640, 36704, 37216, 39424, 39680, 39936, 48384
MA, SB, AT, HR, MS = 56848, 87376, 105808, 135936, 288
SG, W2L, W1L = SRC, HR - 32768, MA
K2_LDS = 163840
LSH = 25
CAP4 = 8192

vLANE, vAUXA, vSRCA, vSROW, vSRD, vWAB, vMRD, vMB, vPB, vH8, vNP, vXI, vXC, vSA, vSH = range(1, 16)
t0, t1, t2, t3, t4, t5 = range(16, 22)
vPDA, vOHA, vAUX, SEL, Z, SM = 22, 23, 24, 26, 28, 30
X, XC, S, EE, M = 32, 36, 40, 48, 56
R0, R1, PH, PL, T, H1, PD, WA, AD = 64, 80, 96, 112, 128, 192, 220, 224, 240
vREM, vKA, vWE, vWXD, vP4 = 22, 23, 40, 41, 44

sWAVE, sBIN, sN0, sDONE, sSPB, sTOT, sMORE, sINIT = range(44, 52)
sTILE, sEND, sDUM, sRT, sRD, sRDP, sNB1, sNL1 = range(52, 60)
sIT, sCNT = 75, 76
sNBF, sNLF, sHEAD, sTAIL = 8, 9, 10, 11
sNONCE, sSPIN = 14, 15


def mf(d, aa, bb, c):
    cc = "0" if c is None else v(c, 16)
    return f"v_mfma_f32_32x32x16_bf16 {v(d, 16)}, {v(aa, 4)}, {v(bb, 4)}, {cc}"


def mf8(d, aa, bb, c):
    cc = "0" if c is None else v(c, 16)
    return f"v_mfma_f32_32x32x8_bf16 {v(d, 16)}, {v(aa, 2)}, {v(bb, 2)}, {cc}"


def mf16(d, aa, bb, c):
    cc = "0" if c is None else v(c, 4)
    return f"v_mfma_f32_16x16x32_bf16 {v(d, 4)}, {v(aa, 4)}, {v(bb, 4)}, {cc}"


B3 = "dst_sel:DWORD dst_unused:UNUSED_PAD src0_sel:DWORD src1_sel:BYTE_3"


def lines(txt):
    return [x.strip() for x in txt.strip().split("\n") if x.strip()]


def advance():
    return lines(f"""
s_add_u32 s77, s{sNB1}, 8
s_cmp_ge_i32 s{sNL1}, s77
s_cselect_b32 s{sRT}, s77, 0
s_cselect_b32 s77, 0, 128
s_add_u32 s{sTILE}, s{sTILE}, s77
s_mov_b32 s{sRDP}, s{sRD}
s_cmp_lt_u32 s{sTILE}, s{sEND}
s_cselect_b32 s{sRD}, s{sTILE}, s{sDUM}""")


def tile_reads():
    return [f"v_add_u32 v{t0}, s{sRD}, v{vAUXA}", f"v_add_u32 v{t1}, s{sRD}, v{vSRCA}",
            f"ds_read2st64_b32 {v(vAUX, 2)}, v{t0} offset0:{SRC // 256} offset1:{AUX // 256}"] + [
        f"ds_read_b128 {v(AD + 4 * q, 4)}, v{t1} offset:{SRC + 16 + 32 * q}" for q in range(4)]


def window():
    return lines(f"""
v_readlane_b32 s78, v{vAUX + 1}, 0
v_readlane_b32 s79, v{vAUX + 1}, 31
s_add_u32 s77, s{sNBF}, 8
s_lshr_b32 s78, s78, 24
s_lshr_b32 s79, s79, 24
s_max_u32 s78, s78, s{sRT}
s_min_u32 s{sNL1}, s79, s{sTAIL}
s_cmp_ge_i32 s{sNL1}, s77
s_cselect_b32 s{sNB1}, s78, s{sNBF}""")


def x_addr():
    return [f"v_cndmask_b32 v{vXI}, v{vAUX + 1}, v{vAUX}, s[64:65]", f"v_bfe_u32 v{vXI}, v{vXI}, v{vSH}, 20"] + (
        [f"v_min_u32 v{AD + r}, {N * 256}, v{AD + r}" for r in range(16)] if OPT["safe"] else []) + (
        [f"v_mov_b32 v{vXI}, 0xfffff"] if OPT["x_nox"] == 1 else [])


def plan_v():
    return lines(f"""
v_subrev_u32_sdwa v{t0}, s{sNB1}, v{vAUX + 1} {B3}
v_lshlrev_b32_sdwa v{vPDA}, 4, v{vAUX + 1} {B3}
v_min_u32 v{t0}, 8, v{t0}
v_lshl_add_u32 v{vOHA}, v{t0}, 4, v{vH8}
v_lshl_add_u32 v{vSA}, v{t0}, 3, v{vSROW}""")


def cost(x):
    return 8 if x.startswith(("v_exp", "v_rcp", "v_mfma")) else 4


def sched(main, side, first=0, last=None, win=40):
    last = len(main) if last is None else last
    ok, since = [], 99
    for g, x in enumerate(main):
        since = 0 if x.startswith("v_mfma") else since + cost(x)
        if first <= g < last and (since >= win or not OPT["sched"]) and not x.startswith("?"):
            ok.append(g)
    put = {}
    for n, x in enumerate(side or []):
        put.setdefault(ok[n * len(ok) // len(side)], []).append(x)
    out = []
    for g, x in enumerate(main):
        out.append(x)
        out += put.get(g, [])
    return out


def x_reads():
    return [f"ds_read_b96 {v(PD, 3)}, v{vPDA} offset:{PDL}",
            f"ds_read_b64 {v(XC + 2, 2)}, v{vOHA} offset:{OH}"]


def x_build():
    return [f"v_pk_add_f32 {v(t0, 2)}, {v(PD, 2)}, {v(X, 2)} neg_lo:[0,1] neg_hi:[0,1]",
            f"v_sub_f32 v{t2}, v{PD + 2}, v{X + 2}",
            f"v_cvt_pk_bf16_f32 v{t0}, 1.0, v{t0}",
            f"v_cvt_pk_bf16_f32 v{t1}, v{t1}, v{t2}",
            f"v_dot2_f32_bf16 v{t3}, v{t1}, v{t1}, 0",
            f"v_and_b32 v{t2}, 0xffff0000, v{t0}",
            f"v_mov_b32 v{XC + 1}, v{X + 1}",
            f"ds_write_b64 v{vSA}, {v(t0, 2)}",
            f"v_fmac_f32 v{t3}, v{t2}, v{t2}",
            f"v_cvt_pk_bf16_f32 v{t3}, v{t3}, v{t3}",
            f"v_cndmask_b32 v{XC}, v{X}, v{t3}, s[64:65]"]


def ld_x():
    return [f"buffer_load_dwordx3 {v(X, 3)}, {v(vXI, 2)}, s[60:63], 0 idxen offen {OPT['hs']}"]


def ld_r(half):
    R = R1 if half else R0
    if OPT["x_nold"]:
        return []
    return [f"buffer_load_dword v{R + r}, v{AD + r}, s[28:31], 0 offen" + (" offset:128 " if half else " ") + OPT["hs"]
            for r in range(16)]


def grp(lst):
    n = OPT["burst"]
    return ["\n".join(lst[i:i + n]) for i in range(0, len(lst), n)]


def wa_reads(nb):
    out = [f"s_mul_i32 s77, s{nb}, 264", f"v_add_u32 v{t3}, s77, v{vWAB}"]
    for t in range(4):
        out.append(f"ds_read_b64_tr_b16 {v(WA + 4 * t + 2, 2)}, v{t3} offset:{64 * t + 8 * 264}")
    return out


def m_reads(nb, cmp):
    out = [f"s_mul_i32 s77, s{nb}, {MS}", f"s_sub_u32 s78, s{sTAIL}, s{nb}",
           f"v_add_u32 v{SM}, s77, v{vMRD}", f"v_cmp_{cmp}_i32 vcc, s78, v{vNP}"]
    for t in range(4):
        out.append(f"ds_read_b64_tr_b16 {v(EE + 2 * t, 2)}, v{SM} offset:{64 * t}")
    out += [f"v_cndmask_b32 v{SM}, 0, v{SEL}, vcc", f"v_cndmask_b32 v{SM + 1}, 0, v{SEL + 1}, vcc"]
    return out


def batch(P, b, in_exp=(), in_rcp=()):
    in_exp, in_rcp = dict(in_exp), dict(in_rcp)
    o = []
    for i in range(8):
        o += in_exp.get(i, [])
        o.append(f"v_exp_f32 v{EE + i}, v{P + 8 * b + i}")
    o += in_exp.get(8, [])
    for i in range(0, 8, 2):
        if OPT["nopk"] & 1:
            o.append(f"v_add_f32 v{EE + i}, 1.0, v{EE + i}\nv_add_f32 v{EE + i + 1}, 1.0, v{EE + i + 1}")
        else:
            o.append(f"v_pk_add_f32 {v(EE + i, 2)}, {v(EE + i, 2)}, 1.0 op_sel_hi:[1,0]")
    for i in range(8):
        o += in_rcp.get(i, [])
        o.append(f"v_rcp_f32 v{EE + i}, v{EE + i}")
    o += in_rcp.get(8, [])
    for i in range(0, 8, 2):
        if OPT["nopk"] & 2:
            o.append("\n".join(f"v_mul_f32 v{EE + q}, v{P + 8 * b + q}, v{EE + q}" for q in (i, i + 1)))
        else:
            o.append(f"v_pk_mul_f32 {v(EE + i, 2)}, {v(P + 8 * b + i, 2)}, {v(EE + i, 2)}")
    for i in range(4):
        o.append(f"v_cvt_pk_bf16_f32 v{M + 4 * b + i}, v{EE + 2 * i}, v{EE + 2 * i + 1}")
    return o


def seg(t, k):
    return mf(T + 16 * t, M + 4 * k, S + 4 * k, T + 16 * t)


class Cnt:
    def __init__(self):
        self.ops = []

    def __call__(self, tag, ins):
        self.ops.append(tag)
        return ins

    def wait(self, tag):
        last = max(n for n, t in enumerate(self.ops) if t == tag)
        return f"s_waitcnt lgkmcnt({min(15, len(self.ops) - 1 - last)})"


gH, gA = XC, SM


def node_addr():
    return lines(f"""
v_and_b32 v{t0}, 15, v{vLANE}
v_lshrrev_b32 v{t1}, 4, v{vLANE}
v_xor_b32 v{t2}, v{t0}, v{t1}
v_lshlrev_b32 v{t2}, 4, v{t2}
v_lshl_add_u32 v{t2}, v{t0}, 8, v{t2}
v_add_u32 v{gH}, {HR}, v{t2}
v_xor_b32 v{gH + 1}, 64, v{gH}
v_xor_b32 v{gH + 2}, 128, v{gH}
v_xor_b32 v{gH + 3}, 192, v{gH}
s_lshl_b32 s77, s{sWAVE}, 5
s_add_u32 s77, s77, {AT + 8 * 264}
v_cmp_gt_u32 vcc, 10, v{t0}
v_mul_u32_u24 v{t2}, 264, v{t0}
v_lshl_add_u32 v{t2}, v{t1}, 3, v{t2}
v_add_u32 v{gA}, s77, v{t2}
v_mov_b32 v{t2}, {OOB}
v_cndmask_b32 v{gA + 1}, v{t2}, v{gA}, vcc""")


NBUF = [T + 32, T + 48, WA, PH]


def node_gemm(a, which, hooks, c, NBUF=NBUF, gH=gH, W=None):
    W = W or (T if which == "A" else T + 16)

    def node_rd(mt, k):
        return f"ds_read_b128 {v(NBUF[mt & 3] + 4 * k, 4)}, v{gH + k} offset:{4096 * mt}"

    def acc(mt):
        return PL + 4 * (mt & 3) if which == "A" else H1 + 4 * mt

    def post(mt):
        ac = acc(mt)
        if which == "H":
            return []
        return [f"v_mul_f32 v{ac + r}, s3, v{ac + r}" for r in range(4)] + [
            f"v_cvt_pk_bf16_f32 v{ac}, v{ac}, v{ac + 1}", f"v_cvt_pk_bf16_f32 v{ac + 1}, v{ac + 2}, v{ac + 3}",
            f"ds_write_b64 v{gA + (1 if mt == 6 else 0)}, {v(ac, 2)} offset:{16 * 264 * mt}"]

    for mt in range(4):
        for k in range(4):
            a(c(f"r{mt}", node_rd(mt, k)))
    for p_ in range(4):
        mts = [m for m in (2 * p_, 2 * p_ + 1) if m < 7]
        pend = (post(2 * p_ - 2) + post(2 * p_ - 1)) if p_ else []
        a(c.wait(f"r{mts[-1]}"))
        n = 0
        for k in range(4):
            for m in mts:
                a(mf16(acc(m), W + 4 * k, NBUF[m & 3] + 4 * k, None if k == 0 else acc(m)))
                if m + 4 < 7:
                    a(c(f"r{m + 4}", node_rd(m + 4, k)))
                n += 1
                for _ in range(3 if n > 3 else 0):
                    if pend:
                        x = pend.pop(0)
                        a(c("w", x) if x.startswith("ds_") else x)
        for x in pend:
            a(c("w", x) if x.startswith("ds_") else x)
        if p_ in hooks:
            hooks[p_]()
    if which == "H":
        a.ext(f"v_pk_mul_f32 {v(H1 + r, 2)}, {v(H1 + r, 2)}, s[68:69]" for r in range(0, 28, 2))
    a.ext(post(6))


def w_voff(dst):
    return lines(f"""
v_lshrrev_b32 v{t0}, 4, v{vLANE}
v_and_b32 v{t1}, 15, v{vLANE}
s_lshl_b32 s77, s{sWAVE}, 12
v_lshlrev_b32 v{t2}, 2, v{t0}
v_xor_b32 v{t2}, v{t2}, v{t1}
v_lshl_add_u32 v{t0}, v{t0}, 8, s77
v_lshl_add_u32 v{dst}, v{t2}, 4, v{t0}""")


def w_dma(voff, srd, soff, base):
    return [f"s_lshl_b32 s77, s{sWAVE}, 12", f"s_add_u32 m0, s77, {base}", "s_nop 0"] + [
        f"buffer_load_dwordx4 v{voff}, {s(srd, 4)}, {soff} offen offset:{1024 * n} lds" for n in range(4)]


def w_fragaddr(dst, base):
    return lines(f"""
v_bfe_u32 v{t0}, v{vLANE}, 2, 2
v_lshrrev_b32 v{t1}, 4, v{vLANE}
v_lshl_add_u32 v{t1}, v{t1}, 3, v{t0}
s_lshr_b32 s77, s{sWAVE}, 1
v_xor_b32 v{t0}, s77, v{t0}
v_lshlrev_b32 v{t1}, 8, v{t1}
v_lshl_add_u32 v{t1}, v{t0}, 6, v{t1}
v_and_b32 v{t0}, 3, v{vLANE}
s_and_b32 s77, s{sWAVE}, 1
s_lshl_b32 s77, s77, 5
s_add_u32 s77, s77, {base}
v_lshl_add_u32 v{t1}, v{t0}, 3, v{t1}
v_add_u32 v{dst}, s77, v{t1}""")


def w_frags(dst, addr, off):
    return [f"ds_read_b64_tr_b16 {v(dst + 4 * k + 2 * q, 2)}, v{addr} offset:{off + 8192 * k + 1024 * q}"
            for k in range(4) for q in range(2)]


def k2(a):
    hs = OPT["hs"]
    KEYS = 2048
    EAL = KEYS + CH * 4
    D, SR, EA, BN, RK, KY, eo, SC, CA, OF, ZQ = 64, 68, 72, 80, 84, 88, 92, 96, 108, H1, PD
    vWV, vPA, vPOLL, vF2, vP16 = 42, 43, vXI, vSA, M + 7
    HF, WF, AH, AL = R0, T, WA, AD
    bW0, bW1, bS0, bS1, q0, q1 = M, M + 1, M + 2, M + 3, M + 4, M + 5

    def consts():
        a(f"""
s_add_u32 s28, s24, {WS_TAB - 128}
s_addc_u32 s29, s25, 0
s_and_b32 s29, s29, 0xffff
s_or_b32 s29, s29, 0x40000
s_mov_b32 s30, 64
s_mov_b32 s31, 0x800000
s_mov_b32 s64, 0
s_mov_b32 s65, -1
s_mov_b32 s70, {C_INV:#x}
s_mov_b32 s71, s70
v_and_b32 v{t0}, 31, v{vLANE}
v_lshrrev_b32 v{t1}, 5, v{vLANE}
v_lshl_add_u32 v{vAUXA}, v{t0}, 2, 16
v_lshlrev_b32 v{vSRCA}, 4, v{t1}
v_lshlrev_b32 v{vH8}, 3, v{t1}
v_lshrrev_b32 v{vNP}, 2, v{t0}
v_and_b32 v{vXC}, 1, v{vNP}
v_lshlrev_b32 v{vXC}, 3, v{vXC}
v_add_u32 v{vXC}, {P4 - 8}, v{vXC}
v_mul_u32_u24 v{vXC}, v{vXC}, v{t1}
v_mul_u32_u24 v{vSH}, 7, v{t1}
s_mul_i32 s77, s{sWAVE}, 2304
s_add_u32 s77, s77, {SB}
v_mul_u32_u24 v{t2}, 72, v{t0}
v_add_u32 v{t2}, s77, v{t2}
v_mov_b32 v{t5}, {OOB}
v_cndmask_b32 v{vSROW}, v{t5}, v{t2}, s[64:65]
v_lshlrev_b32 v{vPB}, 3, v{t0}
v_bfe_u32 v{t2}, v{vLANE}, 2, 2
v_and_b32 v{t3}, 3, v{vLANE}
v_cmp_eq_u32 vcc, 0, v{t3}
v_lshlrev_b32 v{t3}, 3, v{t3}
v_and_b32 v{t4}, 16, v{vLANE}
v_lshl_add_u32 v{t3}, v{t4}, 1, v{t3}
v_lshl_add_u32 v{t4}, v{t1}, 2, v{t2}
v_mul_u32_u24 v{vSRD}, 72, v{t4}
v_add3_u32 v{vSRD}, v{vSRD}, v{t3}, s77
v_mul_u32_u24 v{vWAB}, 264, v{t4}
s_mov_b32 s77, {AT}
v_add3_u32 v{vWAB}, v{vWAB}, v{t3}, s77
v_mul_u32_u24 v{vMRD}, {MS}, v{t4}
s_mov_b32 s77, {MA}
v_add3_u32 v{vMRD}, v{vMRD}, v{t3}, s77
v_mul_u32_u24 v{t3}, {MS}, v{vNP}
v_add3_u32 v{t3}, v{t3}, v{vH8}, s77
v_cndmask_b32 v{vMB}, v{t5}, v{t3}, vcc
v_lshrrev_b32 v{t3}, 2, v{vNP}
v_cmp_eq_u32 s[66:67], v{t3}, v{t1}
v_mov_b32 v{t4}, 0x3f80
s_and_b64 vcc, vcc, s[66:67]
v_mov_b32 v{t5}, 0
v_cndmask_b32 v{t4}, 0, v{t4}, vcc
v_lshlrev_b32 v{t2}, 4, v{t2}
v_lshlrev_b64 {v(SEL, 2)}, v{t2}, {v(t4, 2)}
""")

    def cell_addr():
        return lines(f"""
s_lshr_b32 s77, s{sBIN}, 2
s_lshl_b32 s77, s77, 4
s_and_b32 s78, s{sBIN}, 1
s_lshl_b32 s78, s78, 3
s_add_u32 s77, s77, s78
s_and_b32 s78, s{sBIN}, 2
s_lshl_b32 s78, s78, 9
s_add_u32 s77, s77, s78
s_add_u32 s77, s77, {WS_OFF}
v_lshrrev_b32 v{vKA}, 1, v0
v_lshl_add_u32 v{vPOLL}, v{vKA}, 11, s77
s_mov_b32 s77, {WS_F2}
v_lshl_add_u32 v{vF2}, v{vKA}, {OPT["f2s"]}, s77
v_mul_u32_u24 v{vKA}, {CHB}, v{vKA}
v_and_b32 v{vP16}, 1, v0
v_lshlrev_b32 v{vP16}, 4, v{vP16}""")

    a(f".p2align 8\n{NAME}_kernel:")
    a(f"""
s_cmp_ge_u32 s2, 256
s_cbranch_scc1 K2_END
s_load_dwordx16 s[4:19], s[0:1], 0
""")
    ka2 = "s_load_dwordx2 s[20:21], s[0:1], 64\ns_load_dwordx2 s[24:25], s[0:1], 80"
    epo = ("; launch tag: derived from the epoch word, which advances once every workgroup has published with it\n"
           f"s_load_dword s22, s[24:25], {WS_EPO}")
    if not OPT["ks"]:
        a(ka2)
    stamp(a, 0)
    a(f"v_lshrrev_b32 v{t0}, 6, v0")
    if OPT["cpf"]:
        a(f"""
s_getpc_b64 s[74:75]
K2_PC:
s_and_b32 s3, s2, -8
v_add_lshl_u32 v{t1}, v{t0}, s3, 6
v_min_u32 v{t1}, K2_END-K2_PC, v{t1}
global_load_dword v{X + 2}, v{t1}, s[74:75]
""")
    a(f"""
v_and_b32 v{vLANE}, 63, v0
v_readfirstlane_b32 s{sWAVE}, v{t0}
s_mul_i32 s26, s2, {CH * 4}
v_lshl_add_u32 v{eo}, v0, 4, s26
s_mov_b32 s79, {SG}
v_lshl_add_u32 v{t1}, v0, 2, s79
v_mov_b64 {v(Z, 2)}, 0
ds_write_b32 v{t1}, v{Z}
v_cmp_gt_u32 vcc, {CH // 4}, v0
s_mov_b64 s[72:73], vcc
v_cmp_gt_u32 vcc, {E * 4}, v{eo}
s_and_b64 s[72:73], s[72:73], vcc
v_cndmask_b32 v{eo}, 0, v{eo}, s[72:73]
s_or_b64 exec, s[72:73], 1
v_lshlrev_b32 v{eo + 1}, 1, v{eo}
s_and_b32 s{sBIN}, s2, 7
s_lshl_b32 s{sBIN}, s{sBIN}, 5
s_lshr_b32 s3, s2, 3
s_add_u32 s{sBIN}, s{sBIN}, s3
s_mul_i32 s{sN0}, s{sBIN}, {BS}
s_mov_b32 s38, {261 * 256}
s_mov_b32 s39, 0x20000
s_waitcnt lgkmcnt(0)
global_load_dwordx4 {v(D, 4)}, v{eo}, s[12:13]
{ka2 if OPT["ks"] else epo}
{"" if OPT["b0l"] else "s_barrier"}
global_load_dwordx4 {v(SR, 4)}, v{eo}, s[10:11]
global_load_dwordx4 {v(EA, 4)}, v{eo + 1}, s[8:9]
global_load_dwordx4 {v(EA + 4, 4)}, v{eo + 1}, s[8:9] offset:16
s_mov_b64 exec, -1
s_mov_b32 s36, s14
s_mov_b32 s37, s15
s_add_u32 s77, s{sWAVE}, 257
s_cmp_lt_u32 s{sWAVE}, 4
s_cselect_b32 s77, s77, 256
s_lshl_b32 s77, s77, 8
v_lshlrev_b32 v{t0}, 2, v{vLANE}
buffer_load_dword v{vWE}, v{t0}, s[36:39], s77 offen
s_mov_b32 s60, s16
s_mov_b32 s61, s17
s_mov_b32 s16, s18
s_mov_b32 s17, s19
v_add_u32 v{vPA}, s{sN0}, v0
s_cmp_lt_u32 s{sWAVE}, 2
s_cbranch_scc1 F_A
v_lshrrev_b32 v{t1}, 1, v{t0}
v_xor_b32 v{t1}, v{t1}, v{t0}
v_and_b32 v{t1}, 8, v{t1}
v_mul_u32_u24 v{t1}, 3, v{t1}
v_xor_b32 v{t0}, v{t0}, v{t1}
global_load_dword v{vWXD}, v{t0}, s[60:61]
s_mul_i32 s77, s3, 6
s_add_u32 s77, s77, s{sWAVE}
s_sub_u32 s77, s77, 2
s_mul_i32 s77, s77, 384
v_min_u32 v{t0}, 2, v{vLANE}
v_lshl_add_u32 v{t0}, v{t0}, 7, s77
buffer_load_dword v{X}, v{t0}, s[36:39], 0 offen
s_and_b32 s77, s2, 30
s_lshl_b32 s77, s77, 10
s_lshr_b32 s78, s2, 5
s_lshl_b32 s78, s78, 5
s_add_u32 s77, s77, s78
s_and_b32 s78, s2, 1
s_lshl_b32 s78, s78, 4
s_add_u32 s77, s77, s78
s_cmp_eq_u32 s{sWAVE}, 7
s_cselect_b32 s78, 32768, 0
s_add_u32 s77, s77, s78
v_and_b32 v{t0}, 7, v{vLANE}
v_lshrrev_b32 v{t1}, 3, v{vLANE}
v_lshl_add_u32 v{t0}, v{t0}, 8, s77
v_lshl_add_u32 v{t0}, v{t1}, 1, v{t0}
global_load_short_d16_hi v{vP4}, v{t0}, s[16:17]
s_branch F_B
F_A:
s_mov_b32 s60, s6
s_mov_b32 s61, s7
s_mov_b32 s62, {N * 6}
s_mov_b32 s63, 0x20000
v_mul_u32_u24 v{t1}, 6, v{vPA}
buffer_load_short_d16_hi v{vP4}, v{t1}, s[60:63], 0 offen
buffer_load_short_d16_hi v{vP4 + 1}, v{t1}, s[60:63], 0 offen offset:2
buffer_load_short_d16_hi v{vP4 + 2}, v{t1}, s[60:63], 0 offen offset:4
F_B:
s_add_u32 s77, s{sN0}, {BS}
s_lshl_b32 s58, s77, 8
s_min_u32 s34, s58, {N * 256}
s_mov_b32 s32, s4
s_mov_b32 s33, s5
s_mov_b32 s35, 0x20000
s_lshl_b32 s77, s{sWAVE}, 12
s_add_u32 m0, s77, {HR}
s_lshl_b32 s78, s{sN0}, 8
s_add_u32 s78, s77, s78
v_lshrrev_b32 v{t0}, 4, v{vLANE}
v_and_b32 v{t1}, 15, v{vLANE}
v_xor_b32 v{t1}, v{t0}, v{t1}
v_lshlrev_b32 v{t1}, 4, v{t1}
v_lshl_add_u32 v{t1}, v{t0}, 8, v{t1}
v_add_u32 v{PL}, s78, v{t1}
v_xor_b32 v{PL + 1}, 64, v{PL}
v_xor_b32 v{PL + 2}, 128, v{PL}
v_xor_b32 v{PL + 3}, 192, v{PL}
""")
    hdma = [f"buffer_load_dwordx4 v{PL + n}, s[32:35], 0 offen offset:{1024 * n} lds" for n in range(4)]
    if not OPT["hlate"]:
        a.ext(hdma)
    a(f"""
{"s_waitcnt lgkmcnt(0)" if OPT["ks"] else ""}
{epo if OPT["ks"] else ""}
v_lshlrev_b32 v{CA}, 4, v0
v_add_u32 v{CA + 1}, {CH * 4 if OPT["eal"] else 8192}, v{CA}
v_add_u32 v{CA + 2}, 8192, v{CA + 1}
v_add_u32 v{CA + 3}, s79, v{CA}
s_mov_b32 s68, {C_FWD:#x}
s_mov_b32 s69, s68
s_mov_b32 s18, {C_LO if OPT["lut"] else C_FWD:#x}
s_mov_b32 s19, s18
v_lshlrev_b32 v{t1}, 3, v0
ds_write_b64 v{t1}, {v(Z, 2)} offset:{POS}
""")
    a.ext(w_voff(vWV))

    def blk_B():
        a(f"""
s_add_u32 s56, s24, {WS_TAB}
s_addc_u32 s57, s25, 0
s_mov_b32 s59, 0x20000
v_bfe_u32 v{t0}, v{vLANE}, 2, 2
v_and_b32 v{t3}, 3, v{vLANE}
v_lshrrev_b32 v{t1}, 5, v{vLANE}
v_lshl_add_u32 v{t2}, v{t1}, 3, v{t0}
v_lshlrev_b32 v{t2}, 8, v{t2}
v_lshl_add_u32 v{t2}, v{t3}, 3, v{t2}
v_and_b32 v{t3}, 16, v{vLANE}
v_lshl_add_u32 v{t2}, v{t3}, 1, v{t2}
s_and_b32 s66, s{sWAVE}, 1
s_lshr_b32 s27, s{sWAVE}, 1
s_lshl_b32 s77, s66, 1
v_xor_b32 v{t3}, s77, v{t0}
v_lshl_add_u32 v{bW0}, v{t3}, 6, v{t2}
v_add_u32 v{bW0}, {W2L}, v{bW0}
v_xor_b32 v{bW1}, 64, v{bW0}
v_and_b32 v{q0}, 31, v{vLANE}
v_and_b32 v{q1}, 15, v{vLANE}
v_xor_b32 v{q1}, v{t1}, v{q1}
v_lshlrev_b32 v{q1}, 4, v{q1}
v_lshl_add_u32 v{q1}, v{q0}, 8, v{q1}
s_lshl_b32 s78, s27, 13
s_add_u32 s77, s78, {HR}
v_add_u32 v{EE}, s77, v{q1}
""")
        for k in range(1, 8):
            a(f"v_xor_b32 v{EE + k}, {32 * k}, v{EE}")
        a(f"""
s_lshl_b32 s77, s{sN0}, 8
s_add_u32 s78, s78, s77
s_lshl_b32 s66, s66, 7
s_add_u32 s78, s78, s66
v_lshlrev_b32 v{bS0}, 10, v{t1}
v_lshl_add_u32 v{bS0}, v{q0}, 2, v{bS0}
v_add_u32 v{bS0}, s78, v{bS0}
v_add_u32 v{bS1}, 4096, v{bS0}
""")
        a.ext(w_fragaddr(q0, W1L))

    def blk_Z():
        a(f"v_mov_b64 {v(ZQ, 2)}, 0\nv_mov_b64 {v(ZQ + 2, 2)}, 0\nv_add_u32 v{t0}, {AT - 49152}, v{CA}")
        for i in range(6):
            a(f"ds_write_b128 v{t0}, {v(ZQ, 4)} offset:{8192 * i}")

    def blk_T():
        if not OPT["lut"]:
            return
        G, U, R1 = T, T + 8, T + 16
        a(f"s_mov_b32 s77, {(-65537 * 8) & 0xffffffff:#x}\nv_mul_lo_u32 v{G}, v0, s77")
        for r in range(3):
            for q in range(4):
                if r or q:
                    d = G + 4 * (r & 1) + q
                    src = G + 4 * ((r - 1) & 1) if q == 0 else G + 4 * (r & 1)
                    a(f"v_subrev_u32 v{d}, {0x10001000 if q == 0 else 131074 * q:#x}, v{src}")
            a(f"ds_write_b128 v{CA}, {v(G + 4 * (r & 1), 4)} offset:{8192 * r}")
        a(f"v_lshlrev_b32 v{t0}, 19, v0\ns_mov_b32 s66, {f2u(-2.0 ** (1 - LSH)):#x}\ns_mov_b32 s67, s66")
        for j in range(8):
            a(f"v_sub_u32 v{U + j}, {(20480 - j) << 16:#x}, v{t0}")
        for j in range(0, 8, 2):
            a(f"v_pk_mul_f32 {v(R1 + j, 2)}, {v(U + j, 2)}, s[66:67]")
        for j in range(8):
            a(f"v_exp_f32 v{R1 + j}, v{R1 + j}")
        for j in range(0, 8, 2):
            a(f"v_pk_add_f32 {v(R1 + 8 + j, 2)}, {v(R1 + j, 2)}, 1.0 op_sel_hi:[1,0]")
        for j in range(8):
            a(f"v_rcp_f32 v{R1 + 8 + j}, v{R1 + 8 + j}")
        for j in range(0, 8, 2):
            a(f"v_pk_add_f32 {v(R1 + j, 2)}, {v(R1 + j, 2)}, -1.0 op_sel_hi:[1,0]")
        for j in range(0, 8, 2):
            a(f"v_pk_mul_f32 {v(R1 + j, 2)}, {v(R1 + j, 2)}, {v(R1 + 8 + j, 2)}")
        for j in range(0, 8, 2):
            a(f"v_pk_mul_f32 {v(R1 + j, 2)}, {v(R1 + j, 2)}, {v(U + j, 2)}")
        for j in range(4):
            a(f"v_cvt_pk_bf16_f32 v{U + j}, v{R1 + 2 * j}, v{R1 + 2 * j + 1}")
        a(f"ds_write_b128 v{CA}, {v(U, 4)} offset:24576")

    poll = f"global_load_dwordx2 {v(vAUX, 2)}, v{vPOLL}, s[24:25] sc1"
    blocks = dict(B=blk_B, Z=blk_Z, C=consts, T=blk_T, N=lambda: a.ext(node_addr()), L=lambda: a.ext(cell_addr()),
                  P=lambda: a(poll))
    assert sorted(OPT["pa"] + OPT["pb"] + OPT["pk"] + OPT["ps"]) == sorted("BCNLTW") and set(OPT["pk"]) <= set("C")
    for ch in OPT["pa"]:
        blocks[ch]()
    a(f"""
s_add_u32 s40, s24, {WS_X}
s_addc_u32 s41, s25, 0
s_mov_b32 s42, {P4 + N * 16}
s_mov_b32 s43, 0x20000
s_mul_i32 s26, s2, {CHB}
s_add_u32 s52, s40, s26
s_addc_u32 s53, s41, 0
s_movk_i32 s54, {CHB}
s_mov_b32 s55, 0x20000
s_mov_b32 s{sDONE}, 0
s_movk_i32 s{sSPB}, 128
s_mov_b32 s{sINIT}, 0
s_mov_b32 s{sSPIN}, 0
s_mov_b32 s3, 32768
v_mov_b32 v{vP4 + 3}, 0
v_lshlrev_b32 v{vPA}, 4, v{vPA}
v_add_u32 v{vPA}, {P4}, v{vPA}
v_cmp_gt_u32 vcc, {BS}, v0
v_mov_b32 v{t0}, {0x7f000000}
s_movk_i32 s26, {-BS}
v_cndmask_b32 v{vPA}, v{t0}, v{vPA}, vcc
v_mov_b32 v{t5}, 4
v_lshl_add_u32 v{t4}, v{vLANE}, 4, s79
{"s_barrier" if OPT["b0l"] else ""}
s_mov_b64 exec, s[72:73]
s_waitcnt vmcnt({7 if OPT["hlate"] else 11})
""")
    stamp(a, 1)
    for i in range(4):
        a(f"v_mul_u32_u24 v{BN + i}, 2675, v{D + i}")
    for i in range(4):
        a(f"v_lshrrev_b32 v{KY + i}, 18, v{BN + i}")
    for i in range(4):
        a(f"v_lshl_add_u32 v{BN + i}, v{KY + i}, 2, s79")
    for i in range(4):
        a(f"ds_add_rtn_u32 v{RK + i}, v{BN + i}, v{t5}")
    for i in range(4):
        a(f"v_mad_i32_i24 v{KY + i}, v{KY + i}, s26, v{D + i}")
    for i in range(4):
        a(f"v_lshlrev_b32 v{KY + i}, 24, v{KY + i}")
    a("s_mov_b64 exec, -1")
    if OPT["hlate"]:
        a.ext(hdma)
    a(f"""
s_waitcnt lgkmcnt(0)
s_barrier
ds_read_b128 {v(SC, 4)}, v{t4}
s_waitcnt lgkmcnt(0)
v_add_u32 v{SC + 5}, v{SC}, v{SC + 1}
v_add_u32 v{SC + 6}, v{SC + 5}, v{SC + 2}
v_add_u32 v{SC + 7}, v{SC + 6}, v{SC + 3}
v_mov_b32 v{SC + 8}, v{SC + 7}
""")
    scan64(a, f"v{SC + 8}")
    a(f"""
v_sub_u32 v{SC + 4}, v{SC + 8}, v{SC + 7}
v_add_u32 v{SC + 7}, v{SC + 4}, v{SC + 6}
v_add_u32 v{SC + 6}, v{SC + 4}, v{SC + 5}
v_add_u32 v{SC + 5}, v{SC + 4}, v{SC}
ds_write_b128 v{t4}, {v(SC + 4, 4)} offset:1024
s_mov_b64 exec, s[72:73]
""")
    for i in range(4):
        a(f"ds_read_b32 v{BN + i}, v{BN + i} offset:1024")
    a("s_waitcnt vmcnt(10)")
    for i in range(4):
        a(f"v_lshl_or_b32 v{KY + i}, v{SR + i}, 8, v{KY + i}")
    a("s_waitcnt lgkmcnt(0)")
    for i in range(4):
        a(f"v_add_u32 v{RK + i}, v{BN + i}, v{RK + i}")
    for i in range(4):
        a(f"v_add_u32 v{BN + i}, s79, v{RK + i}")
    for i in range(4):
        a(f"ds_write_b32 v{BN + i}, v{KY + i} offset:{KEYS}")
        a(f"v_add_u32 v{RK + i}, v{BN + i}, v{RK + i}")
    a("s_waitcnt vmcnt(8)")
    stamp(a, 2)
    for i in range(4):
        a(f"ds_write_b64 v{RK + i}, {v(EA + 2 * i, 2)} offset:{EAL}")
    a("s_mov_b64 exec, -1")
    for i in range(4):
        a(f"v_lshl_or_b32 v{OF + 2 * i}, v{SC + i}, 16, v{SC + 4 + i}")
    blocks["W"] = lambda: a.ext(w_dma(vWV, 36, "s3", W2L))
    assert ("W" in OPT["ps"]) == bool(OPT["early"])
    for ch in OPT["ps"]:
        blocks[ch]()
    a(f"""
s_waitcnt lgkmcnt(0)
s_barrier
""")
    if OPT["eal"]:
        a(f"""
ds_read_b128 {v(PH, 4)}, v{CA + 3} offset:{KEYS}
ds_read_b128 {v(PH + 4, 4)}, v{CA + 3} offset:{EAL}
ds_read_b128 {v(PH + 8, 4)}, v{CA + 3} offset:{EAL + 8192}
s_movk_i32 s54, {CH * 4}
s_waitcnt lgkmcnt(2)
buffer_store_dwordx4 {v(PH, 4)}, v{CA}, s[52:55], 0 offen sc1
s_waitcnt vmcnt(5)
""")
    else:
        a(f"""
ds_read_b128 {v(PH, 4)}, v{CA + 3} offset:{KEYS}
ds_read_b128 {v(PH + 4, 4)}, v{CA + 3} offset:{KEYS + 8192}
ds_read_b128 {v(PH + 8, 4)}, v{CA + 3} offset:{KEYS + 16384}
s_waitcnt lgkmcnt(2)
buffer_store_dwordx4 {v(PH, 4)}, v{CA}, s[52:55], 0 offen sc1
s_waitcnt lgkmcnt(1)
buffer_store_dwordx4 {v(PH + 4, 4)}, v{CA + 1}, s[52:55], 0 offen sc1
s_waitcnt lgkmcnt(0)
buffer_store_dwordx4 {v(PH + 8, 4)}, v{CA + 2}, s[52:55], 0 offen sc1
s_waitcnt vmcnt({11 if OPT['early'] else 7})
""")
    a(f"""
s_cmp_ge_u32 s{sWAVE}, 2
s_cbranch_scc1 F_C
buffer_store_dwordx4 {v(vP4, 4)}, v{vPA}, s[40:43], 0 offen sc1
ds_write_b128 v{CA}, {v(vP4, 4)} offset:{PDL}
s_branch F_D
F_C:
s_cmp_eq_u32 s{sWAVE}, 7
s_cselect_b32 s77, s2, 0
s_bitcmp1_b32 s77, 3
s_cselect_b32 s77, {f2u(2.0 ** -LSH) if OPT["lut"] else f2u(1.0):#x}, 1.0
v_mul_f32 v{vP4}, s77, v{vP4}
s_add_u32 s60, s24, {WS_W}
s_addc_u32 s61, s25, 0
s_mov_b32 s62, {2 * 32768}
s_mov_b32 s63, 0x20000
s_sub_u32 s77, s{sWAVE}, 6
s_min_u32 s77, s77, 2
s_lshl_b32 s77, s77, 8
s_add_u32 s77, s77, s2
s_lshl_b32 s77, s77, 7
v_lshl_add_u32 v{t0}, v{vLANE}, 1, s77
buffer_store_short_d16_hi v{vP4}, v{t0}, s[60:63], 0 offen sc1
s_cmp_lg_u32 s{sWAVE}, 2
s_cbranch_scc1 F_D
v_lshrrev_b32 v{t0}, 2, v{vLANE}
v_and_b32 v{t2}, 3, v{vLANE}
v_lshrrev_b32 v{t3}, 1, v{t0}
v_lshlrev_b32 v{t0}, 4, v{t0}
v_mov_b32 v{t4}, 0x3f80
v_cmp_eq_u32 vcc, v{t2}, v{t3}
v_lshlrev_b32 v{t4}, v{t0}, v{t4}
v_bfe_u32 v{t2}, v{vLANE}, 4, 1
v_cndmask_b32 v{t4}, 0, v{t4}, vcc
v_mul_i32_i24 v{t2}, {-LSH if OPT["lut"] else 0}, v{t2}
v_lshlrev_b32 v{t0}, 16, v{vWXD}
v_and_b32 v{t1}, 0xffff0000, v{vWXD}
v_ldexp_f32 v{t0}, v{t0}, v{t2}
v_ldexp_f32 v{t1}, v{t1}, v{t2}
v_cvt_pk_bf16_f32 v{vWXD}, v{t0}, v{t1}
v_lshlrev_b32 v{t1}, 2, v{vLANE}
ds_write2st64_b32 v{t1}, v{t4}, v{vWXD} offset0:{OH // 256} offset1:{WX // 256}
F_D:
""")
    stamp(a, 3)
    a(f"s_mul_i32 s{sNONCE}, s22, 0x2c9277b5\ns_add_u32 s{sNONCE}, s{sNONCE}, 0xac564b05")
    w1d = w_dma(vWV, 36, "0", W1L)
    wl = w_dma(vWV, 36, "s3", W2L) + ([] if OPT["w1in"] else w1d)
    nw1 = 0 if OPT["w1in"] else 4
    a(f"""
s_mov_b32 s66, 0xffff0000
s_mov_b32 s67, s66
s_cmp_lt_u32 s{sWAVE}, 6
s_cselect_b32 s77, s68, 0
s_cselect_b32 s78, s18, 0
v_mov_b32 v{t2}, s77
v_mov_b32 v{t3}, s78
v_cndmask_b32 v{t2}, v{t2}, v{t3}, s[66:67]
s_cmp_eq_u32 s{sWAVE}, 5
s_cselect_b32 s26, -1.0, 0
s_mul_i32 s78, s{sWAVE}, 264
s_add_u32 s78, s78, {AT}
v_lshlrev_b32 v{t0}, 16, v{vWE}
v_and_b32 v{t1}, 0xffff0000, v{vWE}
v_mul_f32 v{t0}, v{t2}, v{t0}
v_mul_f32 v{t1}, v{t2}, v{t1}
v_cvt_pk_bf16_f32 v{t2}, v{t0}, v{t1}
v_lshlrev_b32 v{t3}, 16, v{t2}
v_and_b32 v{t2}, 0xffff0000, v{t2}
v_fmac_f32 v{t0}, s26, v{t3}
v_fmac_f32 v{t1}, s26, v{t2}
v_cvt_pk_bf16_f32 v{vWE}, v{t0}, v{t1}
v_lshl_add_u32 v{vPA}, v{vLANE}, 2, s78
s_mov_b32 s26, 0x07060302
""")
    for ch in OPT["pb"]:
        blocks[ch]()
    a(f"s_waitcnt vmcnt({4 if OPT['early'] else 0}) lgkmcnt(0)\ns_barrier")
    stamp(a, 17)

    def pub1():
        stamp(a, 4)
        a(f"""
s_cmp_lg_u32 s{sWAVE}, 7
s_cbranch_scc1 F_4
s_lshl_b32 s77, s2, 11
s_add_u32 s77, s77, {WS_OFF}
v_lshl_add_u32 v{t0}, v{vLANE}, 4, s77
""")
        for i in range(4):
            a(f"v_mov_b32 v{OF + 2 * i + 1}, s{sNONCE}")
        a(f"""
global_store_dwordx4 v{t0}, {v(OF, 4)}, s[24:25] sc1
global_store_dwordx4 v{t0}, {v(OF + 4, 4)}, s[24:25] offset:1024 sc1
F_4:
""")

    if not OPT["early"]:
        pub1()

    def brd(k):
        o = [f"ds_read_b128 {v(HF + 4 * k, 4)}, v{EE + k}"]
        for j, ad in enumerate((f"v{bW0}", f"v{bW1}")):
            o.append(f"ds_read_b64_tr_b16 {v(WF + 8 * k + 4 * j, 2)}, {ad} offset:{4096 * k}")
            o.append(f"ds_read_b64_tr_b16 {v(WF + 8 * k + 4 * j + 2, 2)}, {ad} offset:{4096 * k + 1024}")
        return o

    for k in range(3):
        a.ext(brd(k))
    eas = [f"s_movk_i32 s54, {CHB}"] + [
        f"buffer_store_dwordx4 {v(PH + 4 + 4 * n, 4)}, v{CA + 1 + n}, s[52:55], 0 offen sc1" for n in range(2)]
    if OPT["eal"] == 1:
        a.ext(eas)
    for k in range(8):
        a(f"s_waitcnt lgkmcnt({5 * min(2, 7 - k)})")
        for j, acc in enumerate((AH, AL)):
            a(mf(acc, HF + 4 * k, WF + 8 * k + 4 * j, None if k == 0 else acc))
        if k + 3 < 8:
            a.ext(brd(k + 3))
        if OPT["w1in"] and k < 4:
            a.ext(w1d[:4] if k == 0 else [w1d[3 + k]])
        if k == 4 and OPT["eal"] == 2:
            a.ext(eas)
        if k == OPT["early"] and k:
            a("s_waitcnt vmcnt(4)\ns_barrier")
            pub1()
    a("s_nop 10")
    stamp(a, 5)
    a("s_cmp_eq_u32 s27, 3")
    for r in range(0, 16, 2):
        if r == 2:
            a("s_cbranch_scc1 F_5")
        a(f"v_pk_mul_f32 {v(AL + r, 2)}, {v(AL + r, 2)}, s[18:19]")
        a(f"v_pk_mul_f32 {v(AH + r, 2)}, {v(AH + r, 2)}, s[68:69]")
        for q in (r, r + 1):
            a(f"v_add_u32 v{AL + q}, 0x4000, v{AL + q}")
        for q in (r, r + 1):
            a(f"v_perm_b32 v{AH + q}, v{AH + q}, v{AL + q}, s26")
        for q in (r, r + 1):
            a(f"buffer_store_dword v{AH + q}, v{bS1 if q >= 8 else bS0}, s[56:59], 0 offen "
              f"offset:{(8 * ((q >> 2) & 1) + (q & 3)) * 256} sc1")
    ne = 2 if OPT["eal"] == 2 else 0
    a(f"s_waitcnt vmcnt({16 + ne})\ns_branch F_6\nF_5:")
    if OPT["early"]:
        a("s_waitcnt vmcnt(4)\ns_cmp_eq_u32 s44, 7\ns_cbranch_scc1 F_6")
    a(f"s_waitcnt vmcnt({2 + ne})\nF_6:\ns_barrier")
    stamp(a, 6)
    cg = Cnt()
    for x in w_frags(T, q0, 0):
        a(cg("f", x))
    a(cg("w", f"ds_write_b32 v{vPA}, v{vWE}"))
    a(f"s_bitcmp1_b32 s{sWAVE}, 1\ns_cselect_b32 s3, s18, s68")

    def keys():
        if OPT["gpoll"] != OPT["gsplit"]:
            a("s_branch K2_B1")
        a(f"""
K2_B0:
{poll}
K2_B1:
s_add_u32 s{sSPIN}, s{sSPIN}, 1
s_waitcnt vmcnt(0)
v_cmp_ne_u32 vcc, s{sNONCE}, v{vAUX + 1}
s_cmp_gt_u32 s{sSPIN}, {SPIN}
s_cbranch_scc1 K2_B2
s_mov_b64 exec, vcc
s_cbranch_execnz K2_B0
K2_B2:
s_mov_b64 exec, -1
""")
        stamp(a, 7)
        a(f"""
v_and_b32 v{t0}, 0xffff, v{vAUX}
v_lshrrev_b32 v{vREM}, 16, v{vAUX}
v_add3_u32 v{t0}, v{t0}, v{vP16}, s{sDONE}
v_subrev_u32 v{vREM}, s{sDONE}, v{vREM}
v_add_u32 v{vKA}, v{vKA}, v{t0}
global_load_dwordx4 {v(R0, 4)}, v{vKA}, s[40:41] {hs}
v_cmp_lt_i32 s[26:27], s{sSPB}, v{vREM}
v_min_i32 v{vREM}, s{sSPB}, v{vREM}
v_sub_u32 v{vREM}, v{vREM}, v{vP16}
v_cmp_lt_i32 vcc, 32, v{vREM}
s_mov_b64 exec, vcc
s_cbranch_execz K2_B3
global_load_dwordx4 {v(R0 + 4, 4)}, v{vKA}, s[40:41] offset:32 {hs}
v_cmp_lt_i32 vcc, 64, v{vREM}
s_mov_b64 exec, vcc
s_cbranch_execz K2_B3
global_load_dwordx4 {v(R0 + 8, 4)}, v{vKA}, s[40:41] offset:64 {hs}
global_load_dwordx4 {v(R0 + 12, 4)}, v{vKA}, s[40:41] offset:96 {hs}
K2_B3:
s_mov_b64 exec, -1
s_movk_i32 s77, {CH * 4}
v_add3_u32 v{vKA}, v{vKA}, v{t0}, s77
s_cmp_lg_u32 s{sINIT}, 0
s_cbranch_scc1 K2_B4
s_mov_b32 s{sINIT}, 1
s_barrier
s_cmp_lg_u32 s{sWAVE}, 7
s_cbranch_scc1 F_7
s_lshl_b32 s77, s2, {OPT["f2s"]}
s_add_u32 s77, s77, {WS_F2}
v_mov_b32 v{t0}, s77
v_mov_b32 v{t1}, s{sNONCE}
s_mov_b64 exec, 1
global_store_dword v{t0}, v{t1}, s[24:25] sc1
s_cmp_lg_u32 s2, 255
s_cbranch_scc1 F_8
global_store_dword v{Z}, v{t1}, s[24:25] offset:{WS_EPO} sc1
F_8:
s_mov_b64 exec, -1
F_7:
""")
        stamp(a, 8)

    hooks = {OPT["gsplit"]: keys}
    if OPT["gpoll"] != OPT["gsplit"]:
        hooks[OPT["gpoll"]] = lambda: a(poll)
    if -1 in hooks:
        hooks[-1]()
    node_gemm(a, "A", hooks, cg)
    if not OPT["lz"]:
        a(f"v_lshlrev_b32 v{CA}, 4, v0")
        blk_Z()
    late = lines(f"""
s_lshl_b32 s77, s{sWAVE}, 12
s_add_u32 s77, s77, {WS_W}
v_lshl_add_u32 v{t4}, v{vLANE}, 4, s77""")
    late += [f"global_load_dwordx4 {v(T + 16 + 4 * k, 4)}, v{t4}, s[24:25] offset:{1024 * k} {hs}" for k in range(4)]
    if OPT["hend"]:
        late = []
    if OPT["pe"] == 1 and not OPT["eal"]:
        late.append(f"global_load_dword v{X}, v{vKA}, s[40:41] {hs}")
    if OPT["pe"] == 2:
        late += lines(f"""
v_and_b32 v{t4}, 96, v{vKA}
v_cmp_eq_u32 vcc, 0, v{t4}
s_or_b64 exec, vcc, 1
global_load_dword v{X}, v{vKA}, s[40:41] {hs}
s_mov_b64 exec, -1""")
    if OPT["pp"]:
        late += lines(f"""
s_lshr_b32 s77, s2, 3
s_lshl_b32 s77, s77, 3
s_add_u32 s77, s77, s{sWAVE}
s_mul_i32 s77, s77, {13 * 128}
s_add_u32 s77, s77, {P4}
v_lshl_add_u32 v{t4}, v{vLANE}, 7, s77
s_mov_b64 exec, 0x1fff
global_load_dword v{X}, v{t4}, s[40:41] {hs}
s_mov_b64 exec, -1""")
    a.ext(late)
    for ch in OPT["pk"]:
        blocks[ch]()
    nlate = sum(x.startswith(("global_", "buffer_")) for x in late)
    a(f"s_waitcnt vmcnt({nlate})\ns_branch K2_B5\nK2_B4:\ns_waitcnt vmcnt(0)\nK2_B5:")
    stamp(a, 9)
    f2 = f"global_load_dword v{vAUX}, v{vF2}, s[24:25] sc1"
    a(f"""
v_mov_b32 v{t1}, 32
v_lshrrev_b32 v{vKA}, 3, v{vKA}
s_cmp_eq_u64 s[26:27], 0
s_cbranch_scc1 K2_B6
ds_write_b32 v{Z}, v{t1} offset:{FLAG}
K2_B6:
""")
    for k in range(4):
        for i in range(4):
            j = 4 * k + i
            a(f"v_cmpx_lt_i32 vcc, {32 * k + 4 * i}, v{vREM}")
            if j in (6, 8, 12):
                a("s_cbranch_execz K2_B7")
            if i == 0:
                for q in range(4):
                    a(f"v_lshlrev_b32_sdwa v{PH + j + q}, 2, v{R0 + j + q} {B3}")
            a(f"ds_add_rtn_u32 v{R1 + j}, v{PH + j}, v{t1} offset:{HIST}")
    a(f"""
K2_B7:
s_mov_b64 exec, -1
v_lshlrev_b32 v{t0}, 3, v{vLANE}
s_mov_b32 s78, 0xff000000
""")

    def aux(j):
        k, i = j >> 2, j & 3
        return [f"v_add_u32 v{PL + j}, {8 * k + i}, v{vKA}", f"v_and_or_b32 v{PL + j}, v{R0 + j}, s78, v{PL + j}"]

    a(f"s_mov_b32 s60, s40\ns_or_b32 s61, s41, 0x80000\ns_mov_b32 s62, {P4 // 8}\ns_mov_b32 s63, 0x20000")
    if OPT["f2pos"] == 0:
        a(f2)
    a(f"""
s_waitcnt lgkmcnt(0)
s_barrier
ds_read_b64 {v(t2, 2)}, v{t0} offset:{HIST}
ds_read_b32 v{t1}, v{Z} offset:{FLAG}
""")
    if OPT["stamps"] == 2:
        stamp(a, 24)
    if OPT["f2pos"] == 1:
        a(f2)
    for j in range(2):
        a.ext(aux(j))
    a(f"""
s_waitcnt lgkmcnt(0)
v_add_u32 v{t3}, v{t2}, v{t3}
v_readfirstlane_b32 s{sMORE}, v{t1}
v_mov_b32 v{t5}, v{t3}
v_subrev_u32 v{t3}, 128, v{t3}
""")
    scan64(a, f"v{t5}", [aux(j) for j in range(2, 8)])
    a(f"""
v_sub_u32 v{EE}, v{t5}, v{t3}
v_readlane_b32 s{sTOT}, v{t5}, 63
v_add_u32 v{EE + 1}, v{EE}, v{t2}
ds_write_b64 v{t0}, {v(EE, 2)} offset:{BASE}
""")
    for j in range(8):
        if j % 4 == 0:
            a(f"v_cmpx_lt_i32 vcc, {8 * j}, v{vREM}")
        a(f"ds_read_b32 v{PH + j}, v{PH + j} offset:{BASE}")
    a("s_mov_b64 exec, -1")
    if OPT["f2pos"] == 2:
        a(f2)
    nq = 0
    if OPT["eal"] and OPT["pe"]:
        nq = 1
        a(f"""
v_lshlrev_b32 v{t0}, 3, v{vKA}
s_waitcnt vmcnt(0)
v_cmp_eq_u32 vcc, s{sNONCE}, v{vAUX}
v_mov_b32 v{t1}, {0x7f000000}
s_not_b64 exec, vcc
s_cbranch_execz K2_B75
{f2}
K2_B75:
s_mov_b64 exec, -1
v_cndmask_b32 v{t0}, v{t1}, v{t0}, vcc
buffer_load_dword v{X}, v{t0}, s[40:43], 0 offen {hs}
""")
    a(f"""
s_lshr_b32 s{sTOT}, s{sTOT}, 3
s_cmp_gt_u32 s{sTOT}, {CAP4}
s_cbranch_scc0 K2_B8
s_mov_b32 s{sSPB}, 32
s_branch K2_AGAIN
K2_B8:
s_add_u32 s77, s{sTOT}, 127
s_lshr_b32 s77, s77, 7
s_lshl_b32 s{sDUM}, s77, 7
s_lshr_b32 s3, s77, 3
s_and_b32 s77, s77, 7
s_mul_i32 s{sTILE}, s3, s{sWAVE}
s_min_u32 s79, s77, s{sWAVE}
s_add_u32 s{sTILE}, s{sTILE}, s79
s_cmp_lt_u32 s{sWAVE}, s77
s_addc_u32 s{sCNT}, s3, 0
s_and_b32 s79, s{sWAVE}, 3
s_cmp_lt_u32 s79, s77
s_addc_u32 s79, s3, 0
s_cmp_eq_u32 s79, s{sCNT}
s_cselect_b32 s{sHEAD}, 4, 8
s_add_u32 s{sEND}, s{sTILE}, s{sCNT}
s_lshl_b32 s{sEND}, s{sEND}, 7
s_lshl_b32 s{sTILE}, s{sTILE}, 7
s_min_u32 s{sRD}, s{sTILE}, s{sDUM}
s_mov_b32 s{sNBF}, -8
s_mov_b32 s{sRT}, 0
s_min_u32 s77, s{sEND}, s{sTOT}
s_add_u32 s77, s77, {AUX + 12}
v_mov_b32 v{t4}, s77
s_mov_b32 s77, {0x3ff7f if OPT['x_norow'] else 0xffff7f:#x}
s_cmp_lg_u32 s{sWAVE}, 7
s_cbranch_scc1 K2_B9
s_add_u32 s79, s{sTOT}, 16
v_lshl_add_u32 v{t0}, v{vLANE}, 2, s79
v_and_b32 v{t1}, 16, v{t0}
v_lshlrev_b32 v{t1}, 3, v{t1}
s_lshl_b32 s79, s{sN0}, 8
v_or_b32 v{t1}, s79, v{t1}
v_mov_b32 v{t2}, 0x7f0fffff
ds_write2st64_b32 v{t0}, v{t1}, v{t2} offset0:{SRC // 256} offset1:{AUX // 256}
K2_B9:
s_waitcnt lgkmcnt(0)
""")

    def place(js):
        o = [f"v_add_u32 v{PH + j}, v{PH + j}, v{R1 + j}" for j in js]
        o += [f"v_bfi_b32 v{R0 + j}, s77, v{R0 + j}, v{PH + j}" for j in js]
        return o + [f"v_lshrrev_b32 v{PH + j}, 3, v{PH + j}" for j in js]

    for j in range(16):
        if j == 0:
            a.ext(place(range(0, 6)))
        a(f"v_cmpx_lt_i32 vcc, {32 * (j >> 2) + 4 * (j & 3)}, v{vREM}")
        if j in (6, 8, 12):
            a("s_cbranch_execz K2_B10")
        if j == 6:
            a.ext(place((6, 7)))
        if j in (8, 12):
            for q in range(4):
                a(f"ds_read_b32 v{PH + j + q}, v{PH + j + q} offset:{BASE}")
                a.ext(aux(j + q))
            a("s_waitcnt lgkmcnt(0)")
            a.ext(place(range(j, j + 4)))
        a(f"ds_write2st64_b32 v{PH + j}, v{R0 + j}, v{PL + j} offset0:{SRC // 256} offset1:{AUX // 256}")
    a("K2_B10:\ns_mov_b64 exec, -1")
    stamp(a, 10)
    tr = tile_reads()
    a.ext(tr[:2])
    a(f"""
s_waitcnt vmcnt({nq})
K2_B11:
s_add_u32 s{sSPIN}, s{sSPIN}, 1
v_cmp_ne_u32 vcc, s{sNONCE}, v{vAUX}
s_cmp_gt_u32 s{sSPIN}, {SPIN}
s_cbranch_scc1 K2_B12
s_cbranch_vccz K2_B12
s_mov_b64 exec, vcc
{f2}
s_waitcnt vmcnt(0)
s_branch K2_B11
K2_B12:
s_mov_b64 exec, -1
s_waitcnt lgkmcnt(0)
s_barrier
""")
    stamp(a, 11)
    if OPT["prio"] >= 4 or OPT["php"]:
        a("s_setprio 3")
    a.ext(tr[2:])
    a(f"ds_read2_b32 {v(t4, 2)}, v{t4} offset0:0 offset1:1")
    a(f"s_waitcnt lgkmcnt({0 if OPT['safe'] else 5})")
    a.ext(x_addr() + ld_x() + ["s_waitcnt lgkmcnt(0)"] + ld_r(0))
    a(f"v_readfirstlane_b32 s{sTAIL}, v{t4}\ns_lshr_b32 s{sTAIL}, s{sTAIL}, 24")
    a.ext(window() + plan_v())
    if OPT["r1pos"] == 9:
        a.ext(ld_r(1))

    def clear_rows():
        a(f"""
v_readfirstlane_b32 s79, v{t5}
v_mov_b64 {v(PD, 2)}, 0
v_mov_b64 {v(PD + 2, 2)}, 0
s_mul_i32 s77, s{sWAVE}, 2304
s_add_u32 s77, s77, {SB}
v_lshl_add_u32 v{t1}, v{vLANE}, 4, s77
ds_write_b128 v{t1}, {v(PD, 4)}
ds_write_b128 v{t1}, {v(PD, 4)} offset:1024
ds_write_b128 v{t1}, {v(PD, 4)} offset:1280
s_lshr_b32 s79, s79, 24
s_min_u32 s79, s79, 106
s_cmp_eq_u32 s{sWAVE}, 0
s_cselect_b32 s78, 0, s{sNB1}
s_mul_i32 s78, s78, {MS}
s_mul_i32 s79, s79, {MS}
v_lshl_add_u32 v{t1}, v{vLANE}, 4, s78
K2_Z1:
v_cmpx_gt_u32 vcc, s79, v{t1}
ds_write_b128 v{t1}, {v(PD, 4)} offset:{MA}
v_add_u32 v{t1}, 1024, v{t1}
s_cbranch_execnz K2_Z1
s_mov_b64 exec, -1
""")

    if OPT["lz"] == 1:
        clear_rows()
    a(f"s_cmp_lg_u32 s{sINIT}, 1\ns_cbranch_scc1 K2_G8\ns_mov_b32 s{sINIT}, 2")
    if OPT["r1pos"] in (0, 9):
        node_gemm(a, "H", {}, Cnt())
    else:
        node_gemm(a, "H", {OPT["r1pos"] - 1: lambda: a.ext(ld_r(1))}, Cnt())
        a("s_branch K2_G9")
    a("K2_G8:")
    if OPT["r1pos"] != 9:
        a.ext(ld_r(1))
    a("K2_G9:")
    if OPT["lz"] == 2:
        clear_rows()
    stamp(a, 23)
    for t in range(4):
        a(mf8(T + 16 * t, Z, Z, None))
    a(f"""
s_cmp_lg_u32 s{sCNT}, 0
s_cbranch_scc1 K2_G10
s_mov_b32 s{sNBF}, 0
s_mov_b32 s{sNLF}, -1
s_mov_b32 s{sTAIL}, -1
s_waitcnt vmcnt(0)
s_branch K2_TAIL
K2_G10:
""")
    a.ext(x_reads())
    for t in range(4):
        a(f"ds_read_b64_tr_b16 {v(WA + 4 * t, 2)}, v{vWAB} offset:{64 * t}")
    a.ext(wa_reads(sNB1) + advance() + tile_reads())
    a(f"""
s_mov_b32 s{sNBF}, s{sNB1}
s_mov_b32 s{sIT}, s{sCNT}
s_waitcnt vmcnt(16) lgkmcnt(0)
""")
    stamp(a, 12)
    stamp(a, 30)
    sh0 = [f"v_lshlrev_b64 {v(PL + r, 2)}, 16, {v(R0 + r, 2)}" for r in range(0, 16, 2)]
    a.ext(x_build() + x_addr() + sh0[:2] + [mf(PH, XC, WA, R0)] + sh0[2:])
    a(f"s_setprio {2 if OPT['prio'] in (0, 4, 5, 10) else 3}\ns_nop 0")
    a(mf(PL, XC, WA + 4, PL))

    def shifts(R):
        return [f"v_lshlrev_b64 {v(PL + r, 2)}, 16, {v(R + r, 2)}" for r in range(0, 16, 2)]

    def fl_addr():
        return lines(f"""
s_mul_i32 s77, s{sNBF}, {MS}
s_sub_u32 s79, s{sNLF}, s{sNBF}
s_lshl_b32 s78, s{sNBF}, 5
v_cmp_ge_i32 vcc, s79, v{vNP}
v_add_u32 v{t4}, s77, v{vMB}
v_mov_b32 v{t0}, {OOB}
v_add_u32 v{t5}, s78, v{vPB}
v_cndmask_b32 v{t4}, v{t0}, v{t4}, vcc""")

    def fl_cvt(t):
        return [f"v_cvt_pk_bf16_f32 v{T + 16 * t + i}, v{T + 16 * t + 2 * i}, v{T + 16 * t + 2 * i + 1}" for i in range(8)]

    def fl_wx(t, k):
        return f"ds_read_b128 {v(T + 16 * t + 8 + 4 * k, 4)}, v{vSRCA} offset:{WX + 64 * t + 32 * k}"

    def fl_st(t, k):
        o = 8 * t + 4 * k
        return f"ds_write2_b64 v{t4}, {v(T + 16 * t + 4 * k, 2)}, {v(T + 16 * t + 4 * k + 2, 2)} offset0:{o} offset1:{o + 2}"

    def fl_dot(mid=()):
        o = []
        for n, ts in enumerate(((0, 1), (3, 2))):
            o += list(mid) if n else []
            o += [f"v_dot2_f32_bf16 v{t0 + q}, v{T + 16 * t + i}, v{T + 16 * t + 8 + i}, {v(t0 + q) if n or i else '0'}"
                  for i in range(8) for q, t in enumerate(ts)]
        return o + ["s_nop 2", f"v_add_f32 v{t0}, v{t0}, v{t1}", f"v_cvt_f64_f32 {v(t2, 2)}, v{t0}"]

    cold = []

    def rare(label, body):
        if not OPT["ool"]:
            return [f"s_cbranch_scc1 {label}"] + body + [f"{label}:"]
        cold.extend([f"{label}_X:"] + body + [f"s_branch {label}"])
        return [f"s_cbranch_scc0 {label}_X", f"{label}:"]

    def flush():
        o = fl_addr()
        for t in (0, 1, 3, 2):
            o += fl_cvt(t) + [fl_wx(t, 0), fl_wx(t, 1), fl_st(t, 0), fl_st(t, 1)]
        d = fl_dot(["s_waitcnt lgkmcnt(6)"])
        ini = [mf8(T + 16 * t, EE + 2 * t, SM, None) for t in (1, 0, 3, 2)]
        o += m_reads(sNB1, "gt") + ["s_waitcnt lgkmcnt(14)"] + d[:-3] + ["s_waitcnt lgkmcnt(0)"]
        o += ini[:2] + d[-2:] + ini[2:3] + [f"ds_add_f64 v{t5}, {v(t2, 2)} offset:{POS}"] + ini[3:]
        return rare("K2_L1", o + lines(f"""
s_mov_b32 s{sNBF}, s{sNB1}
s_lshl_b32 s77, s{sWAVE}, 2
v_mov_b32 v{t0}, s77
ds_write_b32 v{t0}, v{vAUXA} offset:{FLAG + 16}"""))

    pr = []
    if OPT["prio"]:
        pr.append(f"s_add_u32 s{sIT}, s{sIT}, {1 if OPT['prio'] == 1 else -1}")
        lad = {1: ((2, 2), (4, 1), (6, 0)), 2: ((3, 2), (2, 1), (1, 0)), 3: ((4, 2), (2, 1), (1, 0)),
               4: ((2, 1), (1, 0)), 5: ((3, 1), (1, 0)), 6: ((3, 2), (2, 1), (1, 0)),
               7: ((2, 2), (1, 1)), 8: ((3, 2), (1, 1)), 9: ((3, 2), (2, 1)), 10: ((2, 1),)}[OPT["prio"]]
        for n, (it, p_) in enumerate(lad):
            pr += [f"s_cmp_lg_u32 s{sIT}, {it}", "\n".join(rare(f"K2_PR{n}", [f"s_setprio {p_}"]))]
    sr = [f"ds_read_b64_tr_b16 {v(S + 2 * q, 2)}, v{vSRD} offset:{576 * q}" for q in range(4)]
    sr.append(f"ds_write_b64 v{vSA}, {v(Z, 2)}")

    def loop_lut():
        SX = "dst_sel:WORD_0 dst_unused:UNUSED_SEXT src0_sel:WORD_0 src1_sel:WORD_"

        def tag(t, lst):
            return [f"@{t} {x}" if x.startswith("ds_") else x for x in lst]

        def look(b):
            G, Y = PL + 8 * b, M + 4 * b
            o = [f"v_cvt_pk_bf16_f32 v{Y + i}, v{G + 2 * i}, v{G + 2 * i + 1}" for i in range(4)]
            o += [f"v_mul_lo_u16_sdwa v{G + i}, -2, v{Y + i} {SX}0" for i in range(4)]
            lo = [f"@g{b} ds_read_u16 v{G + i}, v{G + i}" for i in range(4)]
            hi = [f"v_mul_lo_u16_sdwa v{G + 4 + i}, -2, v{Y + i} {SX}1" for i in range(4)]
            rd = [f"@g{b} ds_read_u16_d16_hi v{G + 4 + i}, v{G + 4 + i}" for i in range(4)]
            return (o + hi + lo + rd) if OPT["lb"] == 8 else (o + lo + hi + rd)

        def su(u):
            th, tl, un = 2 * u, 2 * u + 1, 1 - u
            Tl = T + 16 * tl
            h0, h1 = batch(PH, 0), batch(PH, 1)
            sh = shifts(R1 if un else R0)
            g = [mf(Tl, PL + 4 * n, S + 4 * (n >> 1), Tl) for n in range(4)]
            pA = h0[:8]
            pB = look(0) + (["?S"] if u == 0 else []) + [seg(tl, 0)] + look(1)
            pC = h0[8:12] + [seg(tl, 1)] + h0[12:24]
            pD = ["?g0", g[0]] + h0[24:] + h1[:1] + [g[1]] + h1[1:3] + [seg(th, 0)] + h1[3:12]
            pE = ["?g1", g[2]] + h1[12:15] + [g[3]] + h1[15:24]
            if OPT["merge"]:
                mg = [[f"v_or_b32 v{PL + 8 * b + i}, v{PL + 8 * b + i}, v{PL + 8 * b + 4 + i}" for i in range(4)] for b in range(2)]
                pD = ["?g0"] + mg[0] + h0[24:26] + [g[0]] + h0[26:] + h1[:2] + [seg(th, 0)] + h1[2:12]
                pE = ["?g1"] + mg[1] + h1[12:14] + [g[2]] + h1[14:24]
            if OPT["lsp"] == 1:
                l0, l1 = look(0), look(1)
                pB = l0[:6] + (["?S"] if u == 0 else []) + [seg(tl, 0)] + l0[6:] + l1[:4]
                pC = h0[8:12] + [seg(tl, 1)] + h0[12:20] + l1[4:] + h0[20:24]
            if OPT["lsp"] == 2:
                l0, l1 = look(0), look(1)
                pB = l0[:12] + (["?S"] if u == 0 else []) + [seg(tl, 0)] + l1[:12]
                rd = l0[12:] + l1[12:]
                pC = rd[:4] + h0[8:12] + rd[4:8] + [seg(tl, 1)] + h0[12:17] + rd[8:12] + h0[17:20] + rd[12:] + h0[20:24]
            pF = [mf(PH, XC, WA + 8 * un, R1 if un else R0)] + h1[24:] + sh[:2] + [seg(th, 1)] + sh[2:]
            ph = OPT["php"]
            if ph:
                parts = dict(A=pA, B=pB, C=pC, D=pD, E=pE, F=pF)
                parts[ph[0]].insert(0, "s_setprio 2")
                lo = "s_setprio 0"
                if OPT["yb"] >> u & 1:
                    th_ = f"s{sHEAD}" if (OPT["yb"] >> 2 + u) & 1 else "4"
                    lo += f"\ns_cmp_lt_u32 s{sWAVE}, {th_}\ns_cbranch_scc1 K2_Y{u}\ns_setprio 1\nK2_Y{u}:"
                parts[ph[1]].insert(0, lo)
            return pA, pB, pC, pD, pE, pF, mf(PL, XC, WA + 8 * un + 4, PL)

        o = []
        pA, pB, pC, pD, pE, pF, xl = su(0)
        ld = grp(ld_r(0))
        pv = plan_v()
        o += tag("S", sr[:4]) + tag("c", sr[4:]) + ld_x() + ld[:1] + [f"s_cmp_eq_u32 s{sNB1}, s{sNBF}"] + flush()
        o += sched(pA, ld[1:], win=0) + pB
        o += sched(pC, [f"s_mov_b32 s{sNLF}, s{sNL1}"] + window())
        o += sched(pD, advance()[:5])
        o += sched(pE, advance()[5:])
        o += pv[:3] + ["s_waitcnt vmcnt(17)"] + pF + pv[3:] + [xl]
        pA, pB, pC, pD, pE, pF, xl = su(1)
        ld = grp(ld_r(1))
        tr = tag("d", tile_reads())
        if OPT["prio"] >= 7:
            o += [f"s_cmp_lg_u32 s{sIT}, 1"] + rare("K2_PR9", ["s_setprio 0"])
        o += ld[:1] + [f"s_cmp_eq_u32 s{sNB1}, s{sNBF}"] + rare("K2_L2", wa_reads(sNB1))
        o += tag("x", x_reads()) + sched(pA, ld[1:], win=0) + pB
        o += sched(pC, ["\n".join(tr)] + pr[:1])
        o += sched(pD, pr[1:3])
        o += sched(pE, pr[3:])
        xa = x_addr()
        o += ["s_waitcnt vmcnt(16)", "?d"] + tag("w", x_build()) + xa[:1] + pF
        o += xa[1:] + [f"s_cmp_lg_u32 s{sRDP}, s{sDUM}", xl]
        c = Cnt()
        if OPT["lal"]:
            a(f".p2align {OPT['lal']}")
        a("K2_LOOP:")
        for x in "\n".join(o).split("\n"):
            if x.startswith("@"):
                t, x = x[1:].split(" ", 1)
                a(c(t, x))
            elif x.startswith("?"):
                a(c.wait(x[1:]))
            else:
                a(x)
        a("s_cbranch_scc1 K2_LOOP")

    loop_lut()

    fM, fH, fW, HRS = XC, XC + 1, XC + 2, R0
    RAW = [WA + 2 * n for n in range(7)]
    a(f"""
K2_TAIL:
s_setprio {3 if OPT["tp"] else 0}
s_lshl_b32 s3, s{sWAVE}, 2
v_mov_b32 v{X}, s3
s_cmp_eq_u32 s{sWAVE}, 7
s_cselect_b32 s26, 1, 0
{"s_mov_b32 s27, 0" if OPT["safe"] else ""}
K2_W1:
ds_read_b32 v{X + 1}, v{X} offset:{FLAG + 20}
""")
    stamp(a, 16)
    a.ext(m_reads(sNBF, "eq") + fl_addr())
    a(f"""
s_waitcnt lgkmcnt(0)
v_readfirstlane_b32 s77, v{X + 1}
{"s_add_u32 s27, s27, 1" if OPT["safe"] else ""}
{"s_cmp_gt_u32 s27, 100000" if OPT["safe"] else ""}
{"s_cbranch_scc1 K2_W2" if OPT["safe"] else ""}
s_or_b32 s77, s77, s26
s_cbranch_scc0 K2_W1
K2_W2:
""")
    adr = lines(f"""
v_and_b32 v{t0}, 15, v{vLANE}
v_lshrrev_b32 v{t1}, 4, v{vLANE}
v_mul_u32_u24 v{fM}, {MS}, v{t0}
v_lshl_add_u32 v{fM}, v{t1}, 4, v{fM}
v_add_u32 v{fM}, {MA}, v{fM}
s_lshl_b32 s77, s{sWAVE}, 1
v_lshrrev_b32 v{t2}, 1, v{t1}
v_add_u32 v{t2}, s77, v{t2}
v_xor_b32 v{t2}, v{t2}, v{t0}
v_lshlrev_b32 v{t2}, 4, v{t2}
v_lshl_add_u32 v{t2}, v{t0}, 8, v{t2}
v_and_b32 v{t3}, 1, v{t1}
v_lshl_add_u32 v{t2}, v{t3}, 3, v{t2}
v_add_u32 v{fH}, {HR}, v{t2}""")
    unp = []
    for mt in range(7):
        for q in range(2):
            unp.append(f"v_lshlrev_b32 v{HRS + 4 * mt + 2 * q}, 16, v{RAW[mt] + q}")
            unp.append(f"v_and_b32 v{HRS + 4 * mt + 2 * q + 1}, 0xffff0000, v{RAW[mt] + q}")
    rmw = [mf8(T + 16 * t, EE + 2 * t, SM, T + 16 * t) for t in range(4)]
    a.ext([rmw[0]] + adr[:7] + [rmw[1]] + adr[7:])
    for t in range(4):
        if t < 2:
            a(rmw[t + 2])
        a.ext(fl_cvt(t) + [fl_st(t, 0), fl_st(t, 1)])
        if t == 2:
            a("s_nop 0")
    a(f"""
v_mov_b32 v{X + 1}, 1
s_mov_b64 exec, 1
ds_write_b32 v{X}, v{X + 1} offset:{FLAG + 16}
ds_add_u32 v{Z}, v{X + 1} offset:{FLAG + 4}
s_mov_b64 exec, -1
{"s_setprio 0" if OPT["tp"] == 1 else ""}
""")
    stamp(a, 13)
    stamp(a, 31)
    a(f"s_lshl_b32 s77, s{sWAVE}, 12\ns_add_u32 s77, s77, {WS_W + 32768}\nv_lshl_add_u32 v{fW}, v{vLANE}, 4, s77")
    for k in range(4):
        a(f"global_load_dwordx4 {v(AD + 4 * k, 4)}, v{fW}, s[24:25] offset:{1024 * k} {hs}")
    for mt in range(7):
        a(f"ds_read_b64 {v(RAW[mt], 2)}, v{fH} offset:{4096 * mt}")
    for t in range(4):
        a.ext([fl_wx(t, 0), fl_wx(t, 1)])
    oA, oL, pO, pA_, pB_ = S, S + 4, S + 5, S + 6, S + 7
    a(f"""
s_mul_i32 s78, s{sN0}, 6
v_lshl_add_u32 v{pO}, v0, 1, s78
v_mul_u32_u24 v{t2}, 171, v0
v_lshrrev_b32 v{t2}, 9, v{t2}
v_add_lshl_u32 v{pA_}, v{t2}, v0, 2
v_lshlrev_b32 v{pB_}, 1, v{pA_}
v_cmp_gt_u32 vcc, {3 * BS}, v0
v_mov_b32 v{t2}, {N * 6}
v_and_b32 v{t0}, 15, v{vLANE}
v_cndmask_b32 v{pO}, v{t2}, v{pO}, vcc
v_lshrrev_b32 v{t1}, 4, v{vLANE}
v_xor_b32 v{t2}, v{t0}, v{t1}
v_lshlrev_b32 v{t2}, 4, v{t2}
v_lshl_add_u32 v{t2}, v{t1}, 8, v{t2}
s_lshl_b32 s77, s{sWAVE}, 12
s_lshl_b32 s78, s{sN0}, 8
s_add_u32 s78, s78, s77
v_add_u32 v{oA}, s78, v{t2}
v_xor_b32 v{oA + 1}, 64, v{oA}
v_xor_b32 v{oA + 2}, 128, v{oA}
v_xor_b32 v{oA + 3}, 192, v{oA}
v_lshl_add_u32 v{oL}, v{vLANE}, 4, s77
v_subrev_u32 v{fH}, {HR}, v{fH}
s_mov_b32 s36, s20
s_mov_b32 s37, s21
s_mov_b32 s38, s34
s_add_u32 s16, s20, {N * 256}
s_addc_u32 s17, s21, 0
s_mov_b32 s18, {N * 6}
s_mov_b32 s19, 0x20000
v_min_u32 v{X}, 1, v{vLANE}
v_lshlrev_b32 v{X}, 17, v{X}
v_mov_b32 v{X + 2}, 1
s_waitcnt vmcnt(4) lgkmcnt(0)
""")
    a.ext(unp + fl_dot())
    a(f"""
ds_add_f64 v{t5}, {v(t2, 2)} offset:{POS}
""")
    a(f"""
{"s_mov_b32 s79, 0" if OPT["safe"] else ""}
{"s_setprio 0" if OPT["tp"] == 2 else ""}
K2_W3:
ds_read_b32 v{X + 1}, v{Z} offset:{FLAG + 4}
{"s_add_u32 s79, s79, 1" if OPT["safe"] else ""}
{"s_cmp_gt_u32 s79, 1000000" if OPT["safe"] else ""}
{"s_cbranch_scc1 K2_W4" if OPT["safe"] else ""}
s_waitcnt lgkmcnt(0)
v_readfirstlane_b32 s77, v{X + 1}
s_cmp_lg_u32 s77, 8
s_cbranch_scc1 K2_W3
K2_W4:
""")
    stamp(a, 14)
    c = Cnt()
    MF = [PH, PL, WA, T, T + 16, T + 32, T + 48]

    def mrd(mt):
        return [f"@m{mt} ds_read_b128 {v(MF[mt] + 4 * k, 4)}, v{fM} offset:{16 * MS * mt + 64 * k}" for k in range(4)]

    def mm(mt):
        return [mf16(H1 + 4 * mt, AD + 4 * k, MF[mt] + 4 * k, H1 + 4 * mt) for k in range(4)]

    def emit(lst):
        for x in lst:
            if x.startswith("@"):
                t, x = x[1:].split(" ", 1)
                a(c(t, x))
            elif x.startswith("?"):
                a(c.wait(x[1:]))
            else:
                a(x)

    emit(mrd(0) + mrd(1) + mrd(2))
    a(f"""
s_waitcnt vmcnt(0)
s_cmp_eq_u32 s{sMORE}, 0
s_cbranch_scc1 K2_FINAL
s_add_u32 s{sDONE}, s{sDONE}, s{sSPB}
""")
    for mt in range(3, 7):
        a.ext(x.split(" ", 1)[1] for x in mrd(mt))
    a("s_waitcnt lgkmcnt(0)")
    for mt in range(7):
        a.ext(mm(mt))
    if not OPT["lz"]:
        a(f"v_lshlrev_b32 v{t0}, 3, v0\nv_add_u32 v{t0}, {MA}, v{t0}\ns_barrier")
        for i in range(8):
            a(f"ds_write_b64 v{t0}, {v(Z, 2)} offset:{4096 * i}")
    a(f"""
K2_AGAIN:
s_waitcnt vmcnt(0) lgkmcnt(0)
s_barrier
v_lshlrev_b32 v{t0}, 3, v{vLANE}
ds_write_b64 v{t0}, {v(Z, 2)} offset:{HIST}
ds_write_b64 v{t0}, {v(Z, 2)} offset:{HIST + 64}
""")
    a.ext(cell_addr())
    a("s_waitcnt lgkmcnt(0)\ns_barrier\ns_branch K2_B0")
    a.ext(cold)

    def fin(mt, n, m1, m2, rd):
        P = H1 + 4 * mt
        o = []
        for i in range(n):
            o += m1[i:i + 1] + [f"v_exp_f32 v{EE + i}, v{P + i}"]
        o += rd
        o += [f"v_pk_fma_f32 {v(EE + i, 2)}, {v(EE + i, 2)}, s[68:69], s[68:69]" for i in range(0, n, 2)]
        o += m2[:1]
        for i in range(n):
            o += m2[i + 1:i + 2] + [f"v_rcp_f32 v{EE + i}, v{EE + i}"]
        o += [f"v_pk_fma_f32 {v(EE + i, 2)}, {v(EE + i, 2)}, {v(P + i, 2)}, {v(HRS + 4 * mt + i, 2)}" for i in range(0, n, 2)]
        o += [f"v_cvt_pk_bf16_f32 v{P + i // 2}, v{EE + i}, v{EE + i + 1}" for i in range(0, n, 2)]
        o += [f"@o ds_write_b64 v{fH}, {v(P + 2 * q, 2)} offset:{4096 * (mt + q)}" for q in range(n // 4)]
        if OPT["pco"]:
            o.append(f"@o ds_add_u32 v{X}, v{X + 2} offset:{FLAG + 48 + 2 * mt}")
        return o

    a("K2_FINAL:")
    emit(["?m0"] + mm(0) + mrd(3) + ["?m1"] + mm(1) + ["?m2"])
    emit(fin(0, 8, mm(2), ["?m3"] + mm(3), mrd(4) + mrd(5)))
    emit(["?m4"] + fin(2, 8, mm(4), ["?m5"] + mm(5), mrd(6)))
    emit(["?m6"] + fin(4, 8, mm(6), [], []))
    emit(fin(6, 4, [], [], []))
    if OPT["stamps"] == 2:
        stamp(a, 22)
    if OPT["pco"]:
        a(f"""
s_lshr_b32 s77, s{sWAVE}, 1
s_lshl_b32 s77, s77, 2
v_mov_b32 v{X}, s77
{"s_mov_b32 s79, 0" if OPT["safe"] else ""}
K2_W5:
ds_read_b32 v{X + 1}, v{X} offset:{FLAG + 48}
""")
    else:
        a("s_waitcnt lgkmcnt(0)\ns_barrier")
    for n in range(4):
        a(f"ds_read_b128 {v(T + 4 * n, 4)}, v{oL} offset:{1024 * n}")
    a(f"ds_read_b64 {v(M, 2)}, v{pB_} offset:{POS + 8}\nds_read_b32 v{M + 2}, v{pA_} offset:{PDL}")
    if OPT["pco"]:
        a(f"""
s_waitcnt lgkmcnt(6)
v_readfirstlane_b32 s77, v{X + 1}
s_cmp_eq_u32 s77, 8
s_cbranch_scc1 K2_W6
K2_W7:
ds_read_b32 v{X + 1}, v{X} offset:{FLAG + 48}
{"s_add_u32 s79, s79, 1" if OPT["safe"] else ""}
{"s_cmp_gt_u32 s79, 1000000" if OPT["safe"] else ""}
{"s_cbranch_scc1 K2_W6" if OPT["safe"] else ""}
s_waitcnt lgkmcnt(0)
v_readfirstlane_b32 s77, v{X + 1}
s_cmp_eq_u32 s77, 8
s_cbranch_scc1 K2_W5
s_branch K2_W7
K2_W6:
""")
    for n in range(4):
        a(f"s_waitcnt lgkmcnt({5 - n})")
        a(f"buffer_store_dwordx4 {v(T + 4 * n, 4)}, v{oA + n}, s[36:39], 0 offen offset:{1024 * n} {OPT['stout']}")
    a(f"""
s_waitcnt lgkmcnt(0)
v_cvt_f32_f64 v{M}, {v(M, 2)}
v_fma_f32 v{M}, v{M}, s70, v{M + 2}
v_cvt_pk_bf16_f32 v{M}, v{M}, v{M}
buffer_store_short v{M}, v{pO}, s[16:19], 0 offen {OPT['stpos']}
""")
    stamp(a, 15)
    stamps_out(a, f"s{sWAVE}")
    a("K2_END:\ns_endpgm")


def kd(name, vgpr, sgpr):
    return f""".amdhsa_kernel {name}
  .amdhsa_next_free_vgpr {vgpr}
  .amdhsa_next_free_sgpr {sgpr}
  .amdhsa_accum_offset {vgpr}
  .amdhsa_group_segment_fixed_size 0
  .amdhsa_kernarg_size 88
  .amdhsa_user_sgpr_count 2
  .amdhsa_user_sgpr_kernarg_segment_ptr 1
  .amdhsa_system_sgpr_workgroup_id_x 1
.end_amdhsa_kernel
"""


def build(**opt):
    OPT.update(opt)
    here = os.path.dirname(os.path.abspath(__file__))
    ref = open(os.path.join(here, "header.txt")).read()
    a = Asm()
    k2(a)
    if OPT["al"]:
        a.lines = align8(a.lines)
    probs = check(a.lines)
    for p in probs:
        print("HAZARD", p, file=sys.stderr)
    kn = NAME + "_kernel"
    txt = ref
    txt += f"; @launch grid=(256,1,1) block=(512,1,1) lds={K2_LDS}\n"
    txt += '.amdgcn_target "amdgcn-amd-amdhsa--gfx950"\n.text\n'
    txt += f".globl {kn}\n.type {kn},@function\n" + a.text()
    txt += '.section .rodata,"a"\n.p2align 6\n' + kd(kn, 256, 102)
    return txt, probs


if __name__ == "__main__":
    out = sys.argv[1] if len(sys.argv) > 1 else f"cdna_kernels/{NAME}.s"
    opt = {}
    for kv in sys.argv[2:]:
        k, val = kv.split("=", 1)
        opt[k] = int(val) if val.lstrip("-").isdigit() else val.replace("+", " ")
    txt, probs = build(**opt)
    open(out, "w").write(txt)
    print("wrote", out, len(txt), "bytes;", len(probs), "hazards")
```

```python
import os
import struct
import sys

sys.path.insert(0, os.path.dirname(os.path.abspath(__file__)))
from asmlib import Asm, align8, check, s, v

NAME = "standalone__cheap_equivariant_egnn__graph"
N, E = 25000, 400000
CH, BS = 1568, 98
CHB = CH * 12
WS_EPO, WS_TAB, WS_OFF, WS_F2, WS_W, WS_X = 0, 4096, 0x640000, 0x6C0000, 0x6D0000, 0x6F0000
P4 = 0x4A0000
WS_DBG = 0x1000000


def f2u(x):
    return struct.unpack("<I", struct.pack("<f", x))[0]


C_FWD = f2u(-1.4426950408889634)
C_INV = f2u(-0.6931471805599453)
C_LO = f2u(-1.4426950408889634 * 2.0 ** 24)
OOB = 0x30000

OPT = dict(stout="nt", stpos="", stamps=0, prio=0, safe=0, x_nold=0, x_nox=0, x_norow=0, sched=1, hs="sc1", f2s=5, pe=1, pp=1, f2pos=1,
           hlate=1, cpf=1, pa="BNCL", pb="TW", pk="", ps="", early=0, lz=0, eal=0, pco=1, xb=0, gpoll=0, gsplit=2, wpos=1, w1in=1, epub=0, ool=0, php="FD", yb=11, tp=2, al=0, b0l=0, ks=0, lal=0, hend=0, r1pos=0, burst=8, lut=1, lb=8, merge=1, lsp=1, nopk=0, ldp=0)
SPIN = 40000


def scan64(a, r, fill=()):
    fill = list(fill)
    for d in ("row_shr:1 row_mask:0xf", "row_shr:2 row_mask:0xf", "row_shr:4 row_mask:0xf",
              "row_shr:8 row_mask:0xf", "row_bcast:15 row_mask:0xa", "row_bcast:31 row_mask:0xc"):
        a.ext(fill.pop(0) if fill else ["s_nop 1"])
        a(f"v_add_u32_dpp {r}, {r}, {r} {d} bank_mask:0xf")


STAMP_V = 35


def stamp(a, k):
    if OPT["stamps"]:
        a("s_memrealtime s[98:99]" if k < 30 else "s_memtime s[98:99]")
        a(f"s_waitcnt lgkmcnt(0)\nv_writelane_b32 v{STAMP_V}, s98, {k}")


def stamps_out(a, wave):
    if not OPT["stamps"]:
        return
    a(f"""
s_mov_b64 exec, -1
s_lshl_b32 s3, s2, 3
s_add_u32 s3, s3, {wave}
s_lshl_b32 s3, s3, 8
s_add_u32 s3, s3, {WS_DBG}
v_and_b32 v1, 63, v0
v_lshl_add_u32 v1, v1, 2, s3
global_store_dword v1, v{STAMP_V}, s[24:25]
""")


POS, HIST, FLAG, BASE, PDL, OH, WX, SRC, AUX = 32768, 36128, 36640, 36704, 37216, 39424, 39680, 39936, 48384
MA, SB, AT, HR, MS = 56848, 87376, 105808, 135936, 288
SG, W2L, W1L = SRC, HR - 32768, MA
K2_LDS = 163840
LSH = 25
CAP4 = 8192

vLANE, vAUXA, vSRCA, vSROW, vSRD, vWAB, vMRD, vMB, vPB, vH8, vNP, vXI, vXC, vSA, vSH = range(1, 16)
t0, t1, t2, t3, t4, t5 = range(16, 22)
vPDA, vOHA, vAUX, SEL, Z, SM = 22, 23, 24, 26, 28, 30
X, XC, S, EE, M = 32, 36, 40, 48, 56
R0, R1, PH, PL, T, H1, PD, WA, AD = 64, 80, 96, 112, 128, 192, 220, 224, 240
vREM, vKA, vWE, vWXD, vP4 = 22, 23, 40, 41, 44

sWAVE, sBIN, sN0, sDONE, sSPB, sTOT, sMORE, sINIT = range(44, 52)
sTILE, sEND, sDUM, sRT, sRD, sRDP, sNB1, sNL1 = range(52, 60)
sIT, sCNT = 75, 76
sNBF, sNLF, sHEAD, sTAIL = 8, 9, 10, 11
sNONCE, sSPIN = 14, 15


def mf(d, aa, bb, c):
    cc = "0" if c is None else v(c, 16)
    return f"v_mfma_f32_32x32x16_bf16 {v(d, 16)}, {v(aa, 4)}, {v(bb, 4)}, {cc}"


def mf8(d, aa, bb, c):
    cc = "0" if c is None else v(c, 16)
    return f"v_mfma_f32_32x32x8_bf16 {v(d, 16)}, {v(aa, 2)}, {v(bb, 2)}, {cc}"


def mf16(d, aa, bb, c):
    cc = "0" if c is None else v(c, 4)
    return f"v_mfma_f32_16x16x32_bf16 {v(d, 4)}, {v(aa, 4)}, {v(bb, 4)}, {cc}"


B3 = "dst_sel:DWORD dst_unused:UNUSED_PAD src0_sel:DWORD src1_sel:BYTE_3"


def lines(txt):
    return [x.strip() for x in txt.strip().split("\n") if x.strip()]


def advance():
    return lines(f"""
s_add_u32 s77, s{sNB1}, 8
s_cmp_ge_i32 s{sNL1}, s77
s_cselect_b32 s{sRT}, s77, 0
s_cselect_b32 s77, 0, 128
s_add_u32 s{sTILE}, s{sTILE}, s77
s_mov_b32 s{sRDP}, s{sRD}
s_cmp_lt_u32 s{sTILE}, s{sEND}
s_cselect_b32 s{sRD}, s{sTILE}, s{sDUM}""")


def tile_reads():
    return [f"v_add_u32 v{t0}, s{sRD}, v{vAUXA}", f"v_add_u32 v{t1}, s{sRD}, v{vSRCA}",
            f"ds_read2st64_b32 {v(vAUX, 2)}, v{t0} offset0:{SRC // 256} offset1:{AUX // 256}"] + [
        f"ds_read_b128 {v(AD + 4 * q, 4)}, v{t1} offset:{SRC + 16 + 32 * q}" for q in range(4)]


def window():
    return lines(f"""
v_readlane_b32 s78, v{vAUX + 1}, 0
v_readlane_b32 s79, v{vAUX + 1}, 31
s_add_u32 s77, s{sNBF}, 8
s_lshr_b32 s78, s78, 24
s_lshr_b32 s79, s79, 24
s_max_u32 s78, s78, s{sRT}
s_min_u32 s{sNL1}, s79, s{sTAIL}
s_cmp_ge_i32 s{sNL1}, s77
s_cselect_b32 s{sNB1}, s78, s{sNBF}""")


def x_addr():
    return [f"v_cndmask_b32 v{vXI}, v{vAUX + 1}, v{vAUX}, s[64:65]", f"v_bfe_u32 v{vXI}, v{vXI}, v{vSH}, 20"] + (
        [f"v_min_u32 v{AD + r}, {N * 256}, v{AD + r}" for r in range(16)] if OPT["safe"] else []) + (
        [f"v_mov_b32 v{vXI}, 0xfffff"] if OPT["x_nox"] == 1 else [])


def plan_v():
    return lines(f"""
v_subrev_u32_sdwa v{t0}, s{sNB1}, v{vAUX + 1} {B3}
v_lshlrev_b32_sdwa v{vPDA}, 4, v{vAUX + 1} {B3}
v_min_u32 v{t0}, 8, v{t0}
v_lshl_add_u32 v{vOHA}, v{t0}, 4, v{vH8}
v_lshl_add_u32 v{vSA}, v{t0}, 3, v{vSROW}""")


def cost(x):
    return 8 if x.startswith(("v_exp", "v_rcp", "v_mfma")) else 4


def sched(main, side, first=0, last=None, win=40):
    last = len(main) if last is None else last
    ok, since = [], 99
    for g, x in enumerate(main):
        since = 0 if x.startswith("v_mfma") else since + cost(x)
        if first <= g < last and (since >= win or not OPT["sched"]) and not x.startswith("?"):
            ok.append(g)
    put = {}
    for n, x in enumerate(side or []):
        put.setdefault(ok[n * len(ok) // len(side)], []).append(x)
    out = []
    for g, x in enumerate(main):
        out.append(x)
        out += put.get(g, [])
    return out


def x_reads():
    return [f"ds_read_b128 {v(PD, 4)}, v{vPDA} offset:{PDL}",
            f"ds_read_b64 {v(XC + 2, 2)}, v{vOHA} offset:{OH}"]


def x_build():
    return [f"v_pk_add_f32 {v(t0, 2)}, {v(PD, 2)}, {v(X, 2)} neg_lo:[0,1] neg_hi:[0,1]",
            f"v_sub_f32 v{t2}, v{PD + 2}, v{X + 2}",
            f"v_cvt_pk_bf16_f32 v{t0}, 1.0, v{t0}",
            f"v_cvt_pk_bf16_f32 v{t1}, v{t1}, v{t2}",
            f"v_dot2_f32_bf16 v{t3}, v{t1}, v{t1}, 0",
            f"v_and_b32 v{t2}, 0xffff0000, v{t0}",
            f"v_mov_b32 v{XC + 1}, v{X + 1}",
            f"ds_write_b64 v{vSA}, {v(t0, 2)}",
            f"v_fmac_f32 v{t3}, v{t2}, v{t2}",
            f"v_cvt_pk_bf16_f32 v{t3}, v{t3}, v{t3}",
            f"v_cndmask_b32 v{XC}, v{X}, v{t3}, s[64:65]"]


def ld_x():
    return [f"buffer_load_dwordx3 {v(X, 3)}, {v(vXI, 2)}, s[60:63], 0 idxen offen {OPT['hs']}"]


def ld_r(half):
    R = R1 if half else R0
    if OPT["x_nold"]:
        return []
    return [f"buffer_load_dword v{R + r}, v{AD + r}, s[28:31], 0 offen" + (" offset:128 " if half else " ") + OPT["hs"]
            for r in range(16)]


def grp(lst):
    n = OPT["burst"]
    return ["\n".join(lst[i:i + n]) for i in range(0, len(lst), n)]


def wa_reads(nb):
    out = [f"s_mul_i32 s77, s{nb}, 264", f"v_add_u32 v{t3}, s77, v{vWAB}"]
    for t in range(4):
        out.append(f"ds_read_b64_tr_b16 {v(WA + 4 * t + 2, 2)}, v{t3} offset:{64 * t + 8 * 264}")
    return out


def m_reads(nb, cmp):
    out = [f"s_mul_i32 s77, s{nb}, {MS}", f"s_sub_u32 s78, s{sTAIL}, s{nb}",
           f"v_add_u32 v{SM}, s77, v{vMRD}", f"v_cmp_{cmp}_i32 vcc, s78, v{vNP}"]
    for t in range(4):
        out.append(f"ds_read_b64_tr_b16 {v(EE + 2 * t, 2)}, v{SM} offset:{64 * t}")
    out += [f"v_cndmask_b32 v{SM}, 0, v{SEL}, vcc", f"v_cndmask_b32 v{SM + 1}, 0, v{SEL + 1}, vcc"]
    return out


def batch(P, b, in_exp=(), in_rcp=()):
    in_exp, in_rcp = dict(in_exp), dict(in_rcp)
    o = []
    for i in range(8):
        o += in_exp.get(i, [])
        o.append(f"v_exp_f32 v{EE + i}, v{P + 8 * b + i}")
    o += in_exp.get(8, [])
    for i in range(0, 8, 2):
        if OPT["nopk"] & 1:
            o.append(f"v_add_f32 v{EE + i}, 1.0, v{EE + i}\nv_add_f32 v{EE + i + 1}, 1.0, v{EE + i + 1}")
        else:
            o.append(f"v_pk_add_f32 {v(EE + i, 2)}, {v(EE + i, 2)}, 1.0 op_sel_hi:[1,0]")
    for i in range(8):
        o += in_rcp.get(i, [])
        o.append(f"v_rcp_f32 v{EE + i}, v{EE + i}")
    o += in_rcp.get(8, [])
    for i in range(0, 8, 2):
        if OPT["nopk"] & 2:
            o.append("\n".join(f"v_mul_f32 v{EE + q}, v{P + 8 * b + q}, v{EE + q}" for q in (i, i + 1)))
        else:
            o.append(f"v_pk_mul_f32 {v(EE + i, 2)}, {v(P + 8 * b + i, 2)}, {v(EE + i, 2)}")
    for i in range(4):
        o.append(f"v_cvt_pk_bf16_f32 v{M + 4 * b + i}, v{EE + 2 * i}, v{EE + 2 * i + 1}")
    return o


def seg(t, k):
    return mf(T + 16 * t, M + 4 * k, S + 4 * k, T + 16 * t)


class Cnt:
    def __init__(self):
        self.ops = []

    def __call__(self, tag, ins):
        self.ops.append(tag)
        return ins

    def wait(self, tag):
        last = max(n for n, t in enumerate(self.ops) if t == tag)
        return f"s_waitcnt lgkmcnt({min(15, len(self.ops) - 1 - last)})"


gH, gA = XC, SM


def node_addr():
    return lines(f"""
v_and_b32 v{t0}, 15, v{vLANE}
v_lshrrev_b32 v{t1}, 4, v{vLANE}
v_xor_b32 v{t2}, v{t0}, v{t1}
v_lshlrev_b32 v{t2}, 4, v{t2}
v_lshl_add_u32 v{t2}, v{t0}, 8, v{t2}
v_add_u32 v{gH}, {HR}, v{t2}
v_xor_b32 v{gH + 1}, 64, v{gH}
v_xor_b32 v{gH + 2}, 128, v{gH}
v_xor_b32 v{gH + 3}, 192, v{gH}
s_lshl_b32 s77, s{sWAVE}, 5
s_add_u32 s77, s77, {AT + 8 * 264}
v_cmp_gt_u32 vcc, 10, v{t0}
v_mul_u32_u24 v{t2}, 264, v{t0}
v_lshl_add_u32 v{t2}, v{t1}, 3, v{t2}
v_add_u32 v{gA}, s77, v{t2}
v_mov_b32 v{t2}, {OOB}
v_cndmask_b32 v{gA + 1}, v{t2}, v{gA}, vcc""")


NBUF = [T + 32, T + 48, WA, PH]


def node_gemm(a, which, hooks, c, NBUF=NBUF, gH=gH, W=None):
    W = W or (T if which == "A" else T + 16)

    def node_rd(mt, k):
        return f"ds_read_b128 {v(NBUF[mt & 3] + 4 * k, 4)}, v{gH + k} offset:{4096 * mt}"

    def acc(mt):
        return PL + 4 * (mt & 3) if which == "A" else H1 + 4 * mt

    def post(mt):
        ac = acc(mt)
        if which == "H":
            return []
        return [f"v_mul_f32 v{ac + r}, s3, v{ac + r}" for r in range(4)] + [
            f"v_cvt_pk_bf16_f32 v{ac}, v{ac}, v{ac + 1}", f"v_cvt_pk_bf16_f32 v{ac + 1}, v{ac + 2}, v{ac + 3}",
            f"ds_write_b64 v{gA + (1 if mt == 6 else 0)}, {v(ac, 2)} offset:{16 * 264 * mt}"]

    for mt in range(4):
        for k in range(4):
            a(c(f"r{mt}", node_rd(mt, k)))
    for p_ in range(4):
        mts = [m for m in (2 * p_, 2 * p_ + 1) if m < 7]
        pend = (post(2 * p_ - 2) + post(2 * p_ - 1)) if p_ else []
        a(c.wait(f"r{mts[-1]}"))
        n = 0
        for k in range(4):
            for m in mts:
                a(mf16(acc(m), W + 4 * k, NBUF[m & 3] + 4 * k, None if k == 0 else acc(m)))
                if m + 4 < 7:
                    a(c(f"r{m + 4}", node_rd(m + 4, k)))
                n += 1
                for _ in range(3 if n > 3 else 0):
                    if pend:
                        x = pend.pop(0)
                        a(c("w", x) if x.startswith("ds_") else x)
        for x in pend:
            a(c("w", x) if x.startswith("ds_") else x)
        if p_ in hooks:
            hooks[p_]()
    if which == "H":
        a.ext(f"v_pk_mul_f32 {v(H1 + r, 2)}, {v(H1 + r, 2)}, s[68:69]" for r in range(0, 28, 2))
    a.ext(post(6))


def w_voff(dst):
    return lines(f"""
v_lshrrev_b32 v{t0}, 4, v{vLANE}
v_and_b32 v{t1}, 15, v{vLANE}
s_lshl_b32 s77, s{sWAVE}, 12
v_lshlrev_b32 v{t2}, 2, v{t0}
v_xor_b32 v{t2}, v{t2}, v{t1}
v_lshl_add_u32 v{t0}, v{t0}, 8, s77
v_lshl_add_u32 v{dst}, v{t2}, 4, v{t0}""")


def w_dma(voff, srd, soff, base):
    return [f"s_lshl_b32 s77, s{sWAVE}, 12", f"s_add_u32 m0, s77, {base}", "s_nop 0"] + [
        f"buffer_load_dwordx4 v{voff}, {s(srd, 4)}, {soff} offen offset:{1024 * n} lds" for n in range(4)]


def w_fragaddr(dst, base):
    return lines(f"""
v_bfe_u32 v{t0}, v{vLANE}, 2, 2
v_lshrrev_b32 v{t1}, 4, v{vLANE}
v_lshl_add_u32 v{t1}, v{t1}, 3, v{t0}
s_lshr_b32 s77, s{sWAVE}, 1
v_xor_b32 v{t0}, s77, v{t0}
v_lshlrev_b32 v{t1}, 8, v{t1}
v_lshl_add_u32 v{t1}, v{t0}, 6, v{t1}
v_and_b32 v{t0}, 3, v{vLANE}
s_and_b32 s77, s{sWAVE}, 1
s_lshl_b32 s77, s77, 5
s_add_u32 s77, s77, {base}
v_lshl_add_u32 v{t1}, v{t0}, 3, v{t1}
v_add_u32 v{dst}, s77, v{t1}""")


def w_frags(dst, addr, off):
    return [f"ds_read_b64_tr_b16 {v(dst + 4 * k + 2 * q, 2)}, v{addr} offset:{off + 8192 * k + 1024 * q}"
            for k in range(4) for q in range(2)]


def k2(a):
    hs = OPT["hs"]
    KEYS = 2048
    EAL = KEYS + CH * 4
    D, SR, EA, BN, RK, KY, eo, SC, CA, OF, ZQ = 64, 68, 72, 80, 84, 88, 92, 96, 108, H1, PD
    vWV, vPA, vPOLL, vF2, vP16 = 42, 43, vXI, vSA, M + 7
    HF, WF, AH, AL = R0, T, WA, AD
    bW0, bW1, bS0, bS1, q0, q1 = M, M + 1, M + 2, M + 3, M + 4, M + 5

    def consts():
        a(f"""
s_add_u32 s28, s24, {WS_TAB - 128}
s_addc_u32 s29, s25, 0
s_and_b32 s29, s29, 0xffff
s_or_b32 s29, s29, 0x40000
s_mov_b32 s30, 64
s_mov_b32 s31, 0x800000
s_mov_b32 s64, 0
s_mov_b32 s65, -1
s_mov_b32 s70, {C_INV:#x}
s_mov_b32 s71, s70
v_and_b32 v{t0}, 31, v{vLANE}
v_lshrrev_b32 v{t1}, 5, v{vLANE}
v_lshl_add_u32 v{vAUXA}, v{t0}, 2, 16
v_lshlrev_b32 v{vSRCA}, 4, v{t1}
v_lshlrev_b32 v{vH8}, 3, v{t1}
v_lshrrev_b32 v{vNP}, 2, v{t0}
v_and_b32 v{vXC}, 1, v{vNP}
v_lshlrev_b32 v{vXC}, 3, v{vXC}
v_add_u32 v{vXC}, {P4 - 8}, v{vXC}
v_mul_u32_u24 v{vXC}, v{vXC}, v{t1}
v_mul_u32_u24 v{vSH}, 7, v{t1}
s_mul_i32 s77, s{sWAVE}, 2304
s_add_u32 s77, s77, {SB}
v_mul_u32_u24 v{t2}, 72, v{t0}
v_add_u32 v{t2}, s77, v{t2}
v_mov_b32 v{t5}, {OOB}
v_cndmask_b32 v{vSROW}, v{t5}, v{t2}, s[64:65]
v_lshlrev_b32 v{vPB}, 3, v{t0}
v_bfe_u32 v{t2}, v{vLANE}, 2, 2
v_and_b32 v{t3}, 3, v{vLANE}
v_cmp_eq_u32 vcc, 0, v{t3}
v_lshlrev_b32 v{t3}, 3, v{t3}
v_and_b32 v{t4}, 16, v{vLANE}
v_lshl_add_u32 v{t3}, v{t4}, 1, v{t3}
v_lshl_add_u32 v{t4}, v{t1}, 2, v{t2}
v_mul_u32_u24 v{vSRD}, 72, v{t4}
v_add3_u32 v{vSRD}, v{vSRD}, v{t3}, s77
v_mul_u32_u24 v{vWAB}, 264, v{t4}
s_mov_b32 s77, {AT}
v_add3_u32 v{vWAB}, v{vWAB}, v{t3}, s77
v_mul_u32_u24 v{vMRD}, {MS}, v{t4}
s_mov_b32 s77, {MA}
v_add3_u32 v{vMRD}, v{vMRD}, v{t3}, s77
v_mul_u32_u24 v{t3}, {MS}, v{vNP}
v_add3_u32 v{t3}, v{t3}, v{vH8}, s77
v_cndmask_b32 v{vMB}, v{t5}, v{t3}, vcc
v_lshrrev_b32 v{t3}, 2, v{vNP}
v_cmp_eq_u32 s[66:67], v{t3}, v{t1}
v_mov_b32 v{t4}, 0x3f80
s_and_b64 vcc, vcc, s[66:67]
v_mov_b32 v{t5}, 0
v_cndmask_b32 v{t4}, 0, v{t4}, vcc
v_lshlrev_b32 v{t2}, 4, v{t2}
v_lshlrev_b64 {v(SEL, 2)}, v{t2}, {v(t4, 2)}
""")

    def cell_addr():
        return lines(f"""
s_lshr_b32 s77, s{sBIN}, 2
s_lshl_b32 s77, s77, 4
s_and_b32 s78, s{sBIN}, 1
s_lshl_b32 s78, s78, 3
s_add_u32 s77, s77, s78
s_and_b32 s78, s{sBIN}, 2
s_lshl_b32 s78, s78, 9
s_add_u32 s77, s77, s78
s_add_u32 s77, s77, {WS_OFF}
v_lshrrev_b32 v{vKA}, 1, v0
v_lshl_add_u32 v{vPOLL}, v{vKA}, 11, s77
s_mov_b32 s77, {WS_F2}
v_lshl_add_u32 v{vF2}, v{vKA}, {OPT["f2s"]}, s77
v_mul_u32_u24 v{vKA}, {CHB}, v{vKA}
v_and_b32 v{vP16}, 1, v0
v_lshlrev_b32 v{vP16}, 4, v{vP16}""")

    a(f".p2align 8\n{NAME}_kernel:")
    a(f"""
s_cmp_ge_u32 s2, 256
s_cbranch_scc1 K2_END
s_load_dwordx16 s[4:19], s[0:1], 0
""")
    ka2 = "s_load_dwordx2 s[20:21], s[0:1], 64\ns_load_dwordx2 s[24:25], s[0:1], 80"
    epo = ("; launch tag: derived from the epoch word, which advances once every workgroup has published with it\n"
           f"s_load_dword s22, s[24:25], {WS_EPO}")
    if not OPT["ks"]:
        a(ka2)
    stamp(a, 0)
    a(f"v_lshrrev_b32 v{t0}, 6, v0")
    if OPT["cpf"]:
        a(f"""
s_getpc_b64 s[74:75]
K2_PC:
s_and_b32 s3, s2, -8
v_add_lshl_u32 v{t1}, v{t0}, s3, 6
v_min_u32 v{t1}, K2_END-K2_PC, v{t1}
global_load_dword v{X + 2}, v{t1}, s[74:75]
""")
    a(f"""
v_and_b32 v{vLANE}, 63, v0
v_readfirstlane_b32 s{sWAVE}, v{t0}
s_mul_i32 s26, s2, {CH * 4}
v_lshl_add_u32 v{eo}, v0, 4, s26
s_mov_b32 s79, {SG}
v_lshl_add_u32 v{t1}, v0, 2, s79
v_mov_b64 {v(Z, 2)}, 0
ds_write_b32 v{t1}, v{Z}
v_cmp_gt_u32 vcc, {CH // 4}, v0
s_mov_b64 s[72:73], vcc
v_cmp_gt_u32 vcc, {E * 4}, v{eo}
s_and_b64 s[72:73], s[72:73], vcc
v_cndmask_b32 v{eo}, 0, v{eo}, s[72:73]
s_or_b64 exec, s[72:73], 1
v_lshlrev_b32 v{eo + 1}, 1, v{eo}
s_and_b32 s{sBIN}, s2, 7
s_lshl_b32 s{sBIN}, s{sBIN}, 5
s_lshr_b32 s3, s2, 3
s_add_u32 s{sBIN}, s{sBIN}, s3
s_mul_i32 s{sN0}, s{sBIN}, {BS}
s_mov_b32 s38, {261 * 256}
s_mov_b32 s39, 0x20000
s_waitcnt lgkmcnt(0)
global_load_dwordx4 {v(D, 4)}, v{eo}, s[12:13]
{ka2 if OPT["ks"] else epo}
{"" if OPT["b0l"] else "s_barrier"}
global_load_dwordx4 {v(SR, 4)}, v{eo}, s[10:11]
global_load_dwordx4 {v(EA, 4)}, v{eo + 1}, s[8:9]
global_load_dwordx4 {v(EA + 4, 4)}, v{eo + 1}, s[8:9] offset:16
s_mov_b64 exec, -1
s_mov_b32 s36, s14
s_mov_b32 s37, s15
s_add_u32 s77, s{sWAVE}, 257
s_cmp_lt_u32 s{sWAVE}, 4
s_cselect_b32 s77, s77, 256
s_lshl_b32 s77, s77, 8
v_lshlrev_b32 v{t0}, 2, v{vLANE}
buffer_load_dword v{vWE}, v{t0}, s[36:39], s77 offen
s_mov_b32 s60, s16
s_mov_b32 s61, s17
s_mov_b32 s16, s18
s_mov_b32 s17, s19
v_add_u32 v{vPA}, s{sN0}, v0
s_cmp_lt_u32 s{sWAVE}, 2
s_cbranch_scc1 F_A
v_lshrrev_b32 v{t1}, 1, v{t0}
v_xor_b32 v{t1}, v{t1}, v{t0}
v_and_b32 v{t1}, 8, v{t1}
v_mul_u32_u24 v{t1}, 3, v{t1}
v_xor_b32 v{t0}, v{t0}, v{t1}
global_load_dword v{vWXD}, v{t0}, s[60:61]
s_mul_i32 s77, s3, 6
s_add_u32 s77, s77, s{sWAVE}
s_sub_u32 s77, s77, 2
s_mul_i32 s77, s77, 384
v_min_u32 v{t0}, 2, v{vLANE}
v_lshl_add_u32 v{t0}, v{t0}, 7, s77
buffer_load_dword v{X}, v{t0}, s[36:39], 0 offen
s_and_b32 s77, s2, 30
s_lshl_b32 s77, s77, 10
s_lshr_b32 s78, s2, 5
s_lshl_b32 s78, s78, 5
s_add_u32 s77, s77, s78
s_and_b32 s78, s2, 1
s_lshl_b32 s78, s78, 4
s_add_u32 s77, s77, s78
s_cmp_eq_u32 s{sWAVE}, 7
s_cselect_b32 s78, 32768, 0
s_add_u32 s77, s77, s78
v_and_b32 v{t0}, 7, v{vLANE}
v_lshrrev_b32 v{t1}, 3, v{vLANE}
v_lshl_add_u32 v{t0}, v{t0}, 8, s77
v_lshl_add_u32 v{t0}, v{t1}, 1, v{t0}
global_load_short_d16_hi v{vP4}, v{t0}, s[16:17]
s_branch F_B
F_A:
s_mov_b32 s60, s6
s_mov_b32 s61, s7
s_mov_b32 s62, {N * 6}
s_mov_b32 s63, 0x20000
v_mul_u32_u24 v{t1}, 6, v{vPA}
buffer_load_short_d16_hi v{vP4}, v{t1}, s[60:63], 0 offen
buffer_load_short_d16_hi v{vP4 + 1}, v{t1}, s[60:63], 0 offen offset:2
buffer_load_short_d16_hi v{vP4 + 2}, v{t1}, s[60:63], 0 offen offset:4
F_B:
s_add_u32 s77, s{sN0}, {BS}
s_lshl_b32 s58, s77, 8
s_min_u32 s34, s58, {N * 256}
s_mov_b32 s32, s4
s_mov_b32 s33, s5
s_mov_b32 s35, 0x20000
s_lshl_b32 s77, s{sWAVE}, 12
s_add_u32 m0, s77, {HR}
s_lshl_b32 s78, s{sN0}, 8
s_add_u32 s78, s77, s78
v_lshrrev_b32 v{t0}, 4, v{vLANE}
v_and_b32 v{t1}, 15, v{vLANE}
v_xor_b32 v{t1}, v{t0}, v{t1}
v_lshlrev_b32 v{t1}, 4, v{t1}
v_lshl_add_u32 v{t1}, v{t0}, 8, v{t1}
v_add_u32 v{PL}, s78, v{t1}
v_xor_b32 v{PL + 1}, 64, v{PL}
v_xor_b32 v{PL + 2}, 128, v{PL}
v_xor_b32 v{PL + 3}, 192, v{PL}
""")
    hdma = [f"buffer_load_dwordx4 v{PL + n}, s[32:35], 0 offen offset:{1024 * n} lds" for n in range(4)]
    if not OPT["hlate"]:
        a.ext(hdma)
    a(f"""
{"s_waitcnt lgkmcnt(0)" if OPT["ks"] else ""}
{epo if OPT["ks"] else ""}
v_lshlrev_b32 v{CA}, 4, v0
v_add_u32 v{CA + 1}, {CH * 4 if OPT["eal"] else 8192}, v{CA}
v_add_u32 v{CA + 2}, 8192, v{CA + 1}
v_add_u32 v{CA + 3}, s79, v{CA}
s_mov_b32 s68, {C_FWD:#x}
s_mov_b32 s69, s68
s_mov_b32 s18, {C_LO if OPT["lut"] else C_FWD:#x}
s_mov_b32 s19, s18
v_lshlrev_b32 v{t1}, 3, v0
ds_write_b64 v{t1}, {v(Z, 2)} offset:{POS}
""")
    a.ext(w_voff(vWV))

    def blk_B():
        a(f"""
s_add_u32 s56, s24, {WS_TAB}
s_addc_u32 s57, s25, 0
s_mov_b32 s59, 0x20000
v_bfe_u32 v{t0}, v{vLANE}, 2, 2
v_and_b32 v{t3}, 3, v{vLANE}
v_lshrrev_b32 v{t1}, 5, v{vLANE}
v_lshl_add_u32 v{t2}, v{t1}, 3, v{t0}
v_lshlrev_b32 v{t2}, 8, v{t2}
v_lshl_add_u32 v{t2}, v{t3}, 3, v{t2}
v_and_b32 v{t3}, 16, v{vLANE}
v_lshl_add_u32 v{t2}, v{t3}, 1, v{t2}
s_and_b32 s66, s{sWAVE}, 1
s_lshr_b32 s27, s{sWAVE}, 1
s_lshl_b32 s77, s66, 1
v_xor_b32 v{t3}, s77, v{t0}
v_lshl_add_u32 v{bW0}, v{t3}, 6, v{t2}
v_add_u32 v{bW0}, {W2L}, v{bW0}
v_xor_b32 v{bW1}, 64, v{bW0}
v_and_b32 v{q0}, 31, v{vLANE}
v_and_b32 v{q1}, 15, v{vLANE}
v_xor_b32 v{q1}, v{t1}, v{q1}
v_lshlrev_b32 v{q1}, 4, v{q1}
v_lshl_add_u32 v{q1}, v{q0}, 8, v{q1}
s_lshl_b32 s78, s27, 13
s_add_u32 s77, s78, {HR}
v_add_u32 v{EE}, s77, v{q1}
""")
        for k in range(1, 8):
            a(f"v_xor_b32 v{EE + k}, {32 * k}, v{EE}")
        a(f"""
s_lshl_b32 s77, s{sN0}, 8
s_add_u32 s78, s78, s77
s_lshl_b32 s66, s66, 7
s_add_u32 s78, s78, s66
v_lshlrev_b32 v{bS0}, 10, v{t1}
v_lshl_add_u32 v{bS0}, v{q0}, 2, v{bS0}
v_add_u32 v{bS0}, s78, v{bS0}
v_add_u32 v{bS1}, 4096, v{bS0}
""")
        a.ext(w_fragaddr(q0, W1L))

    def blk_Z():
        a(f"v_mov_b64 {v(ZQ, 2)}, 0\nv_mov_b64 {v(ZQ + 2, 2)}, 0\nv_add_u32 v{t0}, {AT - 49152}, v{CA}")
        for i in range(6):
            a(f"ds_write_b128 v{t0}, {v(ZQ, 4)} offset:{8192 * i}")

    def blk_T():
        if not OPT["lut"]:
            return
        G, U, R1 = T, T + 8, T + 16
        a(f"s_mov_b32 s77, {(-65537 * 8) & 0xffffffff:#x}\nv_mul_lo_u32 v{G}, v0, s77")
        for r in range(3):
            for q in range(4):
                if r or q:
                    d = G + 4 * (r & 1) + q
                    src = G + 4 * ((r - 1) & 1) if q == 0 else G + 4 * (r & 1)
                    a(f"v_subrev_u32 v{d}, {0x10001000 if q == 0 else 131074 * q:#x}, v{src}")
            a(f"ds_write_b128 v{CA}, {v(G + 4 * (r & 1), 4)} offset:{8192 * r}")
        a(f"v_lshlrev_b32 v{t0}, 19, v0\ns_mov_b32 s66, {f2u(-2.0 ** (1 - LSH)):#x}\ns_mov_b32 s67, s66")
        for j in range(8):
            a(f"v_sub_u32 v{U + j}, {(20480 - j) << 16:#x}, v{t0}")
        for j in range(0, 8, 2):
            a(f"v_pk_mul_f32 {v(R1 + j, 2)}, {v(U + j, 2)}, s[66:67]")
        for j in range(8):
            a(f"v_exp_f32 v{R1 + j}, v{R1 + j}")
        for j in range(0, 8, 2):
            a(f"v_pk_add_f32 {v(R1 + 8 + j, 2)}, {v(R1 + j, 2)}, 1.0 op_sel_hi:[1,0]")
        for j in range(8):
            a(f"v_rcp_f32 v{R1 + 8 + j}, v{R1 + 8 + j}")
        for j in range(0, 8, 2):
            a(f"v_pk_add_f32 {v(R1 + j, 2)}, {v(R1 + j, 2)}, -1.0 op_sel_hi:[1,0]")
        for j in range(0, 8, 2):
            a(f"v_pk_mul_f32 {v(R1 + j, 2)}, {v(R1 + j, 2)}, {v(R1 + 8 + j, 2)}")
        for j in range(0, 8, 2):
            a(f"v_pk_mul_f32 {v(R1 + j, 2)}, {v(R1 + j, 2)}, {v(U + j, 2)}")
        for j in range(4):
            a(f"v_cvt_pk_bf16_f32 v{U + j}, v{R1 + 2 * j}, v{R1 + 2 * j + 1}")
        a(f"ds_write_b128 v{CA}, {v(U, 4)} offset:24576")

    poll = f"global_load_dwordx2 {v(vAUX, 2)}, v{vPOLL}, s[24:25] sc1"
    blocks = dict(B=blk_B, Z=blk_Z, C=consts, T=blk_T, N=lambda: a.ext(node_addr()), L=lambda: a.ext(cell_addr()),
                  P=lambda: a(poll))
    assert sorted(OPT["pa"] + OPT["pb"] + OPT["pk"] + OPT["ps"]) == sorted("BCNLTW") and set(OPT["pk"]) <= set("C")
    for ch in OPT["pa"]:
        blocks[ch]()
    a(f"""
s_add_u32 s40, s24, {WS_X}
s_addc_u32 s41, s25, 0
s_mov_b32 s42, {P4 + N * 16}
s_mov_b32 s43, 0x20000
s_mul_i32 s26, s2, {CHB}
s_add_u32 s52, s40, s26
s_addc_u32 s53, s41, 0
s_movk_i32 s54, {CHB}
s_mov_b32 s55, 0x20000
s_mov_b32 s{sDONE}, 0
s_movk_i32 s{sSPB}, 128
s_mov_b32 s{sINIT}, 0
s_mov_b32 s{sSPIN}, 0
s_mov_b32 s3, 32768
v_mov_b32 v{vP4 + 3}, 0
v_lshlrev_b32 v{vPA}, 4, v{vPA}
v_add_u32 v{vPA}, {P4}, v{vPA}
v_cmp_gt_u32 vcc, {BS}, v0
v_mov_b32 v{t0}, {0x7f000000}
s_movk_i32 s26, {-BS}
v_cndmask_b32 v{vPA}, v{t0}, v{vPA}, vcc
v_mov_b32 v{t5}, 4
v_lshl_add_u32 v{t4}, v{vLANE}, 4, s79
{"s_barrier" if OPT["b0l"] else ""}
s_mov_b64 exec, s[72:73]
s_waitcnt vmcnt({7 if OPT["hlate"] else 11})
""")
    stamp(a, 1)
    for i in range(4):
        a(f"v_mul_u32_u24 v{BN + i}, 2675, v{D + i}")
    for i in range(4):
        a(f"v_lshrrev_b32 v{KY + i}, 18, v{BN + i}")
    for i in range(4):
        a(f"v_lshl_add_u32 v{BN + i}, v{KY + i}, 2, s79")
    for i in range(4):
        a(f"ds_add_rtn_u32 v{RK + i}, v{BN + i}, v{t5}")
    for i in range(4):
        a(f"v_mad_i32_i24 v{KY + i}, v{KY + i}, s26, v{D + i}")
    for i in range(4):
        a(f"v_lshlrev_b32 v{KY + i}, 24, v{KY + i}")
    a("s_mov_b64 exec, -1")
    if OPT["hlate"]:
        a.ext(hdma)
    a(f"""
s_waitcnt lgkmcnt(0)
s_barrier
ds_read_b128 {v(SC, 4)}, v{t4}
s_waitcnt lgkmcnt(0)
v_add_u32 v{SC + 5}, v{SC}, v{SC + 1}
v_add_u32 v{SC + 6}, v{SC + 5}, v{SC + 2}
v_add_u32 v{SC + 7}, v{SC + 6}, v{SC + 3}
v_mov_b32 v{SC + 8}, v{SC + 7}
""")
    scan64(a, f"v{SC + 8}")
    a(f"""
v_sub_u32 v{SC + 4}, v{SC + 8}, v{SC + 7}
v_add_u32 v{SC + 7}, v{SC + 4}, v{SC + 6}
v_add_u32 v{SC + 6}, v{SC + 4}, v{SC + 5}
v_add_u32 v{SC + 5}, v{SC + 4}, v{SC}
ds_write_b128 v{t4}, {v(SC + 4, 4)} offset:1024
s_mov_b64 exec, s[72:73]
""")
    for i in range(4):
        a(f"ds_read_b32 v{BN + i}, v{BN + i} offset:1024")
    a("s_waitcnt vmcnt(10)")
    for i in range(4):
        a(f"v_lshl_or_b32 v{KY + i}, v{SR + i}, 8, v{KY + i}")
    a("s_waitcnt lgkmcnt(0)")
    for i in range(4):
        a(f"v_add_u32 v{RK + i}, v{BN + i}, v{RK + i}")
    for i in range(4):
        a(f"v_add_u32 v{BN + i}, s79, v{RK + i}")
    for i in range(4):
        a(f"ds_write_b32 v{BN + i}, v{KY + i} offset:{KEYS}")
        a(f"v_add_u32 v{RK + i}, v{BN + i}, v{RK + i}")
    a("s_waitcnt vmcnt(8)")
    stamp(a, 2)
    for i in range(4):
        a(f"ds_write_b64 v{RK + i}, {v(EA + 2 * i, 2)} offset:{EAL}")
    a("s_mov_b64 exec, -1")
    for i in range(4):
        a(f"v_lshl_or_b32 v{OF + 2 * i}, v{SC + i}, 16, v{SC + 4 + i}")
    blocks["W"] = lambda: a.ext(w_dma(vWV, 36, "s3", W2L))
    assert ("W" in OPT["ps"]) == bool(OPT["early"])
    for ch in OPT["ps"]:
        blocks[ch]()
    a(f"""
s_waitcnt lgkmcnt(0)
s_barrier
""")
    if OPT["eal"]:
        a(f"""
ds_read_b128 {v(PH, 4)}, v{CA + 3} offset:{KEYS}
ds_read_b128 {v(PH + 4, 4)}, v{CA + 3} offset:{EAL}
ds_read_b128 {v(PH + 8, 4)}, v{CA + 3} offset:{EAL + 8192}
s_movk_i32 s54, {CH * 4}
s_waitcnt lgkmcnt(2)
buffer_store_dwordx4 {v(PH, 4)}, v{CA}, s[52:55], 0 offen sc1
s_waitcnt vmcnt(5)
""")
    else:
        a(f"""
ds_read_b128 {v(PH, 4)}, v{CA + 3} offset:{KEYS}
ds_read_b128 {v(PH + 4, 4)}, v{CA + 3} offset:{KEYS + 8192}
ds_read_b128 {v(PH + 8, 4)}, v{CA + 3} offset:{KEYS + 16384}
s_waitcnt lgkmcnt(2)
buffer_store_dwordx4 {v(PH, 4)}, v{CA}, s[52:55], 0 offen sc1
s_waitcnt lgkmcnt(1)
buffer_store_dwordx4 {v(PH + 4, 4)}, v{CA + 1}, s[52:55], 0 offen sc1
s_waitcnt lgkmcnt(0)
buffer_store_dwordx4 {v(PH + 8, 4)}, v{CA + 2}, s[52:55], 0 offen sc1
s_waitcnt vmcnt({11 if OPT['early'] else 7})
""")
    a(f"""
s_cmp_ge_u32 s{sWAVE}, 2
s_cbranch_scc1 F_C
buffer_store_dwordx4 {v(vP4, 4)}, v{vPA}, s[40:43], 0 offen sc1
ds_write_b128 v{CA}, {v(vP4, 4)} offset:{PDL}
s_branch F_D
F_C:
s_cmp_eq_u32 s{sWAVE}, 7
s_cselect_b32 s77, s2, 0
s_bitcmp1_b32 s77, 3
s_cselect_b32 s77, {f2u(2.0 ** -LSH) if OPT["lut"] else f2u(1.0):#x}, 1.0
v_mul_f32 v{vP4}, s77, v{vP4}
s_add_u32 s60, s24, {WS_W}
s_addc_u32 s61, s25, 0
s_mov_b32 s62, {2 * 32768}
s_mov_b32 s63, 0x20000
s_sub_u32 s77, s{sWAVE}, 6
s_min_u32 s77, s77, 2
s_lshl_b32 s77, s77, 8
s_add_u32 s77, s77, s2
s_lshl_b32 s77, s77, 7
v_lshl_add_u32 v{t0}, v{vLANE}, 1, s77
buffer_store_short_d16_hi v{vP4}, v{t0}, s[60:63], 0 offen sc1
s_cmp_lg_u32 s{sWAVE}, 2
s_cbranch_scc1 F_D
v_lshrrev_b32 v{t0}, 2, v{vLANE}
v_and_b32 v{t2}, 3, v{vLANE}
v_lshrrev_b32 v{t3}, 1, v{t0}
v_lshlrev_b32 v{t0}, 4, v{t0}
v_mov_b32 v{t4}, 0x3f80
v_cmp_eq_u32 vcc, v{t2}, v{t3}
v_lshlrev_b32 v{t4}, v{t0}, v{t4}
v_bfe_u32 v{t2}, v{vLANE}, 4, 1
v_cndmask_b32 v{t4}, 0, v{t4}, vcc
v_mul_i32_i24 v{t2}, {-LSH if OPT["lut"] else 0}, v{t2}
v_lshlrev_b32 v{t0}, 16, v{vWXD}
v_and_b32 v{t1}, 0xffff0000, v{vWXD}
v_ldexp_f32 v{t0}, v{t0}, v{t2}
v_ldexp_f32 v{t1}, v{t1}, v{t2}
v_cvt_pk_bf16_f32 v{vWXD}, v{t0}, v{t1}
v_lshlrev_b32 v{t1}, 2, v{vLANE}
ds_write2st64_b32 v{t1}, v{t4}, v{vWXD} offset0:{OH // 256} offset1:{WX // 256}
F_D:
""")
    stamp(a, 3)
    a(f"s_mul_i32 s{sNONCE}, s22, 0x2c9277b5\ns_add_u32 s{sNONCE}, s{sNONCE}, 0xac564b05")
    w1d = w_dma(vWV, 36, "0", W1L)
    wl = w_dma(vWV, 36, "s3", W2L) + ([] if OPT["w1in"] else w1d)
    nw1 = 0 if OPT["w1in"] else 4
    a(f"""
s_mov_b32 s66, 0xffff0000
s_mov_b32 s67, s66
s_cmp_lt_u32 s{sWAVE}, 6
s_cselect_b32 s77, s68, 0
s_cselect_b32 s78, s18, 0
v_mov_b32 v{t2}, s77
v_mov_b32 v{t3}, s78
v_cndmask_b32 v{t2}, v{t2}, v{t3}, s[66:67]
s_cmp_eq_u32 s{sWAVE}, 5
s_cselect_b32 s26, -1.0, 0
s_mul_i32 s78, s{sWAVE}, 264
s_add_u32 s78, s78, {AT}
v_lshlrev_b32 v{t0}, 16, v{vWE}
v_and_b32 v{t1}, 0xffff0000, v{vWE}
v_mul_f32 v{t0}, v{t2}, v{t0}
v_mul_f32 v{t1}, v{t2}, v{t1}
v_cvt_pk_bf16_f32 v{t2}, v{t0}, v{t1}
v_lshlrev_b32 v{t3}, 16, v{t2}
v_and_b32 v{t2}, 0xffff0000, v{t2}
v_fmac_f32 v{t0}, s26, v{t3}
v_fmac_f32 v{t1}, s26, v{t2}
v_cvt_pk_bf16_f32 v{vWE}, v{t0}, v{t1}
v_lshl_add_u32 v{vPA}, v{vLANE}, 2, s78
s_mov_b32 s26, 0x07060302
""")
    for ch in OPT["pb"]:
        blocks[ch]()
    a(f"s_waitcnt vmcnt({4 if OPT['early'] else 0}) lgkmcnt(0)\ns_barrier")
    stamp(a, 17)

    def pub1():
        stamp(a, 4)
        a(f"""
s_cmp_lg_u32 s{sWAVE}, 7
s_cbranch_scc1 F_4
s_lshl_b32 s77, s2, 11
s_add_u32 s77, s77, {WS_OFF}
v_lshl_add_u32 v{t0}, v{vLANE}, 4, s77
""")
        for i in range(4):
            a(f"v_mov_b32 v{OF + 2 * i + 1}, s{sNONCE}")
        a(f"""
global_store_dwordx4 v{t0}, {v(OF, 4)}, s[24:25] sc1
global_store_dwordx4 v{t0}, {v(OF + 4, 4)}, s[24:25] offset:1024 sc1
F_4:
""")

    if not OPT["early"]:
        pub1()

    def brd(k):
        o = [f"ds_read_b128 {v(HF + 4 * k, 4)}, v{EE + k}"]
        for j, ad in enumerate((f"v{bW0}", f"v{bW1}")):
            o.append(f"ds_read_b64_tr_b16 {v(WF + 8 * k + 4 * j, 2)}, {ad} offset:{4096 * k}")
            o.append(f"ds_read_b64_tr_b16 {v(WF + 8 * k + 4 * j + 2, 2)}, {ad} offset:{4096 * k + 1024}")
        return o

    for k in range(3):
        a.ext(brd(k))
    eas = [f"s_movk_i32 s54, {CHB}"] + [
        f"buffer_store_dwordx4 {v(PH + 4 + 4 * n, 4)}, v{CA + 1 + n}, s[52:55], 0 offen sc1" for n in range(2)]
    if OPT["eal"] == 1:
        a.ext(eas)
    for k in range(8):
        a(f"s_waitcnt lgkmcnt({5 * min(2, 7 - k)})")
        for j, acc in enumerate((AH, AL)):
            a(mf(acc, HF + 4 * k, WF + 8 * k + 4 * j, None if k == 0 else acc))
        if k + 3 < 8:
            a.ext(brd(k + 3))
        if OPT["w1in"] and k < 4:
            a.ext(w1d[:4] if k == 0 else [w1d[3 + k]])
        if k == 4 and OPT["eal"] == 2:
            a.ext(eas)
        if k == OPT["early"] and k:
            a("s_waitcnt vmcnt(4)\ns_barrier")
            pub1()
    a("s_nop 10")
    stamp(a, 5)
    a("s_cmp_eq_u32 s27, 3")
    for r in range(0, 16, 2):
        if r == 2:
            a("s_cbranch_scc1 F_5")
        a(f"v_pk_mul_f32 {v(AL + r, 2)}, {v(AL + r, 2)}, s[18:19]")
        a(f"v_pk_mul_f32 {v(AH + r, 2)}, {v(AH + r, 2)}, s[68:69]")
        for q in (r, r + 1):
            a(f"v_add_u32 v{AL + q}, 0x4000, v{AL + q}")
        for q in (r, r + 1):
            a(f"v_perm_b32 v{AH + q}, v{AH + q}, v{AL + q}, s26")
        for q in (r, r + 1):
            a(f"buffer_store_dword v{AH + q}, v{bS1 if q >= 8 else bS0}, s[56:59], 0 offen "
              f"offset:{(8 * ((q >> 2) & 1) + (q & 3)) * 256} sc1")
    ne = 2 if OPT["eal"] == 2 else 0
    a(f"s_waitcnt vmcnt({16 + ne})\ns_branch F_6\nF_5:")
    if OPT["early"]:
        a("s_waitcnt vmcnt(4)\ns_cmp_eq_u32 s44, 7\ns_cbranch_scc1 F_6")
    a(f"s_waitcnt vmcnt({2 + ne})\nF_6:\ns_barrier")
    stamp(a, 6)
    cg = Cnt()
    for x in w_frags(T, q0, 0):
        a(cg("f", x))
    a(cg("w", f"ds_write_b32 v{vPA}, v{vWE}"))
    a(f"s_bitcmp1_b32 s{sWAVE}, 1\ns_cselect_b32 s3, s18, s68")

    def keys():
        if OPT["gpoll"] != OPT["gsplit"]:
            a("s_branch K2_B1")
        a(f"""
K2_B0:
{poll}
K2_B1:
s_add_u32 s{sSPIN}, s{sSPIN}, 1
s_waitcnt vmcnt(0)
v_cmp_ne_u32 vcc, s{sNONCE}, v{vAUX + 1}
s_cmp_gt_u32 s{sSPIN}, {SPIN}
s_cbranch_scc1 K2_B2
s_mov_b64 exec, vcc
s_cbranch_execnz K2_B0
K2_B2:
s_mov_b64 exec, -1
""")
        stamp(a, 7)
        a(f"""
v_and_b32 v{t0}, 0xffff, v{vAUX}
v_lshrrev_b32 v{vREM}, 16, v{vAUX}
v_add3_u32 v{t0}, v{t0}, v{vP16}, s{sDONE}
v_subrev_u32 v{vREM}, s{sDONE}, v{vREM}
v_add_u32 v{vKA}, v{vKA}, v{t0}
global_load_dwordx4 {v(R0, 4)}, v{vKA}, s[40:41] {hs}
v_cmp_lt_i32 s[26:27], s{sSPB}, v{vREM}
v_min_i32 v{vREM}, s{sSPB}, v{vREM}
v_sub_u32 v{vREM}, v{vREM}, v{vP16}
v_cmp_lt_i32 vcc, 32, v{vREM}
s_mov_b64 exec, vcc
s_cbranch_execz K2_B3
global_load_dwordx4 {v(R0 + 4, 4)}, v{vKA}, s[40:41] offset:32 {hs}
v_cmp_lt_i32 vcc, 64, v{vREM}
s_mov_b64 exec, vcc
s_cbranch_execz K2_B3
global_load_dwordx4 {v(R0 + 8, 4)}, v{vKA}, s[40:41] offset:64 {hs}
global_load_dwordx4 {v(R0 + 12, 4)}, v{vKA}, s[40:41] offset:96 {hs}
K2_B3:
s_mov_b64 exec, -1
s_movk_i32 s77, {CH * 4}
v_add3_u32 v{vKA}, v{vKA}, v{t0}, s77
s_cmp_lg_u32 s{sINIT}, 0
s_cbranch_scc1 K2_B4
s_mov_b32 s{sINIT}, 1
s_barrier
s_cmp_lg_u32 s{sWAVE}, 7
s_cbranch_scc1 F_7
s_lshl_b32 s77, s2, {OPT["f2s"]}
s_add_u32 s77, s77, {WS_F2}
v_mov_b32 v{t0}, s77
v_mov_b32 v{t1}, s{sNONCE}
s_mov_b64 exec, 1
global_store_dword v{t0}, v{t1}, s[24:25] sc1
s_cmp_lg_u32 s2, 255
s_cbranch_scc1 F_8
global_store_dword v{Z}, v{t1}, s[24:25] offset:{WS_EPO} sc1
F_8:
s_mov_b64 exec, -1
F_7:
""")
        stamp(a, 8)

    hooks = {OPT["gsplit"]: keys}
    if OPT["gpoll"] != OPT["gsplit"]:
        hooks[OPT["gpoll"]] = lambda: a(poll)
    if -1 in hooks:
        hooks[-1]()
    node_gemm(a, "A", hooks, cg)
    if not OPT["lz"]:
        a(f"v_lshlrev_b32 v{CA}, 4, v0")
        blk_Z()
    late = lines(f"""
s_lshl_b32 s77, s{sWAVE}, 12
s_add_u32 s77, s77, {WS_W}
v_lshl_add_u32 v{t4}, v{vLANE}, 4, s77""")
    late += [f"global_load_dwordx4 {v(T + 16 + 4 * k, 4)}, v{t4}, s[24:25] offset:{1024 * k} {hs}" for k in range(4)]
    if OPT["hend"]:
        late = []
    if OPT["pe"] == 1 and not OPT["eal"]:
        late.append(f"global_load_dword v{X}, v{vKA}, s[40:41] {hs}")
    if OPT["pe"] == 2:
        late += lines(f"""
v_and_b32 v{t4}, 96, v{vKA}
v_cmp_eq_u32 vcc, 0, v{t4}
s_or_b64 exec, vcc, 1
global_load_dword v{X}, v{vKA}, s[40:41] {hs}
s_mov_b64 exec, -1""")
    if OPT["pp"]:
        late += lines(f"""
s_lshr_b32 s77, s2, 3
s_lshl_b32 s77, s77, 3
s_add_u32 s77, s77, s{sWAVE}
s_mul_i32 s77, s77, {13 * 128}
s_add_u32 s77, s77, {P4}
v_lshl_add_u32 v{t4}, v{vLANE}, 7, s77
s_mov_b64 exec, 0x1fff
global_load_dword v{X}, v{t4}, s[40:41] {hs}
s_mov_b64 exec, -1""")
    a.ext(late)
    for ch in OPT["pk"]:
        blocks[ch]()
    nlate = sum(x.startswith(("global_", "buffer_")) for x in late)
    a(f"s_waitcnt vmcnt({nlate})\ns_branch K2_B5\nK2_B4:\ns_waitcnt vmcnt(0)\nK2_B5:")
    stamp(a, 9)
    f2 = f"global_load_dword v{vAUX}, v{vF2}, s[24:25] sc1"
    a(f"""
v_mov_b32 v{t1}, 32
v_lshrrev_b32 v{vKA}, 3, v{vKA}
s_cmp_eq_u64 s[26:27], 0
s_cbranch_scc1 K2_B6
ds_write_b32 v{Z}, v{t1} offset:{FLAG}
K2_B6:
""")
    for k in range(4):
        for i in range(4):
            j = 4 * k + i
            a(f"v_cmpx_lt_i32 vcc, {32 * k + 4 * i}, v{vREM}")
            if j in (6, 8, 12):
                a("s_cbranch_execz K2_B7")
            if i == 0:
                for q in range(4):
                    a(f"v_lshlrev_b32_sdwa v{PH + j + q}, 2, v{R0 + j + q} {B3}")
            a(f"ds_add_rtn_u32 v{R1 + j}, v{PH + j}, v{t1} offset:{HIST}")
    a(f"""
K2_B7:
s_mov_b64 exec, -1
v_lshlrev_b32 v{t0}, 3, v{vLANE}
s_mov_b32 s78, 0xff000000
""")

    def aux(j):
        k, i = j >> 2, j & 3
        return [f"v_add_u32 v{PL + j}, {8 * k + i}, v{vKA}", f"v_and_or_b32 v{PL + j}, v{R0 + j}, s78, v{PL + j}"]

    a(f"s_mov_b32 s60, s40\ns_or_b32 s61, s41, 0x80000\ns_mov_b32 s62, {P4 // 8}\ns_mov_b32 s63, 0x20000")
    if OPT["f2pos"] == 0:
        a(f2)
    a(f"""
s_waitcnt lgkmcnt(0)
s_barrier
ds_read_b64 {v(t2, 2)}, v{t0} offset:{HIST}
ds_read_b32 v{t1}, v{Z} offset:{FLAG}
""")
    if OPT["stamps"] == 2:
        stamp(a, 24)
    if OPT["f2pos"] == 1:
        a(f2)
    for j in range(2):
        a.ext(aux(j))
    a(f"""
s_waitcnt lgkmcnt(0)
v_add_u32 v{t3}, v{t2}, v{t3}
v_readfirstlane_b32 s{sMORE}, v{t1}
v_mov_b32 v{t5}, v{t3}
v_subrev_u32 v{t3}, 128, v{t3}
""")
    scan64(a, f"v{t5}", [aux(j) for j in range(2, 8)])
    a(f"""
v_sub_u32 v{EE}, v{t5}, v{t3}
v_readlane_b32 s{sTOT}, v{t5}, 63
v_add_u32 v{EE + 1}, v{EE}, v{t2}
ds_write_b64 v{t0}, {v(EE, 2)} offset:{BASE}
""")
    for j in range(8):
        if j % 4 == 0:
            a(f"v_cmpx_lt_i32 vcc, {8 * j}, v{vREM}")
        a(f"ds_read_b32 v{PH + j}, v{PH + j} offset:{BASE}")
    a("s_mov_b64 exec, -1")
    if OPT["f2pos"] == 2:
        a(f2)
    nq = 0
    if OPT["eal"] and OPT["pe"]:
        nq = 1
        a(f"""
v_lshlrev_b32 v{t0}, 3, v{vKA}
s_waitcnt vmcnt(0)
v_cmp_eq_u32 vcc, s{sNONCE}, v{vAUX}
v_mov_b32 v{t1}, {0x7f000000}
s_not_b64 exec, vcc
s_cbranch_execz K2_B75
{f2}
K2_B75:
s_mov_b64 exec, -1
v_cndmask_b32 v{t0}, v{t1}, v{t0}, vcc
buffer_load_dword v{X}, v{t0}, s[40:43], 0 offen {hs}
""")
    a(f"""
s_lshr_b32 s{sTOT}, s{sTOT}, 3
s_cmp_gt_u32 s{sTOT}, {CAP4}
s_cbranch_scc0 K2_B8
s_mov_b32 s{sSPB}, 32
s_branch K2_AGAIN
K2_B8:
s_add_u32 s77, s{sTOT}, 127
s_lshr_b32 s77, s77, 7
s_lshl_b32 s{sDUM}, s77, 7
s_lshr_b32 s3, s77, 3
s_and_b32 s77, s77, 7
s_mul_i32 s{sTILE}, s3, s{sWAVE}
s_min_u32 s79, s77, s{sWAVE}
s_add_u32 s{sTILE}, s{sTILE}, s79
s_cmp_lt_u32 s{sWAVE}, s77
s_addc_u32 s{sCNT}, s3, 0
s_and_b32 s79, s{sWAVE}, 3
s_cmp_lt_u32 s79, s77
s_addc_u32 s79, s3, 0
s_cmp_eq_u32 s79, s{sCNT}
s_cselect_b32 s{sHEAD}, 4, 8
s_add_u32 s{sEND}, s{sTILE}, s{sCNT}
s_lshl_b32 s{sEND}, s{sEND}, 7
s_lshl_b32 s{sTILE}, s{sTILE}, 7
s_min_u32 s{sRD}, s{sTILE}, s{sDUM}
s_mov_b32 s{sNBF}, -8
s_mov_b32 s{sRT}, 0
s_min_u32 s77, s{sEND}, s{sTOT}
s_add_u32 s77, s77, {AUX + 12}
v_mov_b32 v{t4}, s77
s_mov_b32 s77, {0x3ff7f if OPT['x_norow'] else 0xffff7f:#x}
s_cmp_lg_u32 s{sWAVE}, 7
s_cbranch_scc1 K2_B9
s_add_u32 s79, s{sTOT}, 16
v_lshl_add_u32 v{t0}, v{vLANE}, 2, s79
v_and_b32 v{t1}, 16, v{t0}
v_lshlrev_b32 v{t1}, 3, v{t1}
s_lshl_b32 s79, s{sN0}, 8
v_or_b32 v{t1}, s79, v{t1}
v_mov_b32 v{t2}, 0x7f0fffff
ds_write2st64_b32 v{t0}, v{t1}, v{t2} offset0:{SRC // 256} offset1:{AUX // 256}
K2_B9:
s_waitcnt lgkmcnt(0)
""")

    def place(js):
        o = [f"v_add_u32 v{PH + j}, v{PH + j}, v{R1 + j}" for j in js]
        o += [f"v_bfi_b32 v{R0 + j}, s77, v{R0 + j}, v{PH + j}" for j in js]
        return o + [f"v_lshrrev_b32 v{PH + j}, 3, v{PH + j}" for j in js]

    for j in range(16):
        if j == 0:
            a.ext(place(range(0, 6)))
        a(f"v_cmpx_lt_i32 vcc, {32 * (j >> 2) + 4 * (j & 3)}, v{vREM}")
        if j in (6, 8, 12):
            a("s_cbranch_execz K2_B10")
        if j == 6:
            a.ext(place((6, 7)))
        if j in (8, 12):
            for q in range(4):
                a(f"ds_read_b32 v{PH + j + q}, v{PH + j + q} offset:{BASE}")
                a.ext(aux(j + q))
            a("s_waitcnt lgkmcnt(0)")
            a.ext(place(range(j, j + 4)))
        a(f"ds_write2st64_b32 v{PH + j}, v{R0 + j}, v{PL + j} offset0:{SRC // 256} offset1:{AUX // 256}")
    a("K2_B10:\ns_mov_b64 exec, -1")
    stamp(a, 10)
    tr = tile_reads()
    a.ext(tr[:2])
    a(f"""
s_waitcnt vmcnt({nq})
K2_B11:
s_add_u32 s{sSPIN}, s{sSPIN}, 1
v_cmp_ne_u32 vcc, s{sNONCE}, v{vAUX}
s_cmp_gt_u32 s{sSPIN}, {SPIN}
s_cbranch_scc1 K2_B12
s_cbranch_vccz K2_B12
s_mov_b64 exec, vcc
{f2}
s_waitcnt vmcnt(0)
s_branch K2_B11
K2_B12:
s_mov_b64 exec, -1
s_waitcnt lgkmcnt(0)
s_barrier
""")
    stamp(a, 11)
    if OPT["prio"] >= 4 or OPT["php"]:
        a("s_setprio 3")
    a.ext(tr[2:])
    a(f"ds_read2_b32 {v(t4, 2)}, v{t4} offset0:0 offset1:1")
    a(f"s_waitcnt lgkmcnt({0 if OPT['safe'] else 5})")
    if OPT["xb"] in (4, 5):
        a.ext(x_addr() + [f"s_cmp_ge_u32 s{sWAVE}, 4", "s_cbranch_scc1 K2_G1"] + ld_x() + ["s_waitcnt lgkmcnt(0)"] + ld_r(0))
        a.ext((ld_r(1) if OPT["xb"] == 4 else []) + ["K2_G1:", "s_waitcnt lgkmcnt(0)"])
    elif OPT["xb"] == 2:
        a.ext(x_addr() + ["s_waitcnt lgkmcnt(0)"] + ld_r(0) + ["s_barrier"] + ld_x())
    elif OPT["xb"] == 3:
        a.ext(x_addr() + ["s_waitcnt lgkmcnt(0)"] + ld_r(0) + ld_x())
    else:
        a.ext(x_addr() + ld_x() + ["s_waitcnt lgkmcnt(0)"] + (["s_barrier"] if OPT["xb"] else []) + ld_r(0))
    a(f"v_readfirstlane_b32 s{sTAIL}, v{t4}\ns_lshr_b32 s{sTAIL}, s{sTAIL}, 24")
    a.ext(window() + plan_v())
    if OPT["r1pos"] == 9:
        a.ext(ld_r(1))

    def clear_rows():
        a(f"""
v_readfirstlane_b32 s79, v{t5}
v_mov_b64 {v(PD, 2)}, 0
v_mov_b64 {v(PD + 2, 2)}, 0
s_mul_i32 s77, s{sWAVE}, 2304
s_add_u32 s77, s77, {SB}
v_lshl_add_u32 v{t1}, v{vLANE}, 4, s77
ds_write_b128 v{t1}, {v(PD, 4)}
ds_write_b128 v{t1}, {v(PD, 4)} offset:1024
ds_write_b128 v{t1}, {v(PD, 4)} offset:1280
s_lshr_b32 s79, s79, 24
s_min_u32 s79, s79, 106
s_cmp_eq_u32 s{sWAVE}, 0
s_cselect_b32 s78, 0, s{sNB1}
s_mul_i32 s78, s78, {MS}
s_mul_i32 s79, s79, {MS}
v_lshl_add_u32 v{t1}, v{vLANE}, 4, s78
K2_Z1:
v_cmpx_gt_u32 vcc, s79, v{t1}
ds_write_b128 v{t1}, {v(PD, 4)} offset:{MA}
v_add_u32 v{t1}, 1024, v{t1}
s_cbranch_execnz K2_Z1
s_mov_b64 exec, -1
""")

    if OPT["lz"] == 1:
        clear_rows()
    a(f"s_cmp_lg_u32 s{sINIT}, 1\ns_cbranch_scc1 K2_G8\ns_mov_b32 s{sINIT}, 2")
    if OPT["r1pos"] in (0, 9):
        node_gemm(a, "H", {}, Cnt())
    else:
        node_gemm(a, "H", {OPT["r1pos"] - 1: lambda: a.ext(ld_r(1))}, Cnt())
        a("s_branch K2_G9")
    a("K2_G8:")
    if OPT["xb"] in (4, 5):
        a.ext([f"s_cmp_lt_u32 s{sWAVE}, 4", f"s_cbranch_scc1 {'K2_G9' if OPT['xb'] == 4 else 'K2_G2'}"] + ld_x() + ld_r(0) + ["K2_G2:"])
    if OPT["r1pos"] != 9:
        a.ext(ld_r(1))
    a("K2_G9:")
    if OPT["lz"] == 2:
        clear_rows()
    stamp(a, 23)
    for t in range(4):
        a(mf8(T + 16 * t, Z, Z, None))
    a(f"""
s_cmp_lg_u32 s{sCNT}, 0
s_cbranch_scc1 K2_G10
s_mov_b32 s{sNBF}, 0
s_mov_b32 s{sNLF}, -1
s_mov_b32 s{sTAIL}, -1
s_waitcnt vmcnt(0)
s_branch K2_TAIL
K2_G10:
""")
    a.ext(x_reads())
    for t in range(4):
        a(f"ds_read_b64_tr_b16 {v(WA + 4 * t, 2)}, v{vWAB} offset:{64 * t}")
    a.ext(wa_reads(sNB1) + advance() + tile_reads())
    a(f"""
s_mov_b32 s{sNBF}, s{sNB1}
s_mov_b32 s{sIT}, s{sCNT}
s_waitcnt vmcnt(16) lgkmcnt(0)
""")
    stamp(a, 12)
    stamp(a, 30)
    sh0 = [f"v_lshlrev_b64 {v(PL + r, 2)}, 16, {v(R0 + r, 2)}" for r in range(0, 16, 2)]
    a.ext(x_build() + x_addr() + sh0[:2] + [mf(PH, XC, WA, R0)] + sh0[2:])
    a(f"s_setprio {2 if OPT['prio'] in (0, 4, 5, 10) else 3}\ns_nop 0")
    a(mf(PL, XC, WA + 4, PL))

    def shifts(R):
        return [f"v_lshlrev_b64 {v(PL + r, 2)}, 16, {v(R + r, 2)}" for r in range(0, 16, 2)]

    def fl_addr():
        return lines(f"""
s_mul_i32 s77, s{sNBF}, {MS}
s_sub_u32 s79, s{sNLF}, s{sNBF}
s_lshl_b32 s78, s{sNBF}, 5
v_cmp_ge_i32 vcc, s79, v{vNP}
v_add_u32 v{t4}, s77, v{vMB}
v_mov_b32 v{t0}, {OOB}
v_add_u32 v{t5}, s78, v{vPB}
v_cndmask_b32 v{t4}, v{t0}, v{t4}, vcc""")

    def fl_cvt(t):
        return [f"v_cvt_pk_bf16_f32 v{T + 16 * t + i}, v{T + 16 * t + 2 * i}, v{T + 16 * t + 2 * i + 1}" for i in range(8)]

    def fl_wx(t, k):
        return f"ds_read_b128 {v(T + 16 * t + 8 + 4 * k, 4)}, v{vSRCA} offset:{WX + 64 * t + 32 * k}"

    def fl_st(t, k):
        o = 8 * t + 4 * k
        return f"ds_write2_b64 v{t4}, {v(T + 16 * t + 4 * k, 2)}, {v(T + 16 * t + 4 * k + 2, 2)} offset0:{o} offset1:{o + 2}"

    def fl_dot(mid=()):
        o = []
        for n, ts in enumerate(((0, 1), (3, 2))):
            o += list(mid) if n else []
            o += [f"v_dot2_f32_bf16 v{t0 + q}, v{T + 16 * t + i}, v{T + 16 * t + 8 + i}, {v(t0 + q) if n or i else '0'}"
                  for i in range(8) for q, t in enumerate(ts)]
        return o + ["s_nop 2", f"v_add_f32 v{t0}, v{t0}, v{t1}", f"v_cvt_f64_f32 {v(t2, 2)}, v{t0}"]

    cold = []

    def rare(label, body):
        if not OPT["ool"]:
            return [f"s_cbranch_scc1 {label}"] + body + [f"{label}:"]
        cold.extend([f"{label}_X:"] + body + [f"s_branch {label}"])
        return [f"s_cbranch_scc0 {label}_X", f"{label}:"]

    def flush():
        o = fl_addr()
        for t in (0, 1, 3, 2):
            o += fl_cvt(t) + [fl_wx(t, 0), fl_wx(t, 1), fl_st(t, 0), fl_st(t, 1)]
        d = fl_dot(["s_waitcnt lgkmcnt(6)"])
        ini = [mf8(T + 16 * t, EE + 2 * t, SM, None) for t in (1, 0, 3, 2)]
        o += m_reads(sNB1, "gt") + ["s_waitcnt lgkmcnt(14)"] + d[:-3] + ["s_waitcnt lgkmcnt(0)"]
        o += ini[:2] + d[-2:] + ini[2:3] + [f"ds_add_f64 v{t5}, {v(t2, 2)} offset:{POS}"] + ini[3:]
        return rare("K2_L1", o + lines(f"""
s_mov_b32 s{sNBF}, s{sNB1}
s_lshl_b32 s77, s{sWAVE}, 2
v_mov_b32 v{t0}, s77
ds_write_b32 v{t0}, v{vAUXA} offset:{FLAG + 16}"""))

    pr = []
    if OPT["prio"]:
        pr.append(f"s_add_u32 s{sIT}, s{sIT}, {1 if OPT['prio'] == 1 else -1}")
        lad = {1: ((2, 2), (4, 1), (6, 0)), 2: ((3, 2), (2, 1), (1, 0)), 3: ((4, 2), (2, 1), (1, 0)),
               4: ((2, 1), (1, 0)), 5: ((3, 1), (1, 0)), 6: ((3, 2), (2, 1), (1, 0)),
               7: ((2, 2), (1, 1)), 8: ((3, 2), (1, 1)), 9: ((3, 2), (2, 1)), 10: ((2, 1),)}[OPT["prio"]]
        for n, (it, p_) in enumerate(lad):
            pr += [f"s_cmp_lg_u32 s{sIT}, {it}", "\n".join(rare(f"K2_PR{n}", [f"s_setprio {p_}"]))]
    sr = [f"ds_read_b64_tr_b16 {v(S + 2 * q, 2)}, v{vSRD} offset:{576 * q}" for q in range(4)]
    sr.append(f"ds_write_b64 v{vSA}, {v(Z, 2)}")

    def loop_lut():
        SX = "dst_sel:WORD_0 dst_unused:UNUSED_SEXT src0_sel:WORD_0 src1_sel:WORD_"

        def tag(t, lst):
            return [f"@{t} {x}" if x.startswith("ds_") else x for x in lst]

        def look(b):
            G, Y = PL + 8 * b, M + 4 * b
            o = [f"v_cvt_pk_bf16_f32 v{Y + i}, v{G + 2 * i}, v{G + 2 * i + 1}" for i in range(4)]
            o += [f"v_mul_lo_u16_sdwa v{G + i}, -2, v{Y + i} {SX}0" for i in range(4)]
            lo = [f"@g{b} ds_read_u16 v{G + i}, v{G + i}" for i in range(4)]
            hi = [f"v_mul_lo_u16_sdwa v{G + 4 + i}, -2, v{Y + i} {SX}1" for i in range(4)]
            rd = [f"@g{b} ds_read_u16_d16_hi v{G + 4 + i}, v{G + 4 + i}" for i in range(4)]
            return (o + hi + lo + rd) if OPT["lb"] == 8 else (o + lo + hi + rd)

        def su(u):
            th, tl, un = 2 * u, 2 * u + 1, 1 - u
            Tl = T + 16 * tl
            h0, h1 = batch(PH, 0), batch(PH, 1)
            sh = shifts(R1 if un else R0)
            g = [mf(Tl, PL + 4 * n, S + 4 * (n >> 1), Tl) for n in range(4)]
            pA = h0[:8]
            pB = look(0) + (["?S"] if u == 0 else []) + [seg(tl, 0)] + look(1)
            pC = h0[8:12] + [seg(tl, 1)] + h0[12:24]
            pD = ["?g0", g[0]] + h0[24:] + h1[:1] + [g[1]] + h1[1:3] + [seg(th, 0)] + h1[3:12]
            pE = ["?g1", g[2]] + h1[12:15] + [g[3]] + h1[15:24]
            if OPT["merge"]:
                mg = [[f"v_or_b32 v{PL + 8 * b + i}, v{PL + 8 * b + i}, v{PL + 8 * b + 4 + i}" for i in range(4)] for b in range(2)]
                pD = ["?g0"] + mg[0] + h0[24:26] + [g[0]] + h0[26:] + h1[:2] + [seg(th, 0)] + h1[2:12]
                pE = ["?g1"] + mg[1] + h1[12:14] + [g[2]] + h1[14:24]
            if OPT["lsp"] == 1:
                l0, l1 = look(0), look(1)
                pB = l0[:6] + (["?S"] if u == 0 else []) + [seg(tl, 0)] + l0[6:] + l1[:4]
                pC = h0[8:12] + [seg(tl, 1)] + h0[12:20] + l1[4:] + h0[20:24]
            if OPT["lsp"] == 2:
                l0, l1 = look(0), look(1)
                pB = l0[:12] + (["?S"] if u == 0 else []) + [seg(tl, 0)] + l1[:12]
                rd = l0[12:] + l1[12:]
                pC = rd[:4] + h0[8:12] + rd[4:8] + [seg(tl, 1)] + h0[12:17] + rd[8:12] + h0[17:20] + rd[12:] + h0[20:24]
            pF = [mf(PH, XC, WA + 8 * un, R1 if un else R0)] + h1[24:] + sh[:2] + [seg(th, 1)] + sh[2:]
            ph = OPT["php"]
            if ph:
                parts = dict(A=pA, B=pB, C=pC, D=pD, E=pE, F=pF)
                parts[ph[0]].insert(0, "s_setprio 2")
                lo = "s_setprio 0"
                if OPT["yb"] >> u & 1:
                    th_ = f"s{sHEAD}" if (OPT["yb"] >> 2 + u) & 1 else "4"
                    lo += f"\ns_cmp_lt_u32 s{sWAVE}, {th_}\ns_cbranch_scc1 K2_Y{u}\ns_setprio 1\nK2_Y{u}:"
                parts[ph[1]].insert(0, lo)
            return pA, pB, pC, pD, pE, pF, mf(PL, XC, WA + 8 * un + 4, PL)

        o = []
        pA, pB, pC, pD, pE, pF, xl = su(0)
        ld = grp(ld_r(0))
        pv = plan_v()
        o += tag("S", sr[:4]) + tag("c", sr[4:]) + ld_x() + ld[:1] + [f"s_cmp_eq_u32 s{sNB1}, s{sNBF}"] + flush()
        o += sched(pA, ld[1:], win=0) + pB
        o += sched(pC, [f"s_mov_b32 s{sNLF}, s{sNL1}"] + window())
        o += sched(pD, advance()[:5])
        o += sched(pE, advance()[5:])
        o += pv[:3] + ["s_waitcnt vmcnt(17)"] + pF + pv[3:] + [xl]
        pA, pB, pC, pD, pE, pF, xl = su(1)
        ld = grp(ld_r(1))
        tr = tag("d", tile_reads())
        if OPT["prio"] >= 7:
            o += [f"s_cmp_lg_u32 s{sIT}, 1"] + rare("K2_PR9", ["s_setprio 0"])
        o += ld[:1] + [f"s_cmp_eq_u32 s{sNB1}, s{sNBF}"] + rare("K2_L2", wa_reads(sNB1))
        o += tag("x", x_reads()) + sched(pA, ld[1:], win=0) + pB
        o += sched(pC, ["\n".join(tr)] + pr[:1])
        o += sched(pD, pr[1:3])
        o += sched(pE, pr[3:])
        xa = x_addr()
        o += ["s_waitcnt vmcnt(16)", "?d"] + tag("w", x_build()) + xa[:1] + pF
        o += xa[1:] + [f"s_cmp_lg_u32 s{sRDP}, s{sDUM}", xl]
        c = Cnt()
        if OPT["lal"]:
            a(f".p2align {OPT['lal']}")
        a("K2_LOOP:")
        for x in "\n".join(o).split("\n"):
            if x.startswith("@"):
                t, x = x[1:].split(" ", 1)
                a(c(t, x))
            elif x.startswith("?"):
                a(c.wait(x[1:]))
            else:
                a(x)
        a("s_cbranch_scc1 K2_LOOP")

    loop_lut()

    fM, fH, fW, HRS = XC, XC + 1, XC + 2, R0
    RAW = [WA + 2 * n for n in range(7)]
    a(f"""
K2_TAIL:
s_setprio {3 if OPT["tp"] else 0}
s_lshl_b32 s3, s{sWAVE}, 2
v_mov_b32 v{X}, s3
s_cmp_eq_u32 s{sWAVE}, 7
s_cselect_b32 s26, 1, 0
{"s_mov_b32 s27, 0" if OPT["safe"] else ""}
K2_W1:
ds_read_b32 v{X + 1}, v{X} offset:{FLAG + 20}
""")
    stamp(a, 16)
    a.ext(m_reads(sNBF, "eq") + fl_addr())
    a(f"""
s_waitcnt lgkmcnt(0)
v_readfirstlane_b32 s77, v{X + 1}
{"s_add_u32 s27, s27, 1" if OPT["safe"] else ""}
{"s_cmp_gt_u32 s27, 100000" if OPT["safe"] else ""}
{"s_cbranch_scc1 K2_W2" if OPT["safe"] else ""}
s_or_b32 s77, s77, s26
s_cbranch_scc0 K2_W1
K2_W2:
""")
    adr = lines(f"""
v_and_b32 v{t0}, 15, v{vLANE}
v_lshrrev_b32 v{t1}, 4, v{vLANE}
v_mul_u32_u24 v{fM}, {MS}, v{t0}
v_lshl_add_u32 v{fM}, v{t1}, 4, v{fM}
v_add_u32 v{fM}, {MA}, v{fM}
s_lshl_b32 s77, s{sWAVE}, 1
v_lshrrev_b32 v{t2}, 1, v{t1}
v_add_u32 v{t2}, s77, v{t2}
v_xor_b32 v{t2}, v{t2}, v{t0}
v_lshlrev_b32 v{t2}, 4, v{t2}
v_lshl_add_u32 v{t2}, v{t0}, 8, v{t2}
v_and_b32 v{t3}, 1, v{t1}
v_lshl_add_u32 v{t2}, v{t3}, 3, v{t2}
v_add_u32 v{fH}, {HR}, v{t2}""")
    unp = []
    for mt in range(7):
        for q in range(2):
            unp.append(f"v_lshlrev_b32 v{HRS + 4 * mt + 2 * q}, 16, v{RAW[mt] + q}")
            unp.append(f"v_and_b32 v{HRS + 4 * mt + 2 * q + 1}, 0xffff0000, v{RAW[mt] + q}")
    rmw = [mf8(T + 16 * t, EE + 2 * t, SM, T + 16 * t) for t in range(4)]
    a.ext([rmw[0]] + adr[:7] + [rmw[1]] + adr[7:])
    for t in range(4):
        if t < 2:
            a(rmw[t + 2])
        a.ext(fl_cvt(t) + [fl_st(t, 0), fl_st(t, 1)])
        if t == 2:
            a("s_nop 0")
    a(f"""
v_mov_b32 v{X + 1}, 1
s_mov_b64 exec, 1
ds_write_b32 v{X}, v{X + 1} offset:{FLAG + 16}
ds_add_u32 v{Z}, v{X + 1} offset:{FLAG + 4}
s_mov_b64 exec, -1
{"s_setprio 0" if OPT["tp"] == 1 else ""}
""")
    stamp(a, 13)
    stamp(a, 31)
    a(f"s_lshl_b32 s77, s{sWAVE}, 12\ns_add_u32 s77, s77, {WS_W + 32768}\nv_lshl_add_u32 v{fW}, v{vLANE}, 4, s77")
    for k in range(4):
        a(f"global_load_dwordx4 {v(AD + 4 * k, 4)}, v{fW}, s[24:25] offset:{1024 * k} {hs}")
    for mt in range(7):
        a(f"ds_read_b64 {v(RAW[mt], 2)}, v{fH} offset:{4096 * mt}")
    for t in range(4):
        a.ext([fl_wx(t, 0), fl_wx(t, 1)])
    oA, oL, pO, pA_, pB_ = S, S + 4, S + 5, S + 6, S + 7
    a(f"""
s_mul_i32 s78, s{sN0}, 6
v_lshl_add_u32 v{pO}, v0, 1, s78
v_mul_u32_u24 v{t2}, 171, v0
v_lshrrev_b32 v{t2}, 9, v{t2}
v_add_lshl_u32 v{pA_}, v{t2}, v0, 2
v_lshlrev_b32 v{pB_}, 1, v{pA_}
v_cmp_gt_u32 vcc, {3 * BS}, v0
v_mov_b32 v{t2}, {N * 6}
v_and_b32 v{t0}, 15, v{vLANE}
v_cndmask_b32 v{pO}, v{t2}, v{pO}, vcc
v_lshrrev_b32 v{t1}, 4, v{vLANE}
v_xor_b32 v{t2}, v{t0}, v{t1}
v_lshlrev_b32 v{t2}, 4, v{t2}
v_lshl_add_u32 v{t2}, v{t1}, 8, v{t2}
s_lshl_b32 s77, s{sWAVE}, 12
s_lshl_b32 s78, s{sN0}, 8
s_add_u32 s78, s78, s77
v_add_u32 v{oA}, s78, v{t2}
v_xor_b32 v{oA + 1}, 64, v{oA}
v_xor_b32 v{oA + 2}, 128, v{oA}
v_xor_b32 v{oA + 3}, 192, v{oA}
v_lshl_add_u32 v{oL}, v{vLANE}, 4, s77
v_subrev_u32 v{fH}, {HR}, v{fH}
s_mov_b32 s36, s20
s_mov_b32 s37, s21
s_mov_b32 s38, s34
s_add_u32 s16, s20, {N * 256}
s_addc_u32 s17, s21, 0
s_mov_b32 s18, {N * 6}
s_mov_b32 s19, 0x20000
v_mov_b32 v{X + 2}, 1
s_waitcnt vmcnt(4) lgkmcnt(0)
""")
    a.ext(unp + fl_dot())
    a(f"""
ds_add_f64 v{t5}, {v(t2, 2)} offset:{POS}
""")
    a(f"""
{"s_mov_b32 s79, 0" if OPT["safe"] else ""}
{"s_setprio 0" if OPT["tp"] == 2 else ""}
K2_W3:
ds_read_b32 v{X + 1}, v{Z} offset:{FLAG + 4}
{"s_add_u32 s79, s79, 1" if OPT["safe"] else ""}
{"s_cmp_gt_u32 s79, 1000000" if OPT["safe"] else ""}
{"s_cbranch_scc1 K2_W4" if OPT["safe"] else ""}
s_waitcnt lgkmcnt(0)
v_readfirstlane_b32 s77, v{X + 1}
s_cmp_lg_u32 s77, 8
s_cbranch_scc1 K2_W3
K2_W4:
""")
    stamp(a, 14)
    c = Cnt()
    MF = [PH, PL, WA, T, T + 16, T + 32, T + 48]

    def mrd(mt):
        return [f"@m{mt} ds_read_b128 {v(MF[mt] + 4 * k, 4)}, v{fM} offset:{16 * MS * mt + 64 * k}" for k in range(4)]

    def mm(mt):
        return [mf16(H1 + 4 * mt, AD + 4 * k, MF[mt] + 4 * k, H1 + 4 * mt) for k in range(4)]

    def emit(lst):
        for x in lst:
            if x.startswith("@"):
                t, x = x[1:].split(" ", 1)
                a(c(t, x))
            elif x.startswith("?"):
                a(c.wait(x[1:]))
            else:
                a(x)

    emit(mrd(0) + mrd(1) + mrd(2))
    a(f"""
s_waitcnt vmcnt(0)
s_cmp_eq_u32 s{sMORE}, 0
s_cbranch_scc1 K2_FINAL
s_add_u32 s{sDONE}, s{sDONE}, s{sSPB}
""")
    for mt in range(3, 7):
        a.ext(x.split(" ", 1)[1] for x in mrd(mt))
    a("s_waitcnt lgkmcnt(0)")
    for mt in range(7):
        a.ext(mm(mt))
    if not OPT["lz"]:
        a(f"v_lshlrev_b32 v{t0}, 3, v0\nv_add_u32 v{t0}, {MA}, v{t0}\ns_barrier")
        for i in range(8):
            a(f"ds_write_b64 v{t0}, {v(Z, 2)} offset:{4096 * i}")
    a(f"""
K2_AGAIN:
s_waitcnt vmcnt(0) lgkmcnt(0)
s_barrier
v_lshlrev_b32 v{t0}, 3, v{vLANE}
ds_write_b64 v{t0}, {v(Z, 2)} offset:{HIST}
ds_write_b64 v{t0}, {v(Z, 2)} offset:{HIST + 64}
""")
    a.ext(cell_addr())
    a("s_waitcnt lgkmcnt(0)\ns_barrier\ns_branch K2_B0")
    a.ext(cold)

    def fin(mt, n, m1, m2, rd):
        P = H1 + 4 * mt
        o = []
        for i in range(n):
            o += m1[i:i + 1] + [f"v_exp_f32 v{EE + i}, v{P + i}"]
        o += rd
        o += [f"v_pk_fma_f32 {v(EE + i, 2)}, {v(EE + i, 2)}, s[68:69], s[68:69]" for i in range(0, n, 2)]
        o += m2[:1]
        for i in range(n):
            o += m2[i + 1:i + 2] + [f"v_rcp_f32 v{EE + i}, v{EE + i}"]
        o += [f"v_pk_fma_f32 {v(EE + i, 2)}, {v(EE + i, 2)}, {v(P + i, 2)}, {v(HRS + 4 * mt + i, 2)}" for i in range(0, n, 2)]
        o += [f"v_cvt_pk_bf16_f32 v{P + i // 2}, v{EE + i}, v{EE + i + 1}" for i in range(0, n, 2)]
        o += [f"@o ds_write_b64 v{fH}, {v(P + 2 * q, 2)} offset:{4096 * (mt + q)}" for q in range(n // 4)]
        if OPT["pco"]:
            o += ["s_mov_b64 exec, 1", f"@o ds_add_u32 v{Z}, v{X + 2} offset:{FLAG + 48 + 2 * mt}", "s_mov_b64 exec, -1"]
        return o

    a("K2_FINAL:")
    emit(["?m0"] + mm(0) + mrd(3) + ["?m1"] + mm(1) + ["?m2"])
    emit(fin(0, 8, mm(2), ["?m3"] + mm(3), mrd(4) + mrd(5)))
    emit(["?m4"] + fin(2, 8, mm(4), ["?m5"] + mm(5), mrd(6)))
    emit(["?m6"] + fin(4, 8, mm(6), [], []))
    emit(fin(6, 4, [], [], []))
    if OPT["stamps"] == 2:
        stamp(a, 22)
    if OPT["pco"]:
        a(f"""
s_lshr_b32 s77, s{sWAVE}, 1
s_lshl_b32 s77, s77, 2
v_mov_b32 v{X}, s77
{"s_mov_b32 s79, 0" if OPT["safe"] else ""}
K2_W5:
ds_read_b32 v{X + 1}, v{X} offset:{FLAG + 48}
""")
    else:
        a("s_waitcnt lgkmcnt(0)\ns_barrier")
    for n in range(4):
        a(f"ds_read_b128 {v(T + 4 * n, 4)}, v{oL} offset:{1024 * n}")
    a(f"ds_read_b64 {v(M, 2)}, v{pB_} offset:{POS + 8}\nds_read_b32 v{M + 2}, v{pA_} offset:{PDL}")
    if OPT["pco"]:
        a(f"""
s_waitcnt lgkmcnt(6)
v_readfirstlane_b32 s77, v{X + 1}
s_cmp_eq_u32 s77, 8
s_cbranch_scc1 K2_W6
K2_W7:
ds_read_b32 v{X + 1}, v{X} offset:{FLAG + 48}
{"s_add_u32 s79, s79, 1" if OPT["safe"] else ""}
{"s_cmp_gt_u32 s79, 1000000" if OPT["safe"] else ""}
{"s_cbranch_scc1 K2_W6" if OPT["safe"] else ""}
s_waitcnt lgkmcnt(0)
v_readfirstlane_b32 s77, v{X + 1}
s_cmp_eq_u32 s77, 8
s_cbranch_scc1 K2_W5
s_branch K2_W7
K2_W6:
""")
    for n in range(4):
        a(f"s_waitcnt lgkmcnt({5 - n})")
        a(f"buffer_store_dwordx4 {v(T + 4 * n, 4)}, v{oA + n}, s[36:39], 0 offen offset:{1024 * n} {OPT['stout']}")
    a(f"""
s_waitcnt lgkmcnt(0)
v_cvt_f32_f64 v{M}, {v(M, 2)}
v_fma_f32 v{M}, v{M}, s70, v{M + 2}
v_cvt_pk_bf16_f32 v{M}, v{M}, v{M}
buffer_store_short v{M}, v{pO}, s[16:19], 0 offen {OPT['stpos']}
""")
    stamp(a, 15)
    stamps_out(a, f"s{sWAVE}")
    a("K2_END:\ns_endpgm")


def kd(name, vgpr, sgpr):
    return f""".amdhsa_kernel {name}
  .amdhsa_next_free_vgpr {vgpr}
  .amdhsa_next_free_sgpr {sgpr}
  .amdhsa_accum_offset {vgpr}
  .amdhsa_group_segment_fixed_size 0
  .amdhsa_kernarg_size 88
  .amdhsa_user_sgpr_count 2
  .amdhsa_user_sgpr_kernarg_segment_ptr 1
  .amdhsa_system_sgpr_workgroup_id_x 1
.end_amdhsa_kernel
"""


def build(**opt):
    OPT.update(opt)
    here = os.path.dirname(os.path.abspath(__file__))
    ref = open(os.path.join(here, "header.txt")).read()
    a = Asm()
    k2(a)
    if OPT["al"]:
        a.lines = align8(a.lines)
    probs = check(a.lines)
    for p in probs:
        print("HAZARD", p, file=sys.stderr)
    kn = NAME + "_kernel"
    txt = ref
    txt += f"; @launch grid=(256,1,1) block=(512,1,1) lds={K2_LDS}\n"
    txt += '.amdgcn_target "amdgcn-amd-amdhsa--gfx950"\n.text\n'
    txt += f".globl {kn}\n.type {kn},@function\n" + a.text()
    txt += '.section .rodata,"a"\n.p2align 6\n' + kd(kn, 256, 102)
    return txt, probs


if __name__ == "__main__":
    out = sys.argv[1] if len(sys.argv) > 1 else f"cdna_kernels/{NAME}.s"
    opt = {}
    for kv in sys.argv[2:]:
        k, val = kv.split("=", 1)
        opt[k] = int(val) if val.lstrip("-").isdigit() else val.replace("+", " ")
    txt, probs = build(**opt)
    open(out, "w").write(txt)
    print("wrote", out, len(txt), "bytes;", len(probs), "hazards")
```
